```python
import torch

def _softmax(x, axis=-1):
    return torch.softmax(x, dim=axis)
def _gelu(x):
    return torch.nn.functional.gelu(x, approximate="tanh")
def _silu(x):
    return torch.nn.functional.silu(x)
def _sigmoid(x):
    return torch.sigmoid(x)
def _layernorm(x, axis=-1, eps=1e-5):
    m = x.mean(dim=axis, keepdim=True)
    v = x.var(dim=axis, keepdim=True, unbiased=False)
    return (x - m) / torch.sqrt(v + eps)
def _scatter_add(tgt, idx, src, axis=0):
    return tgt.clone().index_add_(axis, idx, src)
def _segment_sum(src, seg, n):
    out = torch.zeros((n,) + src.shape[1:], dtype=src.dtype)
    return out.index_add_(0, seg, src)
def _pad(x, pw):
    flat = tuple(v for pair in reversed(pw) for v in pair)
    return torch.nn.functional.pad(x, flat)

kernel_name = 'concat_heads__linear_attn_block__sliding_local_dilated__prompt'

def setup_inputs():

    _w = (lambda a: (lambda t: t.to(torch.bfloat16) if t.is_floating_point() else t)(torch.as_tensor(a)))
    def _A_setup():
        B, S, D = 1, 2048, 448
        return {
            "x": _w((lambda *s: torch.randn(*s, dtype=torch.bfloat16) * 0.05)(B, S, D)),
            "wqkv": _w((lambda *s: torch.randn(*s, dtype=torch.bfloat16) * 1.6)(D, 3 * D)),
            "wo": _w((lambda *s: torch.randn(*s, dtype=torch.bfloat16) * 0.8)(D, D)),
        }
    _A_in = _A_setup()

    def _B_setup():
        B, S, D = 1, 2048, 448
        return {
            "x": _w((lambda *s: torch.randn(*s, dtype=torch.bfloat16) * 0.2)(B, S, D)),
            "wqkv": _w((lambda *s: torch.randn(*s, dtype=torch.bfloat16) * 0.2)(D, 3 * D)),
            "wo": _w((lambda *s: torch.randn(*s, dtype=torch.bfloat16) * 0.05)(D, D)),
        }
    _B_in = _B_setup()

    return {
        "A_x": _A_in["x"],
        "A_wqkv": _A_in["wqkv"],
        "A_wo": _A_in["wo"],
        "B_x": _B_in["x"],
        "B_wqkv": _B_in["wqkv"],
        "B_wo": _B_in["wo"],
    }

def reference(A_x, A_wqkv, A_wo, B_x, B_wqkv, B_wo):
    def _A_ref(x, wqkv, wo):
        B, S, D = x.shape
        H = 16; Dh = D // H
        qkv = (lambda x, *d: x.permute(*d))((x @ wqkv).reshape(B, S, 3, H, Dh), 2, 0, 3, 1, 4)
        q, k, v = qkv[0], qkv[1], qkv[2]
        phi = lambda t: torch.where(t > 0, t + 1, torch.exp(t)) + 1e-6
        pq, pk = phi(q), phi(k)
        kv = torch.einsum("bhsd,bhse->bhde", pk, v)
        z = torch.einsum("bhsd->bhd", pk)
        num = torch.einsum("bhqd,bhde->bhqe", pq, kv)
        den = torch.einsum("bhqd,bhd->bhq", pq, z)[..., None] + 1e-6
        o = num / den
        return (lambda x, *d: x.permute(*d))(o, 0, 2, 1, 3).reshape(B, S, D) @ wo

    def _B_ref(x, wqkv, wo):
        B, S, D = x.shape
        H = 16; Dh = D // H
        W, dil = 8, 2
        qkv = (lambda x, *d: x.permute(*d))((x @ wqkv).reshape(B, S, 3, H, Dh), 2, 0, 3, 1, 4)
        q, k, v = qkv[0], qkv[1], qkv[2]
        scale = Dh ** -0.5
        pos = torch.arange(S)
        off = torch.arange(W) * dil
        idx = pos[:, None] - off[None, :]
        mask = idx >= 0
        idx_c = torch.where(mask, idx, 0).reshape(-1)
        kg = k[:, :, idx_c, :].reshape(B, H, S, W, Dh)
        vg = v[:, :, idx_c, :].reshape(B, H, S, W, Dh)
        logits = torch.einsum("bhsd,bhswd->bhsw", q, kg) * scale
        logits = torch.where(mask[None, None, :, :], logits, -1e9)
        attn = _softmax(logits, axis=-1)
        o = torch.einsum("bhsw,bhswd->bhsd", attn, vg)
        return (lambda x, *d: x.permute(*d))(o, 0, 2, 1, 3).reshape(B, S, D) @ wo

    a = _A_ref(A_x, A_wqkv, A_wo)
    b = _B_ref(B_x, B_wqkv, B_wo)
    return torch.concatenate([a, b], axis=-1)
```

```python
import sys
NAME = "concat_heads__linear_attn_block__sliding_local_dilated__prompt"
OUT = f"cdna_kernels/{NAME}.s"

L = []
def e(s=""):
    L.append("    " + s if s and not s.endswith(":") else s)
def lab(s): L.append(s + ":")
def c(s): L.append("    ; " + s)

WS_PQA, WS_OB, WS_KVP, WS_ZP, WS_KVZ, WS_END = 0, 0x200000, 0x400000, 0x500000, 0x600000, 0x700000

def vr(a, n=1):
    return f"v{a}" if n == 1 else f"v[{a}:{a+n-1}]"
def ar(a, n=1):
    return f"a{a}" if n == 1 else f"a[{a}:{a+n-1}]"

def srd(dst, ptr_lo, nbytes):
    e(f"s_mov_b32 s{dst}, s{ptr_lo}")
    e(f"s_and_b32 s{dst+1}, s{ptr_lo+1}, 0xffff")
    e(f"s_mov_b32 s{dst+2}, {nbytes}")
    e(f"s_mov_b32 s{dst+3}, 0x00020000")

def kernel_header(name):
    L.append(".p2align 8")
    L.append(f".globl {name}")
    L.append(f".type {name},@function")
    lab(name)

def kd(name, nvgpr, accum, nsgpr=96):
    return f""".p2align 6
.amdhsa_kernel {name}
  .amdhsa_next_free_vgpr {nvgpr}
  .amdhsa_next_free_sgpr {nsgpr}
  .amdhsa_accum_offset {accum}
  .amdhsa_group_segment_fixed_size 0
  .amdhsa_kernarg_size 72
  .amdhsa_user_sgpr_count 2
  .amdhsa_user_sgpr_kernarg_segment_ptr 1
  .amdhsa_system_sgpr_workgroup_id_x 1
.end_amdhsa_kernel"""

def cvt_pk(dst, a, b): e(f"v_cvt_pk_bf16_f32 v{dst}, v{a}, v{b}")
def unpk_lo(dst, src): e(f"v_lshlrev_b32 v{dst}, 16, v{src}")
def unpk_hi(dst, src): e(f"v_and_b32 v{dst}, 0xffff0000, v{src}")

K1 = NAME + "_k1_kernel"
XS = 144
XBUF = 144 * XS
WSr = 352
WBUF = 64 * WSr
BUF = XBUF + WBUF
K1_LDS = 2 * BUF
TS = 352

def gen_k1():
    kernel_header(K1)
    e("s_cmp_ge_u32 s2, 256")
    e("s_cbranch_scc1 K1_END")
    e("s_lshr_b32 s24, s2, 7")
    e("s_lshr_b32 s25, s2, 3")
    e("s_and_b32 s25, s25, 15")
    e("s_and_b32 s26, s2, 7")
    e("s_mul_i32 s29, s24, 24")
    e("s_add_u32 s30, s0, s29")
    e("s_addc_u32 s31, s1, 0")
    e("s_load_dwordx4 s[4:7], s[30:31], 0")
    e("s_load_dwordx2 s[8:9], s[0:1], 64")
    e("v_lshrrev_b32 v1, 6, v0")
    e("s_nop 0")
    e("v_readfirstlane_b32 s27, v1")
    e("s_lshl_b32 s28, s25, 7")
    e("s_waitcnt lgkmcnt(0)")
    srd(12, 4, 1835008)
    srd(16, 6, 448 * 2688)
    srd(20, 8, WS_END)
    e("v_lshrrev_b32 v8, 3, v0")
    e("v_and_b32 v9, 7, v0")
    e("s_sub_u32 s29, s28, 16")
    e("v_add_u32 v10, s29, v8")
    e("s_movk_i32 s30, 896")
    e("v_mul_lo_u32 v2, v10, s30")
    e("v_lshl_add_u32 v2, v9, 4, v2")
    for j in range(1, 5):
        e(f"v_add_u32 v{2+j}, {28672*j}, v2")
    e("v_mul_u32_u24 v7, 144, v8")
    e("v_lshl_add_u32 v7, v9, 4, v7")
    e("s_mul_i32 s29, s26, 112")
    e("s_movk_i32 s30, 2688")
    e("v_mul_lo_u32 v11, v8, s30")
    e("v_lshl_add_u32 v11, v9, 4, v11")
    e("v_add_u32 v11, s29, v11")
    e("v_cmp_eq_u32 vcc, 7, v9")
    e("v_mov_b32 v12, 0x7fff0000")
    e("s_nop 1")
    e("v_cndmask_b32 v11, v11, v12, vcc")
    e(f"v_add_u32 v12, {32*2688}, v11")
    e("v_mul_u32_u24 v13, 352, v8")
    e("v_lshl_add_u32 v14, v9, 4, v13")
    e("v_add_u32 v13, 336, v13")
    e("s_nop 0")
    e("v_cndmask_b32 v13, v14, v13, vcc")
    e("v_mov_b32 v14, 0")
    e("v_mov_b32 v15, 112")
    e("v_cndmask_b32 v14, v15, v14, vcc")
    e("v_add_u32 v15, v13, v14")
    e("v_add_u32 v14, v15, v14")
    for r_ in (13, 14, 15):
        e(f"v_add_u32 v{r_}, {XBUF}, v{r_}")
    e("v_and_b32 v16, 15, v0")
    e("v_bfe_u32 v17, v0, 4, 2")
    e("s_lshl_b32 s29, s27, 5")
    e("s_add_u32 s29, s29, 16")
    e("v_add_u32 v18, s29, v16")
    e("v_mul_u32_u24 v18, 144, v18")
    e("v_lshl_add_u32 v18, v17, 3, v18")
    e("v_mul_u32_u24 v19, 144, v16")
    e("v_lshl_add_u32 v19, v17, 3, v19")
    e("v_lshrrev_b32 v20, 2, v16")
    e("v_lshl_add_u32 v20, v17, 2, v20")
    e("v_mul_u32_u24 v20, 352, v20")
    e("v_and_b32 v21, 3, v16")
    e("v_lshl_add_u32 v20, v21, 3, v20")
    e(f"v_add_u32 v20, {XBUF}, v20")
    NACC = 96
    for i in range(NACC):
        e(f"v_accvgpr_write_b32 a{i}, 0")
    SX, SW = 24, 44
    F = [68, 128]
    def gload(cn):
        for j in range(4):
            e(f"buffer_load_dwordx4 {vr(SX+4*j,4)}, v{2+j}, s[12:15], 0 offen offset:{128*cn}")
        e("s_cmp_ge_u32 s27, 2")
        e(f"s_cbranch_scc1 K1_SKX{cn}")
        e(f"buffer_load_dwordx4 {vr(SX+16,4)}, v6, s[12:15], 0 offen offset:{128*cn}")
        lab(f"K1_SKX{cn}")
        e(f"s_mov_b32 s32, {64*2688*cn}")
        for half in range(2):
            for p in range(3):
                e(f"buffer_load_dwordx4 {vr(SW+4*(half*3+p),4)}, v{11+half}, s[16:19], s32 offen offset:{896*p}")
    def lwrite(cn):
        b = (cn & 1) * BUF
        for j in range(4):
            e(f"ds_write_b128 v7, {vr(SX+4*j,4)} offset:{b+32*XS*j}")
        e("s_cmp_ge_u32 s27, 2")
        e(f"s_cbranch_scc1 K1_SKW{cn}")
        e(f"ds_write_b128 v7, {vr(SX+16,4)} offset:{b+32*XS*4}")
        lab(f"K1_SKW{cn}")
        for half in range(2):
            for p, va in enumerate((13, 15, 14)):
                e(f"ds_write_b128 v{va}, {vr(SW+4*(half*3+p),4)} offset:{b+32*WSr*half}")
    def freads(cn, ks, f):
        b = (cn & 1) * BUF
        base = F[f]
        n = 0
        for rb in range(2):
            for h in range(2):
                e(f"ds_read_b64 {vr(base+4*rb+2*h,2)}, v18 offset:{b+16*XS*rb+64*ks+32*h}")
                n += 1
        for h in range(2):
            e(f"ds_read_b64 {vr(base+8+2*h,2)}, v19 offset:{b+64*ks+32*h}")
            n += 1
        for cb in range(11):
            for h in range(2):
                e(f"ds_read_b64_tr_b16 {vr(base+12+4*cb+2*h,2)}, v20 offset:{b+(32*ks+16*h)*WSr+32*cb}")
                n += 1
        return n
    def mfmas(f, outstanding_after):
        base = F[f]
        tot = 28
        for cb in range(11):
            done = 6 + 2 * (cb + 1)
            cnt = tot - done + outstanding_after
            e(f"s_waitcnt lgkmcnt({min(cnt,15)})")
            for rb in range(2):
                a = (rb * 11 + cb) * 4
                e(f"v_mfma_f32_16x16x32_bf16 {ar(a,4)}, {vr(base+4*rb,4)}, {vr(base+12+4*cb,4)}, {ar(a,4)}")
        e("s_cmp_eq_u32 s24, 0")
        lbl = f"K1_NH{len(L)}"
        e(f"s_cbranch_scc1 {lbl}")
        for w in range(4):
            lw = f"K1_HW{len(L)}"
            e(f"s_cmp_lg_u32 s27, {w}")
            e(f"s_cbranch_scc1 {lw}")
            for q in range(2):
                cb = 3 + 2 * w + q
                e(f"v_mfma_f32_16x16x32_bf16 {ar(88+4*q,4)}, {vr(base+8,4)}, {vr(base+12+4*cb,4)}, {ar(88+4*q,4)}")
            lab(lw)
        lab(lbl)
    gload(0)
    e("s_waitcnt vmcnt(0)")
    lwrite(0)
    e("s_waitcnt lgkmcnt(0)")
    e("s_barrier")
    for cn in range(7):
        freads(cn, 0, 0)
        if cn < 6:
            gload(cn + 1)
        freads(cn, 1, 1)
        mfmas(0, 28)
        mfmas(1, 0)
        if cn < 6:
            e("s_waitcnt vmcnt(0)")
            lwrite(cn + 1)
        e("s_waitcnt lgkmcnt(0)")
        e("s_barrier")
    e("s_nop 7")
    e("s_nop 7")
    e("s_lshl_b32 s29, s27, 5")
    e("s_add_u32 s29, s29, 16")
    e("v_lshl_add_u32 v22, v17, 2, s29")
    e(f"v_mul_u32_u24 v22, {TS}, v22")
    e("v_lshl_add_u32 v22, v16, 1, v22")
    e("v_lshlrev_b32 v23, 2, v17")
    e(f"v_mul_u32_u24 v23, {TS}, v23")
    e("v_lshl_add_u32 v23, v16, 1, v23")
    e("s_mov_b32 s33, 0x3fb8aa3b")
    e("s_mov_b32 s34, 0x358637bd")
    def store_block(a, vaddr, off, phi):
        for pr in range(2):
            e(f"v_accvgpr_read_b32 v24, a{a+2*pr}")
            e(f"v_accvgpr_read_b32 v25, a{a+2*pr+1}")
            e("s_nop 0")
            cvt_pk(26, 24, 25)
            if phi:
                for src, dst, fn in ((26, 24, unpk_lo), (26, 25, unpk_hi)):
                    fn(dst, src)
                for t in (24, 25):
                    e(f"v_mul_f32 v27, s33, v{t}")
                    e("v_exp_f32 v27, v27")
                    e(f"v_add_f32 v28, 1.0, v{t}")
                    e(f"v_cmp_lt_f32 vcc, 0, v{t}")
                    e("s_nop 1")
                    e(f"v_cndmask_b32 v{t}, v27, v28, vcc")
                cvt_pk(26, 24, 25)
                unpk_lo(24, 26); unpk_hi(25, 26)
                e("v_add_f32 v24, s34, v24")
                e("v_add_f32 v25, s34, v25")
                cvt_pk(26, 24, 25)
            e(f"ds_write_b16 v{vaddr}, v26 offset:{off+(2*pr)*TS}")
            e(f"ds_write_b16_d16_hi v{vaddr}, v26 offset:{off+(2*pr+1)*TS}")
    e("s_cmp_eq_u32 s24, 0")
    e("s_cbranch_scc0 K1_EPB")
    for rb in range(2):
        for cb in range(11):
            store_block((rb * 11 + cb) * 4, 22, 16 * TS * rb + 32 * cb, cb < 7)
    e("s_branch K1_EPD")
    lab("K1_EPB")
    for rb in range(2):
        for cb in range(11):
            store_block((rb * 11 + cb) * 4, 22, 16 * TS * rb + 32 * cb, False)
    e("s_lshl_b32 s29, s27, 6")
    e("v_add_u32 v23, s29, v23")
    for q in range(2):
        store_block(88 + 4 * q, 23, 32 * (3 + q), False)
    lab("K1_EPD")
    e("s_waitcnt lgkmcnt(0)")
    e("s_barrier")
    e("s_cmp_eq_u32 s24, 0")
    e("s_cbranch_scc0 K1_ATTB")
    for j in range(4):
        e(f"v_add_u32 v24, {16+32*j}, v8")
        e(f"v_mul_u32_u24 v24, {TS}, v24")
        e("v_lshl_add_u32 v24, v9, 4, v24")
        e(f"ds_read_b128 {vr(28+4*j,4)}, v24")
    e("s_add_u32 s29, s28, 0")
    e("v_add_u32 v24, s29, v8")
    e("s_movk_i32 s30, 896")
    e("v_mul_lo_u32 v24, v24, s30")
    e("v_lshl_add_u32 v24, v9, 4, v24")
    e("s_mul_i32 s29, s26, 112")
    e("v_add_u32 v24, s29, v24")
    e("v_cmp_eq_u32 vcc, 7, v9")
    e("v_mov_b32 v25, 0x7fff0000")
    e("s_nop 1")
    e("v_cndmask_b32 v24, v24, v25, vcc")
    e("s_waitcnt lgkmcnt(0)")
    for j in range(4):
        e(f"v_add_u32 v25, {28672*j}, v24")
        e(f"buffer_store_dwordx4 {vr(28+4*j,4)}, v25, s[20:23], 0 offen offset:{WS_PQA}")
    e("v_lshrrev_b32 v24, 2, v16")
    e("v_lshl_add_u32 v24, v17, 2, v24")
    e("v_add_u32 v24, 16, v24")
    e(f"v_mul_u32_u24 v24, {TS}, v24")
    e("v_and_b32 v25, 3, v16")
    e("v_lshl_add_u32 v24, v25, 3, v24")
    e("s_lshr_b32 s29, s27, 1")
    e("s_and_b32 s30, s27, 1")
    e("s_mul_i32 s31, s29, 56")
    e("s_lshl_b32 s32, s30, 5")
    e("s_add_u32 s32, s32, s31")
    e("s_add_u32 s32, s32, 112")
    e("s_add_u32 s31, s31, 224")
    e("v_add_u32 v25, s32, v24")
    e("v_add_u32 v26, s31, v24")
    for i in range(12):
        e(f"v_accvgpr_write_b32 a{i}, 0")
    e("v_mov_b32 v44, 0x3f803f80")
    e("v_mov_b32 v45, 0x3f803f80")
    e("v_mov_b32 v46, 0x3f803f80")
    e("v_mov_b32 v47, 0x3f803f80")
    for ks in range(4):
        for h in range(2):
            e(f"ds_read_b64_tr_b16 {vr(28+2*h,2)}, v25 offset:{(32*ks+16*h)*TS}")
        for nb in range(2):
            for h in range(2):
                e(f"ds_read_b64_tr_b16 {vr(32+4*nb+2*h,2)}, v26 offset:{(32*ks+16*h)*TS+32*nb}")
        e("s_waitcnt lgkmcnt(0)")
        e(f"v_mfma_f32_16x16x32_bf16 a[0:3], v[28:31], v[32:35], a[0:3]")
        e(f"v_mfma_f32_16x16x32_bf16 a[4:7], v[28:31], v[36:39], a[4:7]")
        e(f"v_mfma_f32_16x16x32_bf16 a[8:11], v[28:31], v[44:47], a[8:11]")
    e("s_nop 7")
    e("s_nop 7")
    e("s_lshl_b32 s31, s26, 1")
    e("s_add_u32 s31, s31, s29")
    e("s_lshl_b32 s32, s25, 4")
    e("s_add_u32 s31, s31, s32")
    e("s_lshl_b32 s32, s31, 12")
    e("s_lshl_b32 s33, s31, 7")
    e("s_lshl_b32 s34, s30, 4")
    e("v_lshl_add_u32 v24, v17, 2, s34")
    e("v_lshlrev_b32 v25, 7, v24")
    e("v_lshl_add_u32 v25, v16, 2, v25")
    e("v_add_u32 v25, s32, v25")
    e("v_lshlrev_b32 v26, 2, v24")
    e("v_add_u32 v26, s33, v26")
    e(f"s_mov_b32 s35, {WS_KVP}")
    e(f"s_mov_b32 s36, {WS_ZP}")
    for nb in range(2):
        for i in range(4):
            e(f"v_accvgpr_read_b32 v27, a{4*nb+i}")
            e("s_nop 0")
            e(f"buffer_store_dword v27, v25, s[20:23], s35 offen offset:{128*i + 64*nb}")
    for i in range(4):
        e(f"v_accvgpr_read_b32 v27, a{8+i}")
        e("s_nop 0")
        e(f"buffer_store_dword v27, v26, s[20:23], s36 offen offset:{4*i}")
    e("s_branch K1_END")
    lab("K1_ATTB")
    e("v_lshrrev_b32 v24, 1, v0")
    e("v_and_b32 v25, 1, v0")
    e("v_add_u32 v26, 2, v24")
    e(f"v_mul_u32_u24 v26, {TS}, v26")
    e("v_mul_u32_u24 v27, 56, v25")
    e("v_add_u32 v26, v26, v27")
    Q, KV, LG, O = 28, 42, 56, 64
    for i in range(7):
        e(f"ds_read_b64 {vr(Q+2*i,2)}, v26 offset:{14*TS+8*i}")
    e("v_add_u32 v27, s28, v24")
    e("s_mov_b32 s33, 0x3e4184d8")
    e("s_mov_b32 s34, 0xce6e6b28")
    e("s_mov_b32 s35, 0x3fb8aa3b")
    for w in range(8):
        for i in range(7):
            e(f"ds_read_b64 {vr(KV+2*i,2)}, v26 offset:{(14-2*w)*TS+112+8*i}")
        e("s_waitcnt lgkmcnt(0)")
        e(f"v_mov_b32 v{LG+w}, 0")
        for i in range(14):
            e(f"v_dot2_f32_bf16 v{LG+w}, v{Q+i}, v{KV+i}, v{LG+w}")
    for w in range(0, 8, 2):
        cvt_pk(92, LG + w, LG + w + 1)
        unpk_lo(LG + w, 92); unpk_hi(LG + w + 1, 92)
        e(f"v_mul_f32 v{LG+w}, s33, v{LG+w}")
        e(f"v_mul_f32 v{LG+w+1}, s33, v{LG+w+1}")
        cvt_pk(92, LG + w, LG + w + 1)
        unpk_lo(LG + w, 92); unpk_hi(LG + w + 1, 92)
    e("v_mov_b32 v93, s34")
    for w in range(1, 8):
        e(f"v_cmp_gt_u32 vcc, {2*w}, v27")
        e("s_nop 1")
        e(f"v_cndmask_b32 v{LG+w}, v{LG+w}, v93, vcc")
    e(f"v_max3_f32 v92, v{LG}, v{LG+1}, v{LG+2}")
    e(f"v_max3_f32 v92, v92, v{LG+3}, v{LG+4}")
    e(f"v_max3_f32 v92, v92, v{LG+5}, v{LG+6}")
    e(f"v_max_f32 v92, v92, v{LG+7}")
    e("v_mov_b32 v93, 0")
    for w in range(8):
        e(f"v_sub_f32 v{LG+w}, v{LG+w}, v92")
        e(f"v_mul_f32 v{LG+w}, s35, v{LG+w}")
        e(f"v_exp_f32 v{LG+w}, v{LG+w}")
        e("s_nop 0")
        e(f"v_add_f32 v93, v93, v{LG+w}")
    e("v_rcp_f32 v93, v93")
    e("s_nop 0")
    for w in range(8):
        e(f"v_mul_f32 v{LG+w}, v93, v{LG+w}")
    for w in range(0, 8, 2):
        cvt_pk(92, LG + w, LG + w + 1)
        unpk_lo(LG + w, 92); unpk_hi(LG + w + 1, 92)
    for i in range(28):
        e(f"v_mov_b32 v{O+i}, 0")
    for w in range(8):
        for i in range(7):
            e(f"ds_read_b64 {vr(KV+2*i,2)}, v26 offset:{(14-2*w)*TS+224+8*i}")
        e("s_waitcnt lgkmcnt(0)")
        for i in range(14):
            unpk_lo(92, KV + i); unpk_hi(93, KV + i)
            e(f"v_fma_f32 v{O+2*i}, v92, v{LG+w}, v{O+2*i}")
            e(f"v_fma_f32 v{O+2*i+1}, v93, v{LG+w}, v{O+2*i+1}")
    for i in range(14):
        cvt_pk(KV + i, O + 2 * i, O + 2 * i + 1)
    e("s_movk_i32 s30, 896")
    e("v_mul_lo_u32 v27, v27, s30")
    e("v_mul_u32_u24 v92, 56, v25")
    e("v_add_u32 v27, v27, v92")
    e("s_mul_i32 s29, s26, 112")
    e("v_add_u32 v27, s29, v27")
    e(f"s_mov_b32 s36, {WS_OB}")
    for i in range(7):
        e(f"buffer_store_dwordx2 {vr(KV+2*i,2)}, v27, s[20:23], s36 offen offset:{8*i}")
    lab("K1_END")
    e("s_endpgm")

K2 = NAME + "_k2_kernel"
K3 = NAME + "_k3_kernel"
OS = 912
OT = 64 * OS
WOS = 160
OP_LDS = OT + 448 * WOS

def gen_outproj(name, isA):
    P = "K3" if isA else "K2"
    kernel_header(name)
    e(f"s_cmp_ge_u32 s2, {224 if isA else 256}")
    e(f"s_cbranch_scc1 {P}_END")
    e(f"s_load_dwordx2 s[4:5], s[0:1], {16 if isA else 40}")
    e("s_load_dwordx2 s[6:7], s[0:1], 48")
    e("s_load_dwordx2 s[8:9], s[0:1], 64")
    e("v_lshrrev_b32 v1, 6, v0")
    e("s_nop 0")
    e("v_readfirstlane_b32 s27, v1")
    e("s_waitcnt lgkmcnt(0)")
    srd(12, 4, 448 * 896)
    srd(16, 6, 2048 * 1792)
    srd(20, 8, WS_END)
    e("v_and_b32 v16, 15, v0")
    e("v_bfe_u32 v17, v0, 4, 2")
    if not isA:
        e("s_cmp_lt_u32 s2, 224")
        e("s_cbranch_scc1 K2_GEMM")
        e("s_sub_u32 s3, s2, 224")
        e("s_lshr_b32 s24, s3, 1")
        e("s_and_b32 s25, s3, 1")
        e("s_lshl_b32 s25, s25, 9")
        e(f"s_mov_b32 s35, {WS_KVP}")
        e(f"s_mov_b32 s36, {WS_ZP}")
        e(f"s_mov_b32 s37, {WS_KVZ}")
        for it in range(2):
            e(f"v_add_u32 v2, {256*it}, v0")
            e("v_add_u32 v2, s25, v2")
            e("v_lshrrev_b32 v3, 5, v2")
            e("v_and_b32 v4, 31, v2")
            e("s_lshl_b32 s26, s24, 12")
            e("v_lshlrev_b32 v5, 7, v4")
            e("v_lshl_add_u32 v5, v3, 2, v5")
            e("v_add_u32 v5, s26, v5")
            e("s_lshl_b32 s26, s24, 7")
            e("v_lshlrev_b32 v6, 2, v4")
            e("v_add_u32 v6, s26, v6")
            for rt in range(16):
                e(f"v_add_u32 v7, {65536*rt}, v5")
                e(f"buffer_load_dword v{24+rt}, v7, s[20:23], s35 offen")
                e(f"buffer_load_dword v{40+rt}, v6, s[20:23], s36 offen offset:{2048*rt}" if 2048*rt < 4096 else f"v_add_u32 v7, {2048*rt}, v6")
                if 2048*rt >= 4096:
                    e(f"buffer_load_dword v{40+rt}, v7, s[20:23], s36 offen")
            e("s_waitcnt vmcnt(0)")
            for rt in range(1, 16):
                e(f"v_add_f32 v24, v24, v{24+rt}")
                e(f"v_add_f32 v40, v40, v{40+rt}")
            e("v_cmp_eq_u32 vcc, 28, v3")
            e("s_nop 1")
            e("v_cndmask_b32 v24, v24, v40, vcc")
            e("v_mov_b32 v8, 0")
            e("v_cmp_lt_u32 vcc, 28, v3")
            e("s_nop 1")
            e("v_cndmask_b32 v24, v24, v8, vcc")
            e("v_cmp_lt_u32 vcc, 27, v4")
            e("s_nop 1")
            e("v_cndmask_b32 v24, v24, v8, vcc")
            e("s_nop 0")
            cvt_pk(24, 24, 24)
            e("s_lshl_b32 s26, s24, 11")
            e("v_lshlrev_b32 v7, 1, v2")
            e("v_add_u32 v7, s26, v7")
            e("buffer_store_short v24, v7, s[20:23], s37 offen")
        e(f"s_branch {P}_END")
        lab("K2_GEMM")
    e("s_mul_hi_u32 s24, s2, 0x24924925")
    e("s_mul_i32 s25, s24, 7")
    e("s_sub_u32 s25, s2, s25")
    e("s_lshl_b32 s28, s24, 6")
    e("v_lshrrev_b32 v8, 3, v0")
    e("v_and_b32 v9, 7, v0")
    e("s_movk_i32 s30, 896")
    e("v_mul_lo_u32 v2, v8, s30")
    e("v_lshl_add_u32 v2, v9, 4, v2")
    e("s_lshl_b32 s29, s25, 7")
    e("v_add_u32 v2, s29, v2")
    e(f"v_mul_u32_u24 v3, {WOS}, v8")
    e("v_lshl_add_u32 v3, v9, 4, v3")
    e(f"v_add_u32 v3, {OT}, v3")
    for j in range(14):
        e(f"v_add_u32 v4, {28672*j}, v2")
        e(f"buffer_load_dwordx4 {vr(24+4*j,4)}, v4, s[12:15], 0 offen")
    if not isA:
        e(f"s_mov_b32 s36, {WS_OB}")
        e("s_mov_b32 s31, 0x4924925")
        for j in range(14):
            e(f"v_add_u32 v4, {256*j}, v0")
            e("v_mul_hi_u32 v5, v4, s31")
            e("v_mul_u32_u24 v6, 56, v5")
            e("v_sub_u32 v6, v4, v6")
            e("v_add_u32 v7, s28, v5")
            e("v_mul_lo_u32 v7, v7, s30")
            e("v_lshl_add_u32 v7, v6, 4, v7")
            e(f"buffer_load_dwordx4 {vr(80+4*j,4)}, v7, s[20:23], s36 offen")
            e(f"v_mul_u32_u24 v5, {OS}, v5")
            e(f"v_lshl_add_u32 v{136+j}, v6, 4, v5")
        e("s_waitcnt vmcnt(0)")
        for j in range(14):
            e(f"ds_write_b128 v{136+j}, {vr(80+4*j,4)}")
    else:
        e(f"s_mov_b32 s36, {WS_PQA}")
        e(f"s_mov_b32 s37, {WS_KVZ}")
        e("s_mov_b32 s34, 0x358637bd")
        e("s_lshl_b32 s29, s27, 4")
        e("s_add_u32 s29, s29, s28")
        e("v_add_u32 v4, s29, v16")
        e("v_mul_lo_u32 v4, v4, s30")
        e("v_lshl_add_u32 v4, v17, 4, v4")
        e("v_lshlrev_b32 v5, 6, v16")
        e("v_lshl_add_u32 v5, v17, 4, v5")
        e("s_lshl_b32 s29, s27, 4")
        e("v_lshl_add_u32 v6, v17, 2, s29")
        e(f"v_mul_u32_u24 v6, {OS}, v6")
        e("v_lshl_add_u32 v6, v16, 1, v6")
        e("v_and_b32 v7, 48, v0")
        e("v_or_b32 v7, 12, v7")
        e("v_lshlrev_b32 v7, 2, v7")
        for h in range(16):
            e(f"buffer_load_dwordx4 {vr(80,4)}, v4, s[20:23], s36 offen offset:{56*h}")
            e(f"v_add_u32 v10, {2048*h}, v5")
            e(f"buffer_load_dwordx4 {vr(84,4)}, v10, s[20:23], s37 offen")
            e(f"buffer_load_dwordx4 {vr(88,4)}, v10, s[20:23], s37 offen offset:1024")
            e("s_waitcnt vmcnt(0)")
            e("v_mfma_f32_16x16x32_bf16 v[92:95], v[80:83], v[84:87], 0")
            e("v_mfma_f32_16x16x32_bf16 v[96:99], v[80:83], v[88:91], 0")
            e("s_nop 7")
            e("s_nop 7")
            for i in range(4):
                e(f"ds_bpermute_b32 v{100+i}, v7, v{96+i}")
            e("s_waitcnt lgkmcnt(0)")
            for pr in range(2):
                cvt_pk(104, 100 + 2 * pr, 101 + 2 * pr)
                unpk_lo(105, 104); unpk_hi(106, 104)
                e("v_add_f32 v105, s34, v105")
                e("v_add_f32 v106, s34, v106")
                cvt_pk(104, 105, 106)
                unpk_lo(105, 104); unpk_hi(106, 104)
                e("v_rcp_f32 v105, v105")
                e("v_rcp_f32 v106, v106")
                for nb in range(2):
                    a = 92 + 4 * nb + 2 * pr
                    cvt_pk(104, a, a + 1)
                    unpk_lo(107, 104); unpk_hi(108, 104)
                    e("v_mul_f32 v107, v107, v105")
                    e("v_mul_f32 v108, v108, v106")
                    cvt_pk(104, 107, 108)
                    e(f"ds_write_b16 v6, v104 offset:{(2*pr)*OS + 56*h + 32*nb}")
                    e(f"ds_write_b16_d16_hi v6, v104 offset:{(2*pr+1)*OS + 56*h + 32*nb}")
        e("s_waitcnt vmcnt(0)")
    e(f"v_add_u32 v10, {7*32*WOS}, v3")
    for j in range(14):
        e(f"ds_write_b128 v{3 if j < 7 else 10}, {vr(24+4*j,4)} offset:{32*WOS*(j%7)}")
    e("s_waitcnt lgkmcnt(0)")
    e("s_barrier")
    e("s_lshr_b32 s29, s27, 1")
    e("s_lshl_b32 s29, s29, 5")
    e("v_add_u32 v18, s29, v16")
    e(f"v_mul_u32_u24 v18, {OS}, v18")
    e("v_lshl_add_u32 v18, v17, 3, v18")
    e("v_lshrrev_b32 v20, 2, v16")
    e("v_lshl_add_u32 v20, v17, 2, v20")
    e(f"v_mul_u32_u24 v20, {WOS}, v20")
    e("v_and_b32 v21, 3, v16")
    e("v_lshl_add_u32 v20, v21, 3, v20")
    e("s_and_b32 s30, s27, 1")
    e("s_lshl_b32 s30, s30, 6")
    e(f"s_add_u32 s30, s30, {OT}")
    e("v_add_u32 v20, s30, v20")
    e(f"v_add_u32 v21, {224*WOS}, v20")
    for i in range(16):
        e(f"v_mov_b32 v{24+i}, 0")
    def rd(ks, base):
        for rb in range(2):
            for h in range(2):
                e(f"ds_read_b64 {vr(base+4*rb+2*h,2)}, v18 offset:{16*OS*rb+64*ks+32*h}")
        for cb in range(2):
            for h in range(2):
                e(f"ds_read_b64_tr_b16 {vr(base+8+4*cb+2*h,2)}, v{20 if ks < 7 else 21} offset:{(32*(ks%7)+16*h)*WOS+32*cb}")
    rd(0, 40)
    for ks in range(14):
        b = 40 + 16 * (ks & 1)
        if ks < 13:
            rd(ks + 1, 40 + 16 * ((ks + 1) & 1))
            e("s_waitcnt lgkmcnt(8)")
        else:
            e("s_waitcnt lgkmcnt(0)")
        for rb in range(2):
            for cb in range(2):
                a = 24 + 4 * (rb * 2 + cb)
                e(f"v_mfma_f32_16x16x32_bf16 {vr(a,4)}, {vr(b+4*rb,4)}, {vr(b+8+4*cb,4)}, {vr(a,4)}")
    e("s_nop 7")
    e("s_nop 7")
    e("s_lshr_b32 s29, s27, 1")
    e("s_lshl_b32 s29, s29, 5")
    e("s_add_u32 s29, s29, s28")
    e("v_lshl_add_u32 v2, v17, 2, s29")
    e("s_movk_i32 s30, 1792")
    e("v_mul_lo_u32 v2, v2, s30")
    e("v_lshl_add_u32 v2, v16, 1, v2")
    e("s_and_b32 s30, s27, 1")
    e("s_lshl_b32 s30, s30, 6")
    e("s_lshl_b32 s31, s25, 7")
    e("s_add_u32 s30, s30, s31")
    e(f"s_add_u32 s30, s30, {0 if isA else 896}")
    e("v_add_u32 v2, s30, v2")
    for rb in range(2):
        e(f"v_add_u32 v3, {16*1792*rb}, v2")
        for cb in range(2):
            a = 24 + 4 * (rb * 2 + cb)
            for pr in range(2):
                cvt_pk(4, a + 2 * pr, a + 2 * pr + 1)
                e(f"v_add_u32 v5, {1792*2*pr}, v3")
                e(f"buffer_store_short v4, v5, s[16:19], 0 offen offset:{32*cb}")
                e(f"buffer_store_short_d16_hi v4, v5, s[16:19], 0 offen offset:{32*cb+1792}")
    lab(f"{P}_END")
    e("s_endpgm")

def main():
    hdr = open(f"cdna_kernels/{NAME}.s.ref").read().split("\n")
    top = [l for l in hdr if l.startswith(";") and "@launch" not in l]
    top.append(f"; @launch kernel={K1} grid=(256,1,1) block=(256,1,1) lds={K1_LDS}")
    top.append(f"; @launch kernel={K2} grid=(256,1,1) block=(256,1,1) lds={OP_LDS}")
    top.append(f"; @launch kernel={K3} grid=(224,1,1) block=(256,1,1) lds={OP_LDS}")
    L.extend(top)
    L.append('.amdgcn_target "amdgcn-amd-amdhsa--gfx950"')
    L.append(".text")
    gen_k1()
    gen_outproj(K2, False)
    gen_outproj(K3, True)
    L.append('.section .rodata,"a"')
    L.append(kd(K1, 256 + 96, 256))
    L.append(kd(K2, 160, 160))
    L.append(kd(K3, 160, 160))
    open(OUT, "w").write("\n".join(L) + "\n")
main()
```

```python
import sys
NAME = "concat_heads__linear_attn_block__sliding_local_dilated__prompt"
OUT = f"cdna_kernels/{NAME}.s"

L = []
def e(s=""):
    L.append("    " + s if s and not s.endswith(":") else s)
def lab(s): L.append(s + ":")
def c(s): L.append("    ; " + s)

WS_PQA, WS_OB, WS_KVP, WS_ZP, WS_KVZ, WS_END = 0, 0x200000, 0x400000, 0x500000, 0x600000, 0x700000

def vr(a, n=1):
    return f"v{a}" if n == 1 else f"v[{a}:{a+n-1}]"
def ar(a, n=1):
    return f"a{a}" if n == 1 else f"a[{a}:{a+n-1}]"

def srd(dst, ptr_lo, nbytes):
    e(f"s_mov_b32 s{dst}, s{ptr_lo}")
    e(f"s_and_b32 s{dst+1}, s{ptr_lo+1}, 0xffff")
    e(f"s_mov_b32 s{dst+2}, {nbytes}")
    e(f"s_mov_b32 s{dst+3}, 0x00020000")

def kernel_header(name):
    L.append(".p2align 8")
    L.append(f".globl {name}")
    L.append(f".type {name},@function")
    lab(name)

def kd(name, nvgpr, accum, nsgpr=96):
    return f""".p2align 6
.amdhsa_kernel {name}
  .amdhsa_next_free_vgpr {nvgpr}
  .amdhsa_next_free_sgpr {nsgpr}
  .amdhsa_accum_offset {accum}
  .amdhsa_group_segment_fixed_size 0
  .amdhsa_kernarg_size 72
  .amdhsa_user_sgpr_count 2
  .amdhsa_user_sgpr_kernarg_segment_ptr 1
  .amdhsa_system_sgpr_workgroup_id_x 1
.end_amdhsa_kernel"""

def cvt_pk(dst, a, b): e(f"v_cvt_pk_bf16_f32 v{dst}, v{a}, v{b}")
def unpk_lo(dst, src): e(f"v_lshlrev_b32 v{dst}, 16, v{src}")
def unpk_hi(dst, src): e(f"v_and_b32 v{dst}, 0xffff0000, v{src}")

K1 = NAME + "_k1_kernel"
XS = 144
XBUF = 144 * XS
WSr = 352
WBUF = 64 * WSr
BUF = XBUF + WBUF
K1_LDS = 2 * BUF
TS = 352

def gen_k1():
    kernel_header(K1)
    e("s_cmp_ge_u32 s2, 256")
    e("s_cbranch_scc1 K1_END")
    e("s_lshr_b32 s24, s2, 7")
    e("s_lshr_b32 s25, s2, 3")
    e("s_and_b32 s25, s25, 15")
    e("s_and_b32 s26, s2, 7")
    e("s_mul_i32 s29, s24, 24")
    e("s_add_u32 s30, s0, s29")
    e("s_addc_u32 s31, s1, 0")
    e("s_load_dwordx4 s[4:7], s[30:31], 0")
    e("s_load_dwordx2 s[8:9], s[0:1], 64")
    e("v_lshrrev_b32 v1, 6, v0")
    e("s_nop 0")
    e("v_readfirstlane_b32 s27, v1")
    e("s_lshl_b32 s28, s25, 7")
    e("s_waitcnt lgkmcnt(0)")
    srd(12, 4, 1835008)
    srd(16, 6, 448 * 2688)
    srd(20, 8, WS_END)
    e("v_lshrrev_b32 v8, 3, v0")
    e("v_and_b32 v9, 7, v0")
    e("s_sub_u32 s29, s28, 16")
    e("v_add_u32 v10, s29, v8")
    e("s_movk_i32 s30, 896")
    e("v_mul_lo_u32 v2, v10, s30")
    e("v_lshl_add_u32 v2, v9, 4, v2")
    for j in range(1, 5):
        e(f"v_add_u32 v{2+j}, {28672*j}, v2")
    e("v_mul_u32_u24 v7, 144, v8")
    e("v_lshl_add_u32 v7, v9, 4, v7")
    e("s_mul_i32 s29, s26, 112")
    e("s_movk_i32 s30, 2688")
    e("v_mul_lo_u32 v11, v8, s30")
    e("v_lshl_add_u32 v11, v9, 4, v11")
    e("v_add_u32 v11, s29, v11")
    e("v_cmp_eq_u32 vcc, 7, v9")
    e("v_mov_b32 v12, 0x7fff0000")
    e("s_nop 1")
    e("v_cndmask_b32 v11, v11, v12, vcc")
    e(f"v_add_u32 v12, {32*2688}, v11")
    e("v_mul_u32_u24 v13, 352, v8")
    e("v_lshl_add_u32 v14, v9, 4, v13")
    e("v_add_u32 v13, 336, v13")
    e("s_nop 0")
    e("v_cndmask_b32 v13, v14, v13, vcc")
    e("v_mov_b32 v14, 0")
    e("v_mov_b32 v15, 112")
    e("v_cndmask_b32 v14, v15, v14, vcc")
    e("v_add_u32 v15, v13, v14")
    e("v_add_u32 v14, v15, v14")
    for r_ in (13, 14, 15):
        e(f"v_add_u32 v{r_}, {XBUF}, v{r_}")
    e("v_and_b32 v16, 15, v0")
    e("v_bfe_u32 v17, v0, 4, 2")
    e("s_lshl_b32 s29, s27, 5")
    e("s_add_u32 s29, s29, 16")
    e("v_add_u32 v18, s29, v16")
    e("v_mul_u32_u24 v18, 144, v18")
    e("v_lshl_add_u32 v18, v17, 3, v18")
    e("v_mul_u32_u24 v19, 144, v16")
    e("v_lshl_add_u32 v19, v17, 3, v19")
    e("v_lshrrev_b32 v20, 2, v16")
    e("v_lshl_add_u32 v20, v17, 2, v20")
    e("v_mul_u32_u24 v20, 352, v20")
    e("v_and_b32 v21, 3, v16")
    e("v_lshl_add_u32 v20, v21, 3, v20")
    e(f"v_add_u32 v20, {XBUF}, v20")
    NACC = 96
    for i in range(NACC):
        e(f"v_accvgpr_write_b32 a{i}, 0")
    F = [68, 128]
    e("s_cmp_lt_u32 s27, 2")
    e("s_cbranch_scc1 K1_V6OK")
    e("v_mov_b32 v6, 0x7fff0000")
    lab("K1_V6OK")
    def gload(cn):
        SX = 96 + 44 * (cn % 3); SW = SX + 20
        for j in range(5):
            e(f"buffer_load_dwordx4 {ar(SX+4*j,4)}, v{2+j}, s[12:15], 0 offen offset:{128*cn}")
        e(f"s_mov_b32 s32, {64*2688*cn}")
        for half in range(2):
            for p in range(3):
                e(f"buffer_load_dwordx4 {ar(SW+4*(half*3+p),4)}, v{11+half}, s[16:19], s32 offen offset:{896*p}")
    def lwrite(cn):
        SX = 96 + 44 * (cn % 3); SW = SX + 20
        b = (cn & 1) * BUF
        for j in range(4):
            e(f"ds_write_b128 v7, {ar(SX+4*j,4)} offset:{b+32*XS*j}")
        e("s_cmp_ge_u32 s27, 2")
        e(f"s_cbranch_scc1 K1_SKW{cn}")
        e(f"ds_write_b128 v7, {ar(SX+16,4)} offset:{b+32*XS*4}")
        lab(f"K1_SKW{cn}")
        for half in range(2):
            for p, va in enumerate((13, 15, 14)):
                e(f"ds_write_b128 v{va}, {ar(SW+4*(half*3+p),4)} offset:{b+32*WSr*half}")
    def freads(cn, ks, f):
        b = (cn & 1) * BUF
        base = F[f]
        n = 0
        for rb in range(2):
            for h in range(2):
                e(f"ds_read_b64 {vr(base+4*rb+2*h,2)}, v18 offset:{b+16*XS*rb+64*ks+32*h}")
                n += 1
        for h in range(2):
            e(f"ds_read_b64 {vr(base+8+2*h,2)}, v19 offset:{b+64*ks+32*h}")
            n += 1
        for cb in range(11):
            for h in range(2):
                e(f"ds_read_b64_tr_b16 {vr(base+12+4*cb+2*h,2)}, v20 offset:{b+(32*ks+16*h)*WSr+32*cb}")
                n += 1
        return n
    def mfmas(f, outstanding_after):
        base = F[f]
        tot = 28
        for cb in range(11):
            done = 6 + 2 * (cb + 1)
            cnt = tot - done + outstanding_after
            e(f"s_waitcnt lgkmcnt({min(cnt,15)})")
            for rb in range(2):
                a = (rb * 11 + cb) * 4
                e(f"v_mfma_f32_16x16x32_bf16 {ar(a,4)}, {vr(base+4*rb,4)}, {vr(base+12+4*cb,4)}, {ar(a,4)}")
        e("s_cmp_eq_u32 s24, 0")
        lbl = f"K1_NH{len(L)}"
        e(f"s_cbranch_scc1 {lbl}")
        for w in range(4):
            lw = f"K1_HW{len(L)}"
            e(f"s_cmp_lg_u32 s27, {w}")
            e(f"s_cbranch_scc1 {lw}")
            for q in range(2):
                cb = 3 + 2 * w + q
                e(f"v_mfma_f32_16x16x32_bf16 {ar(88+4*q,4)}, {vr(base+8,4)}, {vr(base+12+4*cb,4)}, {ar(88+4*q,4)}")
            lab(lw)
        lab(lbl)
    gload(0); gload(1); gload(2)
    e("s_waitcnt vmcnt(22)")
    lwrite(0)
    e("s_waitcnt lgkmcnt(0)")
    e("s_barrier")
    gload(3)
    for cn in range(7):
        freads(cn, 0, 0)
        freads(cn, 1, 1)
        mfmas(0, 28)
        mfmas(1, 0)
        if cn < 6:
            e(f"s_waitcnt vmcnt({11*(min(6,cn+3)-(cn+1))})")
            lwrite(cn + 1)
        e("s_waitcnt lgkmcnt(0)")
        e("s_barrier")
        if cn + 4 <= 6:
            gload(cn + 4)
    e("s_nop 7")
    e("s_nop 7")
    e("s_lshl_b32 s29, s27, 5")
    e("s_add_u32 s29, s29, 16")
    e("v_lshl_add_u32 v22, v17, 2, s29")
    e(f"v_mul_u32_u24 v22, {TS}, v22")
    e("v_lshl_add_u32 v22, v16, 1, v22")
    e("v_lshlrev_b32 v23, 2, v17")
    e(f"v_mul_u32_u24 v23, {TS}, v23")
    e("v_lshl_add_u32 v23, v16, 1, v23")
    e("s_mov_b32 s33, 0x3fb8aa3b")
    e("s_mov_b32 s34, 0x358637bd")
    def store_block(a, vaddr, off, phi):
        for pr in range(2):
            e(f"v_accvgpr_read_b32 v24, a{a+2*pr}")
            e(f"v_accvgpr_read_b32 v25, a{a+2*pr+1}")
            e("s_nop 0")
            cvt_pk(26, 24, 25)
            if phi:
                for src, dst, fn in ((26, 24, unpk_lo), (26, 25, unpk_hi)):
                    fn(dst, src)
                for t in (24, 25):
                    e(f"v_mul_f32 v27, s33, v{t}")
                    e("v_exp_f32 v27, v27")
                    e(f"v_add_f32 v28, 1.0, v{t}")
                    e(f"v_cmp_lt_f32 vcc, 0, v{t}")
                    e("s_nop 1")
                    e(f"v_cndmask_b32 v{t}, v27, v28, vcc")
                cvt_pk(26, 24, 25)
                unpk_lo(24, 26); unpk_hi(25, 26)
                e("v_add_f32 v24, s34, v24")
                e("v_add_f32 v25, s34, v25")
                cvt_pk(26, 24, 25)
            e(f"ds_write_b16 v{vaddr}, v26 offset:{off+(2*pr)*TS}")
            e(f"ds_write_b16_d16_hi v{vaddr}, v26 offset:{off+(2*pr+1)*TS}")
    e("s_cmp_eq_u32 s24, 0")
    e("s_cbranch_scc0 K1_EPB")
    for rb in range(2):
        for cb in range(11):
            store_block((rb * 11 + cb) * 4, 22, 16 * TS * rb + 32 * cb, cb < 7)
    e("s_branch K1_EPD")
    lab("K1_EPB")
    for rb in range(2):
        for cb in range(11):
            store_block((rb * 11 + cb) * 4, 22, 16 * TS * rb + 32 * cb, False)
    e("s_lshl_b32 s29, s27, 6")
    e("v_add_u32 v23, s29, v23")
    for q in range(2):
        store_block(88 + 4 * q, 23, 32 * (3 + q), False)
    lab("K1_EPD")
    e("s_waitcnt lgkmcnt(0)")
    e("s_barrier")
    e("s_cmp_eq_u32 s24, 0")
    e("s_cbranch_scc0 K1_ATTB")
    for j in range(4):
        e(f"v_add_u32 v24, {16+32*j}, v8")
        e(f"v_mul_u32_u24 v24, {TS}, v24")
        e("v_lshl_add_u32 v24, v9, 4, v24")
        e(f"ds_read_b128 {vr(28+4*j,4)}, v24")
    e("s_add_u32 s29, s28, 0")
    e("v_add_u32 v24, s29, v8")
    e("s_movk_i32 s30, 896")
    e("v_mul_lo_u32 v24, v24, s30")
    e("v_lshl_add_u32 v24, v9, 4, v24")
    e("s_mul_i32 s29, s26, 112")
    e("v_add_u32 v24, s29, v24")
    e("v_cmp_eq_u32 vcc, 7, v9")
    e("v_mov_b32 v25, 0x7fff0000")
    e("s_nop 1")
    e("v_cndmask_b32 v24, v24, v25, vcc")
    e("s_waitcnt lgkmcnt(0)")
    for j in range(4):
        e(f"v_add_u32 v25, {28672*j}, v24")
        e(f"buffer_store_dwordx4 {vr(28+4*j,4)}, v25, s[20:23], 0 offen offset:{WS_PQA}")
    e("v_lshrrev_b32 v24, 2, v16")
    e("v_lshl_add_u32 v24, v17, 2, v24")
    e("v_add_u32 v24, 16, v24")
    e(f"v_mul_u32_u24 v24, {TS}, v24")
    e("v_and_b32 v25, 3, v16")
    e("v_lshl_add_u32 v24, v25, 3, v24")
    e("s_lshr_b32 s29, s27, 1")
    e("s_and_b32 s30, s27, 1")
    e("s_mul_i32 s31, s29, 56")
    e("s_lshl_b32 s32, s30, 5")
    e("s_add_u32 s32, s32, s31")
    e("s_add_u32 s32, s32, 112")
    e("s_add_u32 s31, s31, 224")
    e("v_add_u32 v25, s32, v24")
    e("v_add_u32 v26, s31, v24")
    for i in range(12):
        e(f"v_accvgpr_write_b32 a{i}, 0")
    e("v_mov_b32 v44, 0x3f803f80")
    e("v_mov_b32 v45, 0x3f803f80")
    e("v_mov_b32 v46, 0x3f803f80")
    e("v_mov_b32 v47, 0x3f803f80")
    for ks in range(4):
        for h in range(2):
            e(f"ds_read_b64_tr_b16 {vr(28+2*h,2)}, v25 offset:{(32*ks+16*h)*TS}")
        for nb in range(2):
            for h in range(2):
                e(f"ds_read_b64_tr_b16 {vr(32+4*nb+2*h,2)}, v26 offset:{(32*ks+16*h)*TS+32*nb}")
        e("s_waitcnt lgkmcnt(0)")
        e(f"v_mfma_f32_16x16x32_bf16 a[0:3], v[28:31], v[32:35], a[0:3]")
        e(f"v_mfma_f32_16x16x32_bf16 a[4:7], v[28:31], v[36:39], a[4:7]")
        e(f"v_mfma_f32_16x16x32_bf16 a[8:11], v[28:31], v[44:47], a[8:11]")
    e("s_nop 7")
    e("s_nop 7")
    e("s_lshl_b32 s31, s26, 1")
    e("s_add_u32 s31, s31, s29")
    e("s_lshl_b32 s32, s25, 4")
    e("s_add_u32 s31, s31, s32")
    e("s_lshl_b32 s32, s31, 12")
    e("s_lshl_b32 s33, s31, 7")
    e("s_lshl_b32 s34, s30, 4")
    e("v_lshl_add_u32 v24, v17, 2, s34")
    e("v_lshlrev_b32 v25, 7, v24")
    e("v_lshl_add_u32 v25, v16, 2, v25")
    e("v_add_u32 v25, s32, v25")
    e("v_lshlrev_b32 v26, 2, v24")
    e("v_add_u32 v26, s33, v26")
    e(f"s_mov_b32 s35, {WS_KVP}")
    e(f"s_mov_b32 s36, {WS_ZP}")
    for nb in range(2):
        for i in range(4):
            e(f"v_accvgpr_read_b32 v27, a{4*nb+i}")
            e("s_nop 0")
            e(f"buffer_store_dword v27, v25, s[20:23], s35 offen offset:{128*i + 64*nb}")
    for i in range(4):
        e(f"v_accvgpr_read_b32 v27, a{8+i}")
        e("s_nop 0")
        e(f"buffer_store_dword v27, v26, s[20:23], s36 offen offset:{4*i}")
    e("s_branch K1_END")
    lab("K1_ATTB")
    e("v_lshrrev_b32 v24, 1, v0")
    e("v_and_b32 v25, 1, v0")
    e("v_add_u32 v26, 2, v24")
    e(f"v_mul_u32_u24 v26, {TS}, v26")
    e("v_mul_u32_u24 v27, 56, v25")
    e("v_add_u32 v26, v26, v27")
    Q, KV, LG, O = 28, 42, 56, 64
    for i in range(7):
        e(f"ds_read_b64 {vr(Q+2*i,2)}, v26 offset:{14*TS+8*i}")
    e("v_add_u32 v27, s28, v24")
    e("s_mov_b32 s33, 0x3e4184d8")
    e("s_mov_b32 s34, 0xce6e6b28")
    e("s_mov_b32 s35, 0x3fb8aa3b")
    for w in range(8):
        for i in range(7):
            e(f"ds_read_b64 {vr(KV+2*i,2)}, v26 offset:{(14-2*w)*TS+112+8*i}")
        e("s_waitcnt lgkmcnt(0)")
        e(f"v_mov_b32 v{LG+w}, 0")
        for i in range(14):
            e(f"v_dot2_f32_bf16 v{LG+w}, v{Q+i}, v{KV+i}, v{LG+w}")
    for w in range(0, 8, 2):
        cvt_pk(92, LG + w, LG + w + 1)
        unpk_lo(LG + w, 92); unpk_hi(LG + w + 1, 92)
        e(f"v_mul_f32 v{LG+w}, s33, v{LG+w}")
        e(f"v_mul_f32 v{LG+w+1}, s33, v{LG+w+1}")
        cvt_pk(92, LG + w, LG + w + 1)
        unpk_lo(LG + w, 92); unpk_hi(LG + w + 1, 92)
    e("v_mov_b32 v93, s34")
    for w in range(1, 8):
        e(f"v_cmp_gt_u32 vcc, {2*w}, v27")
        e("s_nop 1")
        e(f"v_cndmask_b32 v{LG+w}, v{LG+w}, v93, vcc")
    e(f"v_max3_f32 v92, v{LG}, v{LG+1}, v{LG+2}")
    e(f"v_max3_f32 v92, v92, v{LG+3}, v{LG+4}")
    e(f"v_max3_f32 v92, v92, v{LG+5}, v{LG+6}")
    e(f"v_max_f32 v92, v92, v{LG+7}")
    e("v_mov_b32 v93, 0")
    for w in range(8):
        e(f"v_sub_f32 v{LG+w}, v{LG+w}, v92")
        e(f"v_mul_f32 v{LG+w}, s35, v{LG+w}")
        e(f"v_exp_f32 v{LG+w}, v{LG+w}")
        e("s_nop 0")
        e(f"v_add_f32 v93, v93, v{LG+w}")
    e("v_rcp_f32 v93, v93")
    e("s_nop 0")
    for w in range(8):
        e(f"v_mul_f32 v{LG+w}, v93, v{LG+w}")
    for w in range(0, 8, 2):
        cvt_pk(92, LG + w, LG + w + 1)
        unpk_lo(LG + w, 92); unpk_hi(LG + w + 1, 92)
    for i in range(28):
        e(f"v_mov_b32 v{O+i}, 0")
    for w in range(8):
        for i in range(7):
            e(f"ds_read_b64 {vr(KV+2*i,2)}, v26 offset:{(14-2*w)*TS+224+8*i}")
        e("s_waitcnt lgkmcnt(0)")
        for i in range(14):
            unpk_lo(92, KV + i); unpk_hi(93, KV + i)
            e(f"v_fma_f32 v{O+2*i}, v92, v{LG+w}, v{O+2*i}")
            e(f"v_fma_f32 v{O+2*i+1}, v93, v{LG+w}, v{O+2*i+1}")
    for i in range(14):
        cvt_pk(KV + i, O + 2 * i, O + 2 * i + 1)
    e("s_movk_i32 s30, 896")
    e("v_mul_lo_u32 v27, v27, s30")
    e("v_mul_u32_u24 v92, 56, v25")
    e("v_add_u32 v27, v27, v92")
    e("s_mul_i32 s29, s26, 112")
    e("v_add_u32 v27, s29, v27")
    e(f"s_mov_b32 s36, {WS_OB}")
    for i in range(7):
        e(f"buffer_store_dwordx2 {vr(KV+2*i,2)}, v27, s[20:23], s36 offen offset:{8*i}")
    lab("K1_END")
    e("s_endpgm")

K2 = NAME + "_k2_kernel"
K3 = NAME + "_k3_kernel"
OS = 912
OT = 64 * OS
WOS = 160
OP_LDS = OT + 448 * WOS

def gen_outproj(name, isA):
    P = "K3" if isA else "K2"
    kernel_header(name)
    e(f"s_cmp_ge_u32 s2, {224 if isA else 256}")
    e(f"s_cbranch_scc1 {P}_END")
    e(f"s_load_dwordx2 s[4:5], s[0:1], {16 if isA else 40}")
    e("s_load_dwordx2 s[6:7], s[0:1], 48")
    e("s_load_dwordx2 s[8:9], s[0:1], 64")
    e("v_lshrrev_b32 v1, 6, v0")
    e("s_nop 0")
    e("v_readfirstlane_b32 s27, v1")
    e("s_waitcnt lgkmcnt(0)")
    srd(12, 4, 448 * 896)
    srd(16, 6, 2048 * 1792)
    srd(20, 8, WS_END)
    e("v_and_b32 v16, 15, v0")
    e("v_bfe_u32 v17, v0, 4, 2")
    if not isA:
        e("s_cmp_lt_u32 s2, 224")
        e("s_cbranch_scc1 K2_GEMM")
        e("s_sub_u32 s3, s2, 224")
        e("s_lshr_b32 s24, s3, 1")
        e("s_and_b32 s25, s3, 1")
        e("s_lshl_b32 s25, s25, 9")
        e(f"s_mov_b32 s35, {WS_KVP}")
        e(f"s_mov_b32 s36, {WS_ZP}")
        e(f"s_mov_b32 s37, {WS_KVZ}")
        for it in range(2):
            e(f"v_add_u32 v2, {256*it}, v0")
            e("v_add_u32 v2, s25, v2")
            e("v_lshrrev_b32 v3, 5, v2")
            e("v_and_b32 v4, 31, v2")
            e("s_lshl_b32 s26, s24, 12")
            e("v_lshlrev_b32 v5, 7, v4")
            e("v_lshl_add_u32 v5, v3, 2, v5")
            e("v_add_u32 v5, s26, v5")
            e("s_lshl_b32 s26, s24, 7")
            e("v_lshlrev_b32 v6, 2, v4")
            e("v_add_u32 v6, s26, v6")
            for rt in range(16):
                e(f"v_add_u32 v7, {65536*rt}, v5")
                e(f"buffer_load_dword v{24+rt}, v7, s[20:23], s35 offen")
                e(f"buffer_load_dword v{40+rt}, v6, s[20:23], s36 offen offset:{2048*rt}" if 2048*rt < 4096 else f"v_add_u32 v7, {2048*rt}, v6")
                if 2048*rt >= 4096:
                    e(f"buffer_load_dword v{40+rt}, v7, s[20:23], s36 offen")
            e("s_waitcnt vmcnt(0)")
            for rt in range(1, 16):
                e(f"v_add_f32 v24, v24, v{24+rt}")
                e(f"v_add_f32 v40, v40, v{40+rt}")
            e("v_cmp_eq_u32 vcc, 28, v3")
            e("s_nop 1")
            e("v_cndmask_b32 v24, v24, v40, vcc")
            e("v_mov_b32 v8, 0")
            e("v_cmp_lt_u32 vcc, 28, v3")
            e("s_nop 1")
            e("v_cndmask_b32 v24, v24, v8, vcc")
            e("v_cmp_lt_u32 vcc, 27, v4")
            e("s_nop 1")
            e("v_cndmask_b32 v24, v24, v8, vcc")
            e("s_nop 0")
            cvt_pk(24, 24, 24)
            e("s_lshl_b32 s26, s24, 11")
            e("v_lshlrev_b32 v7, 1, v2")
            e("v_add_u32 v7, s26, v7")
            e("buffer_store_short v24, v7, s[20:23], s37 offen")
        e(f"s_branch {P}_END")
        lab("K2_GEMM")
    e("s_mul_hi_u32 s24, s2, 0x24924925")
    e("s_mul_i32 s25, s24, 7")
    e("s_sub_u32 s25, s2, s25")
    e("s_lshl_b32 s28, s24, 6")
    e("v_lshrrev_b32 v8, 3, v0")
    e("v_and_b32 v9, 7, v0")
    e("s_movk_i32 s30, 896")
    e("v_mul_lo_u32 v2, v8, s30")
    e("v_lshl_add_u32 v2, v9, 4, v2")
    e("s_lshl_b32 s29, s25, 7")
    e("v_add_u32 v2, s29, v2")
    e(f"v_mul_u32_u24 v3, {WOS}, v8")
    e("v_lshl_add_u32 v3, v9, 4, v3")
    e(f"v_add_u32 v3, {OT}, v3")
    for j in range(14):
        e(f"v_add_u32 v4, {28672*j}, v2")
        e(f"buffer_load_dwordx4 {vr(24+4*j,4)}, v4, s[12:15], 0 offen")
    if not isA:
        e(f"s_mov_b32 s36, {WS_OB}")
        e("s_mov_b32 s31, 0x4924925")
        for j in range(14):
            e(f"v_add_u32 v4, {256*j}, v0")
            e("v_mul_hi_u32 v5, v4, s31")
            e("v_mul_u32_u24 v6, 56, v5")
            e("v_sub_u32 v6, v4, v6")
            e("v_add_u32 v7, s28, v5")
            e("v_mul_lo_u32 v7, v7, s30")
            e("v_lshl_add_u32 v7, v6, 4, v7")
            e(f"buffer_load_dwordx4 {vr(80+4*j,4)}, v7, s[20:23], s36 offen")
            e(f"v_mul_u32_u24 v5, {OS}, v5")
            e(f"v_lshl_add_u32 v{136+j}, v6, 4, v5")
        e("s_waitcnt vmcnt(0)")
        for j in range(14):
            e(f"ds_write_b128 v{136+j}, {vr(80+4*j,4)}")
    else:
        e(f"s_mov_b32 s36, {WS_PQA}")
        e(f"s_mov_b32 s37, {WS_KVZ}")
        e("s_mov_b32 s34, 0x358637bd")
        e("s_lshl_b32 s29, s27, 4")
        e("s_add_u32 s29, s29, s28")
        e("v_add_u32 v4, s29, v16")
        e("v_mul_lo_u32 v4, v4, s30")
        e("v_lshl_add_u32 v4, v17, 4, v4")
        e("v_lshlrev_b32 v5, 6, v16")
        e("v_lshl_add_u32 v5, v17, 4, v5")
        e("s_lshl_b32 s29, s27, 4")
        e("v_lshl_add_u32 v6, v17, 2, s29")
        e(f"v_mul_u32_u24 v6, {OS}, v6")
        e("v_lshl_add_u32 v6, v16, 1, v6")
        e("v_and_b32 v7, 48, v0")
        e("v_or_b32 v7, 12, v7")
        e("v_lshlrev_b32 v7, 2, v7")
        for h in range(16):
            e(f"buffer_load_dwordx4 {vr(80+4*h,4)}, v4, s[20:23], s36 offen offset:{56*h}")
            e(f"v_add_u32 v10, {2048*h}, v5")
            e(f"buffer_load_dwordx4 {ar(8*h,4)}, v10, s[20:23], s37 offen")
            e(f"buffer_load_dwordx4 {ar(8*h+4,4)}, v10, s[20:23], s37 offen offset:1024")
        for hb in range(2):
            for hh in range(8):
                h = 8 * hb + hh
                e(f"s_waitcnt vmcnt({3*(15-h)})")
                e(f"v_mfma_f32_16x16x32_bf16 {vr(144+8*hh,4)}, {vr(80+4*h,4)}, {ar(8*h,4)}, 0")
                e(f"v_mfma_f32_16x16x32_bf16 {vr(148+8*hh,4)}, {vr(80+4*h,4)}, {ar(8*h+4,4)}, 0")
            e("s_nop 7")
            e("s_nop 7")
            for hh in range(8):
                for i in range(4):
                    e(f"ds_bpermute_b32 v{208+4*hh+i}, v7, v{148+8*hh+i}")
            e("s_waitcnt lgkmcnt(0)")
            for hh in range(8):
                h = 8 * hb + hh
                for pr in range(2):
                    cvt_pk(11, 208 + 4 * hh + 2 * pr, 209 + 4 * hh + 2 * pr)
                    unpk_lo(12, 11); unpk_hi(13, 11)
                    e("v_add_f32 v12, s34, v12")
                    e("v_add_f32 v13, s34, v13")
                    cvt_pk(11, 12, 13)
                    unpk_lo(12, 11); unpk_hi(13, 11)
                    e("v_rcp_f32 v12, v12")
                    e("v_rcp_f32 v13, v13")
                    for nb in range(2):
                        a_ = 144 + 8 * hh + 4 * nb + 2 * pr
                        cvt_pk(11, a_, a_ + 1)
                        unpk_lo(14, 11); unpk_hi(15, 11)
                        e("v_mul_f32 v14, v14, v12")
                        e("v_mul_f32 v15, v15, v13")
                        cvt_pk(11, 14, 15)
                        e(f"ds_write_b16 v6, v11 offset:{(2*pr)*OS + 56*h + 32*nb}")
                        e(f"ds_write_b16_d16_hi v6, v11 offset:{(2*pr+1)*OS + 56*h + 32*nb}")
        e("s_waitcnt vmcnt(0)")
    e(f"v_add_u32 v10, {7*32*WOS}, v3")
    for j in range(14):
        e(f"ds_write_b128 v{3 if j < 7 else 10}, {vr(24+4*j,4)} offset:{32*WOS*(j%7)}")
    e("s_waitcnt lgkmcnt(0)")
    e("s_barrier")
    e("s_lshr_b32 s29, s27, 1")
    e("s_lshl_b32 s29, s29, 5")
    e("v_add_u32 v18, s29, v16")
    e(f"v_mul_u32_u24 v18, {OS}, v18")
    e("v_lshl_add_u32 v18, v17, 3, v18")
    e("v_lshrrev_b32 v20, 2, v16")
    e("v_lshl_add_u32 v20, v17, 2, v20")
    e(f"v_mul_u32_u24 v20, {WOS}, v20")
    e("v_and_b32 v21, 3, v16")
    e("v_lshl_add_u32 v20, v21, 3, v20")
    e("s_and_b32 s30, s27, 1")
    e("s_lshl_b32 s30, s30, 6")
    e(f"s_add_u32 s30, s30, {OT}")
    e("v_add_u32 v20, s30, v20")
    e(f"v_add_u32 v21, {224*WOS}, v20")
    for i in range(16):
        e(f"v_mov_b32 v{24+i}, 0")
    def rd(ks, base):
        for rb in range(2):
            for h in range(2):
                e(f"ds_read_b64 {vr(base+4*rb+2*h,2)}, v18 offset:{16*OS*rb+64*ks+32*h}")
        for cb in range(2):
            for h in range(2):
                e(f"ds_read_b64_tr_b16 {vr(base+8+4*cb+2*h,2)}, v{20 if ks < 7 else 21} offset:{(32*(ks%7)+16*h)*WOS+32*cb}")
    rd(0, 40)
    for ks in range(14):
        b = 40 + 16 * (ks & 1)
        if ks < 13:
            rd(ks + 1, 40 + 16 * ((ks + 1) & 1))
            e("s_waitcnt lgkmcnt(8)")
        else:
            e("s_waitcnt lgkmcnt(0)")
        for rb in range(2):
            for cb in range(2):
                a = 24 + 4 * (rb * 2 + cb)
                e(f"v_mfma_f32_16x16x32_bf16 {vr(a,4)}, {vr(b+4*rb,4)}, {vr(b+8+4*cb,4)}, {vr(a,4)}")
    e("s_nop 7")
    e("s_nop 7")
    e("s_lshr_b32 s29, s27, 1")
    e("s_lshl_b32 s29, s29, 5")
    e("s_add_u32 s29, s29, s28")
    e("v_lshl_add_u32 v2, v17, 2, s29")
    e("s_movk_i32 s30, 1792")
    e("v_mul_lo_u32 v2, v2, s30")
    e("v_lshl_add_u32 v2, v16, 1, v2")
    e("s_and_b32 s30, s27, 1")
    e("s_lshl_b32 s30, s30, 6")
    e("s_lshl_b32 s31, s25, 7")
    e("s_add_u32 s30, s30, s31")
    e(f"s_add_u32 s30, s30, {0 if isA else 896}")
    e("v_add_u32 v2, s30, v2")
    for rb in range(2):
        e(f"v_add_u32 v3, {16*1792*rb}, v2")
        for cb in range(2):
            a = 24 + 4 * (rb * 2 + cb)
            for pr in range(2):
                cvt_pk(4, a + 2 * pr, a + 2 * pr + 1)
                e(f"v_add_u32 v5, {1792*2*pr}, v3")
                e(f"buffer_store_short v4, v5, s[16:19], 0 offen offset:{32*cb}")
                e(f"buffer_store_short_d16_hi v4, v5, s[16:19], 0 offen offset:{32*cb+1792}")
    lab(f"{P}_END")
    e("s_endpgm")

def main():
    hdr = open(f"cdna_kernels/{NAME}.s.ref").read().split("\n")
    top = [l for l in hdr if l.startswith(";") and "@launch" not in l]
    top.append(f"; @launch kernel={K1} grid=(256,1,1) block=(256,1,1) lds={K1_LDS}")
    top.append(f"; @launch kernel={K2} grid=(256,1,1) block=(256,1,1) lds={OP_LDS}")
    top.append(f"; @launch kernel={K3} grid=(224,1,1) block=(256,1,1) lds={OP_LDS}")
    L.extend(top)
    L.append('.amdgcn_target "amdgcn-amd-amdhsa--gfx950"')
    L.append(".text")
    gen_k1()
    gen_outproj(K2, False)
    gen_outproj(K3, True)
    L.append('.section .rodata,"a"')
    L.append(kd(K1, 256 + 96 + 132, 256))
    L.append(kd(K2, 160, 160))
    L.append(kd(K3, 240 + 128, 240))
    open(OUT, "w").write("\n".join(L) + "\n")
main()
```

```python
import sys, os
VAR = os.environ.get("VAR", "")
NAME = "concat_heads__linear_attn_block__sliding_local_dilated__prompt"
OUT = os.environ.get("OUT", f"cdna_kernels/{NAME}.s")

L = []
def e(s=""):
    L.append("    " + s if s and not s.endswith(":") else s)
def lab(s): L.append(s + ":")
def c(s): L.append("    ; " + s)

WS_PQA, WS_OB, WS_KVP, WS_ZP, WS_KVZ, WS_END = 0, 0x200000, 0x400000, 0x500000, 0x600000, 0x700000

def vr(a, n=1):
    return f"v{a}" if n == 1 else f"v[{a}:{a+n-1}]"
def ar(a, n=1):
    return f"a{a}" if n == 1 else f"a[{a}:{a+n-1}]"

def srd(dst, ptr_lo, nbytes):
    e(f"s_mov_b32 s{dst}, s{ptr_lo}")
    e(f"s_and_b32 s{dst+1}, s{ptr_lo+1}, 0xffff")
    e(f"s_mov_b32 s{dst+2}, {nbytes}")
    e(f"s_mov_b32 s{dst+3}, 0x00020000")

def kernel_header(name):
    L.append(".p2align 8")
    L.append(f".globl {name}")
    L.append(f".type {name},@function")
    lab(name)

def kd(name, nvgpr, accum, nsgpr=96):
    return f""".p2align 6
.amdhsa_kernel {name}
  .amdhsa_next_free_vgpr {nvgpr}
  .amdhsa_next_free_sgpr {nsgpr}
  .amdhsa_accum_offset {accum}
  .amdhsa_group_segment_fixed_size 0
  .amdhsa_kernarg_size 72
  .amdhsa_user_sgpr_count 2
  .amdhsa_user_sgpr_kernarg_segment_ptr 1
  .amdhsa_system_sgpr_workgroup_id_x 1
.end_amdhsa_kernel"""

def cvt_pk(dst, a, b): e(f"v_cvt_pk_bf16_f32 v{dst}, v{a}, v{b}")
def unpk_lo(dst, src): e(f"v_lshlrev_b32 v{dst}, 16, v{src}")
def unpk_hi(dst, src): e(f"v_and_b32 v{dst}, 0xffff0000, v{src}")


K1 = NAME + "_k1_kernel"
XS = 144; XBUF = 144 * XS; WSr = 352; WBUF = 64 * WSr; BUF = XBUF + WBUF; K1_LDS = 2 * BUF; TS = 352
OOB = "0x7fff0000"

def gen_k1():
    kernel_header(K1)
    e("s_cmp_ge_u32 s2, 256"); e("s_cbranch_scc1 K1_END")
    e("s_lshr_b32 s24, s2, 7"); e("s_lshr_b32 s25, s2, 3"); e("s_and_b32 s25, s25, 15"); e("s_and_b32 s26, s2, 7")
    e("s_mul_i32 s29, s24, 24"); e("s_add_u32 s30, s0, s29"); e("s_addc_u32 s31, s1, 0")
    e("s_load_dwordx4 s[4:7], s[30:31], 0"); e("s_load_dwordx2 s[8:9], s[0:1], 64")
    e("v_lshrrev_b32 v1, 6, v0"); e("s_nop 0"); e("v_readfirstlane_b32 s27, v1")
    e("s_lshl_b32 s28, s25, 7")
    e("s_waitcnt lgkmcnt(0)")
    srd(12, 4, 1835008); srd(16, 6, 448 * 2688); srd(20, 8, WS_END)
    e("v_lshrrev_b32 v8, 3, v0"); e("v_and_b32 v9, 7, v0")
    e("s_sub_u32 s29, s28, 16"); e("v_add_u32 v10, s29, v8"); e("s_movk_i32 s30, 896")
    e("v_mul_lo_u32 v2, v10, s30"); e("v_lshl_add_u32 v2, v9, 4, v2")
    e(f"v_add_u32 v3, {64*896}, v2"); e(f"v_add_u32 v4, {128*896}, v2")
    e("s_cmp_lt_u32 s27, 2"); e("s_cbranch_scc1 K1_V4OK"); e(f"v_mov_b32 v4, {OOB}"); lab("K1_V4OK")
    e("v_mul_u32_u24 v7, 144, v8"); e("v_lshl_add_u32 v7, v9, 4, v7")
    e("s_mul_i32 s29, s26, 112"); e("s_movk_i32 s30, 2688")
    e("v_mul_lo_u32 v11, v8, s30"); e("v_lshl_add_u32 v11, v9, 4, v11"); e("v_add_u32 v11, s29, v11")
    e("v_cmp_eq_u32 vcc, 7, v9"); e(f"v_mov_b32 v12, {OOB}"); e("s_nop 1")
    e("v_cndmask_b32 v11, v11, v12, vcc")
    e("v_mul_u32_u24 v13, 352, v8"); e("v_lshl_add_u32 v14, v9, 4, v13"); e("v_add_u32 v13, 336, v13"); e("s_nop 0")
    e("v_cndmask_b32 v13, v14, v13, vcc")
    e("v_mov_b32 v14, 0"); e("v_mov_b32 v15, 112"); e("v_cndmask_b32 v14, v15, v14, vcc")
    e("v_add_u32 v15, v13, v14"); e("v_add_u32 v14, v15, v14")
    for r_ in (13, 14, 15): e(f"v_add_u32 v{r_}, {XBUF}, v{r_}")
    e("v_and_b32 v16, 15, v0"); e("v_bfe_u32 v17, v0, 4, 2")
    e("s_lshl_b32 s29, s27, 4"); e("s_add_u32 s29, s29, 16")
    e("v_add_u32 v18, s29, v16"); e("v_mul_u32_u24 v18, 144, v18"); e("v_lshl_add_u32 v18, v17, 3, v18")
    e("v_mul_u32_u24 v19, 144, v16"); e("v_lshl_add_u32 v19, v17, 3, v19")
    e("v_lshrrev_b32 v20, 2, v16"); e("v_lshl_add_u32 v20, v17, 2, v20"); e("v_mul_u32_u24 v20, 352, v20")
    e("v_and_b32 v21, 3, v16"); e("v_lshl_add_u32 v20, v21, 3, v20"); e(f"v_add_u32 v20, {XBUF}, v20")
    e("s_lshl_b32 s29, s27, 5"); e("s_add_u32 s29, s29, 96"); e("v_add_u32 v21, s29, v20")
    for i in range(48): e(f"v_accvgpr_write_b32 a{i}, 0")
    F = [24, 80]
    def gload(cn):
        S = 48 + 24 * (cn % 3)
        for j in range(3):
            e(f"buffer_load_dwordx4 {ar(S+4*j,4)}, v{2+j}, s[12:15], 0 offen offset:{128*cn}")
        e(f"s_mov_b32 s32, {64*2688*cn}")
        for p in range(3):
            e(f"buffer_load_dwordx4 {ar(S+12+4*p,4)}, v11, s[16:19], s32 offen offset:{896*p}")
    def lwrite(cn):
        S = 48 + 24 * (cn % 3); b = (cn & 1) * BUF
        for j in range(2): e(f"ds_write_b128 v7, {ar(S+4*j,4)} offset:{b+64*XS*j}")
        e("s_cmp_ge_u32 s27, 2"); e(f"s_cbranch_scc1 K1_SKW{cn}")
        e(f"ds_write_b128 v7, {ar(S+8,4)} offset:{b+128*XS}")
        lab(f"K1_SKW{cn}")
        for p, va in enumerate((13, 15, 14)):
            e(f"ds_write_b128 v{va}, {ar(S+12+4*p,4)} offset:{b}")
    def freads(cn, ks, f):
        b = (cn & 1) * BUF; base = F[f]
        for h in range(2): e(f"ds_read_b64 {vr(base+2*h,2)}, v18 offset:{b+64*ks+32*h}")
        for h in range(2): e(f"ds_read_b64 {vr(base+4+2*h,2)}, v19 offset:{b+64*ks+32*h}")
        for h in range(2): e(f"ds_read_b64_tr_b16 {vr(base+8+2*h,2)}, v21 offset:{b+(32*ks+16*h)*WSr}")
        for cb in range(11):
            for h in range(2):
                e(f"ds_read_b64_tr_b16 {vr(base+12+4*cb+2*h,2)}, v20 offset:{b+(32*ks+16*h)*WSr+32*cb}")
    def mfmas(f, later):
        base = F[f]
        e(f"s_waitcnt lgkmcnt({min(22+later,15)})")
        e(f"v_mfma_f32_16x16x32_bf16 a[44:47], {vr(base+4,4)}, {vr(base+8,4)}, a[44:47]")
        for cb in range(11):
            e(f"s_waitcnt lgkmcnt({min(20-2*cb+later,15)})")
            e(f"v_mfma_f32_16x16x32_bf16 {ar(4*cb,4)}, {vr(base,4)}, {vr(base+12+4*cb,4)}, {ar(4*cb,4)}")
    gload(0); gload(1); gload(2)
    e("s_waitcnt vmcnt(12)"); lwrite(0); e("s_waitcnt lgkmcnt(0)"); e("s_barrier")
    gload(3)
    for cn in range(7):
        freads(cn, 0, 0); freads(cn, 1, 1)
        mfmas(0, 28); mfmas(1, 0)
        if cn < 6:
            e(f"s_waitcnt vmcnt({6*(min(6,cn+3)-(cn+1))})"); lwrite(cn + 1)
        e("s_waitcnt lgkmcnt(0)"); e("s_barrier")
        if cn + 4 <= 6: gload(cn + 4)
    e("s_nop 7"); e("s_nop 7")
    e("s_lshl_b32 s29, s27, 4"); e("s_add_u32 s29, s29, 16")
    e("v_lshl_add_u32 v22, v17, 2, s29"); e(f"v_mul_u32_u24 v22, {TS}, v22"); e("v_lshl_add_u32 v22, v16, 1, v22")
    e("v_lshlrev_b32 v23, 2, v17"); e(f"v_mul_u32_u24 v23, {TS}, v23"); e("v_lshl_add_u32 v23, v16, 1, v23")
    e("s_lshl_b32 s29, s27, 5"); e("v_add_u32 v23, s29, v23")
    e("s_mov_b32 s33, 0x3fb8aa3b"); e("s_mov_b32 s34, 0x358637bd")
    def store_block(a, vaddr, off, phi):
        for i in range(4): e(f"v_accvgpr_read_b32 v{24+i}, a{a+i}")
        e("s_nop 0")
        cvt_pk(28, 24, 25); cvt_pk(29, 26, 27)
        if phi:
            unpk_lo(24, 28); unpk_hi(25, 28); unpk_lo(26, 29); unpk_hi(27, 29)
            for i in range(4): e(f"v_mul_f32 v{30+i}, s33, v{24+i}")
            for i in range(4): e(f"v_exp_f32 v{30+i}, v{30+i}")
            for i in range(4): e(f"v_cmp_lt_f32 s[{40+2*i}:{41+2*i}], 0, v{24+i}")
            for i in range(4): e(f"v_add_f32 v{34+i}, 1.0, v{24+i}")
            for i in range(4): e(f"v_cndmask_b32 v{24+i}, v{30+i}, v{34+i}, s[{40+2*i}:{41+2*i}]")
            cvt_pk(28, 24, 25); cvt_pk(29, 26, 27)
            unpk_lo(24, 28); unpk_hi(25, 28); unpk_lo(26, 29); unpk_hi(27, 29)
            for i in range(4): e(f"v_add_f32 v{24+i}, s34, v{24+i}")
            cvt_pk(28, 24, 25); cvt_pk(29, 26, 27)
        e(f"ds_write_b16 v{vaddr}, v28 offset:{off}")
        e(f"ds_write_b16_d16_hi v{vaddr}, v28 offset:{off+TS}")
        e(f"ds_write_b16 v{vaddr}, v29 offset:{off+2*TS}")
        e(f"ds_write_b16_d16_hi v{vaddr}, v29 offset:{off+3*TS}")
    e("s_cmp_eq_u32 s24, 0"); e("s_cbranch_scc0 K1_EPB")
    for cb in range(11): store_block(4 * cb, 22, 32 * cb, cb < 7)
    e("s_branch K1_EPD")
    lab("K1_EPB")
    for cb in range(11): store_block(4 * cb, 22, 32 * cb, False)
    store_block(44, 23, 96, False)
    lab("K1_EPD")
    e("s_waitcnt lgkmcnt(0)"); e("s_barrier")
    e("s_cmp_eq_u32 s24, 0"); e("s_cbranch_scc0 K1_ATTB")
    for j in range(2):
        e(f"v_add_u32 v24, {16+64*j}, v8"); e(f"v_mul_u32_u24 v24, {TS}, v24"); e("v_lshl_add_u32 v24, v9, 4, v24")
        e(f"ds_read_b128 {vr(28+4*j,4)}, v24")
    e("v_add_u32 v24, s28, v8"); e("s_movk_i32 s30, 896"); e("v_mul_lo_u32 v24, v24, s30")
    e("v_lshl_add_u32 v24, v9, 4, v24"); e("s_mul_i32 s29, s26, 112"); e("v_add_u32 v24, s29, v24")
    e("v_cmp_eq_u32 vcc, 7, v9"); e(f"v_mov_b32 v25, {OOB}"); e("s_nop 1"); e("v_cndmask_b32 v24, v24, v25, vcc")
    e("s_waitcnt lgkmcnt(0)")
    for j in range(2):
        e(f"v_add_u32 v25, {64*896*j}, v24")
        e(f"buffer_store_dwordx4 {vr(28+4*j,4)}, v25, s[20:23], 0 offen")
    e("s_cmp_ge_u32 s27, 4"); e("s_cbranch_scc1 K1_END")
    e("v_lshrrev_b32 v24, 2, v16"); e("v_lshl_add_u32 v24, v17, 2, v24"); e("v_add_u32 v24, 16, v24")
    e(f"v_mul_u32_u24 v24, {TS}, v24"); e("v_and_b32 v25, 3, v16"); e("v_lshl_add_u32 v24, v25, 3, v24")
    e("s_lshr_b32 s29, s27, 1"); e("s_and_b32 s30, s27, 1"); e("s_mul_i32 s31, s29, 56")
    e("s_lshl_b32 s32, s30, 5"); e("s_add_u32 s32, s32, s31"); e("s_add_u32 s32, s32, 112"); e("s_add_u32 s31, s31, 224")
    e("v_add_u32 v25, s32, v24"); e("v_add_u32 v26, s31, v24")
    for i in range(12): e(f"v_accvgpr_write_b32 a{i}, 0")
    for i in range(4): e(f"v_mov_b32 v{76+i}, 0x3f803f80")
    for ks in range(4):
        o = 28 + 12 * ks
        for h in range(2): e(f"ds_read_b64_tr_b16 {vr(o+2*h,2)}, v25 offset:{(32*ks+16*h)*TS}")
        for nb in range(2):
            for h in range(2): e(f"ds_read_b64_tr_b16 {vr(o+4+4*nb+2*h,2)}, v26 offset:{(32*ks+16*h)*TS+32*nb}")
    for ks in range(4):
        o = 28 + 12 * ks
        e(f"s_waitcnt lgkmcnt({min(15,6*(3-ks))})")
        e(f"v_mfma_f32_16x16x32_bf16 a[0:3], {vr(o,4)}, {vr(o+4,4)}, a[0:3]")
        e(f"v_mfma_f32_16x16x32_bf16 a[4:7], {vr(o,4)}, {vr(o+8,4)}, a[4:7]")
        e(f"v_mfma_f32_16x16x32_bf16 a[8:11], {vr(o,4)}, v[76:79], a[8:11]")
    e("s_lshl_b32 s31, s26, 1"); e("s_add_u32 s31, s31, s29"); e("s_lshl_b32 s32, s25, 4"); e("s_add_u32 s31, s31, s32")
    e("s_lshl_b32 s32, s31, 12"); e("s_lshl_b32 s33, s31, 7"); e("s_lshl_b32 s34, s30, 4")
    e("v_lshl_add_u32 v24, v17, 2, s34"); e("v_lshlrev_b32 v25, 7, v24"); e("v_lshl_add_u32 v25, v16, 2, v25")
    e("v_add_u32 v25, s32, v25"); e("v_lshlrev_b32 v26, 2, v24"); e("v_add_u32 v26, s33, v26")
    e(f"s_mov_b32 s35, {WS_KVP}"); e(f"s_mov_b32 s36, {WS_ZP}")
    e("s_nop 7")
    for i in range(12): e(f"v_accvgpr_read_b32 v{28+i}, a{i}")
    e("s_nop 0")
    for nb in range(2):
        for i in range(4): e(f"buffer_store_dword v{28+4*nb+i}, v25, s[20:23], s35 offen offset:{128*i + 64*nb}")
    for i in range(4): e(f"buffer_store_dword v{36+i}, v26, s[20:23], s36 offen offset:{4*i}")
    e("s_branch K1_END")
    lab("K1_ATTB")
    e("v_lshrrev_b32 v24, 2, v0"); e("v_bfe_u32 v25, v0, 1, 1"); e("v_and_b32 v23, 1, v0")
    e("v_add_u32 v26, 2, v24"); e(f"v_mul_u32_u24 v26, {TS}, v26"); e("v_mul_u32_u24 v27, 56, v25")
    e("v_add_u32 v26, v26, v27"); e("v_lshl_add_u32 v26, v23, 5, v26")
    Q, KV, LG, O = 28, 36, 100, 108
    for i in range(4): e(f"ds_read_b64 {vr(Q+2*i,2)}, v26 offset:{14*TS+8*i}")
    for w in range(8):
        for i in range(4): e(f"ds_read_b64 {vr(KV+8*w+2*i,2)}, v26 offset:{(14-2*w)*TS+112+8*i}")
    e("v_add_u32 v27, s28, v24")
    e("s_mov_b32 s33, 0x3e4184d8"); e("s_mov_b32 s34, 0xce6e6b28"); e("s_mov_b32 s35, 0x3fb8aa3b")
    e("v_cmp_eq_u32 vcc, 1, v23"); e("v_mov_b32 v124, 0")
    e("s_waitcnt lgkmcnt(15)")
    e(f"v_cndmask_b32 v{Q+6}, v{Q+6}, v124, vcc"); e(f"v_cndmask_b32 v{Q+7}, v{Q+7}, v124, vcc")
    for w in range(8):
        e(f"s_waitcnt lgkmcnt({min(15,4*(7-w))})")
        e(f"v_dot2_f32_bf16 v{LG+w}, v{Q}, v{KV+8*w}, 0")
        for i in range(1, 8): e(f"v_dot2_f32_bf16 v{LG+w}, v{Q+i}, v{KV+8*w+i}, v{LG+w}")
    for w in range(8):
        for i in range(4): e(f"ds_read_b64 {vr(KV+8*w+2*i,2)}, v26 offset:{(14-2*w)*TS+224+8*i}")
    e("s_nop 1")
    for w in range(8):
        e(f"v_add_f32_dpp v{O+w}, v{LG+w}, v{LG+w} quad_perm:[1,0,3,2] row_mask:0xf bank_mask:0xf")
    for w in range(0, 8, 2):
        cvt_pk(124, O + w, O + w + 1); unpk_lo(LG + w, 124); unpk_hi(LG + w + 1, 124)
        e(f"v_mul_f32 v{LG+w}, s33, v{LG+w}"); e(f"v_mul_f32 v{LG+w+1}, s33, v{LG+w+1}")
        cvt_pk(124, LG + w, LG + w + 1); unpk_lo(LG + w, 124); unpk_hi(LG + w + 1, 124)
    e("v_mov_b32 v125, s34")
    for w in range(1, 8): e(f"v_cmp_gt_u32 s[{40+2*w}:{41+2*w}], {2*w}, v27")
    e("s_nop 1")
    for w in range(1, 8): e(f"v_cndmask_b32 v{LG+w}, v{LG+w}, v125, s[{40+2*w}:{41+2*w}]")
    e(f"v_max3_f32 v124, v{LG}, v{LG+1}, v{LG+2}"); e(f"v_max3_f32 v125, v{LG+3}, v{LG+4}, v{LG+5}")
    e(f"v_max3_f32 v124, v124, v{LG+6}, v{LG+7}"); e("v_max_f32 v124, v124, v125")
    for w in range(8): e(f"v_sub_f32 v{LG+w}, v{LG+w}, v124")
    for w in range(8): e(f"v_mul_f32 v{LG+w}, s35, v{LG+w}")
    for w in range(8): e(f"v_exp_f32 v{LG+w}, v{LG+w}")
    e("s_nop 0")
    e(f"v_add_f32 v124, v{LG}, v{LG+1}"); e(f"v_add_f32 v125, v{LG+2}, v{LG+3}")
    e(f"v_add_f32 v126, v{LG+4}, v{LG+5}"); e(f"v_add_f32 v127, v{LG+6}, v{LG+7}")
    e("v_add_f32 v124, v124, v125"); e("v_add_f32 v126, v126, v127"); e("v_add_f32 v124, v124, v126")
    e("v_rcp_f32 v124, v124"); e("s_nop 0")
    for w in range(8): e(f"v_mul_f32 v{LG+w}, v124, v{LG+w}")
    for w in range(0, 8, 2):
        cvt_pk(124, LG + w, LG + w + 1); unpk_lo(LG + w, 124); unpk_hi(LG + w + 1, 124)
    for w in range(8):
        e(f"s_waitcnt lgkmcnt({min(15,4*(7-w))})")
        for i in range(8):
            unpk_lo(124, KV + 8 * w + i); unpk_hi(125, KV + 8 * w + i)
            if w == 0:
                e(f"v_mul_f32 v{O+2*i}, v124, v{LG}"); e(f"v_mul_f32 v{O+2*i+1}, v125, v{LG}")
            else:
                e(f"v_fma_f32 v{O+2*i}, v124, v{LG+w}, v{O+2*i}"); e(f"v_fma_f32 v{O+2*i+1}, v125, v{LG+w}, v{O+2*i+1}")
    for i in range(8): cvt_pk(Q + i, O + 2 * i, O + 2 * i + 1)
    e("s_movk_i32 s30, 896"); e("v_mul_lo_u32 v27, v27, s30"); e("v_mul_u32_u24 v124, 56, v25")
    e("v_add_u32 v27, v27, v124"); e("v_lshl_add_u32 v27, v23, 5, v27")
    e("s_mul_i32 s29, s26, 112"); e("v_add_u32 v27, s29, v27")
    e(f"v_mov_b32 v124, {OOB}"); e("v_cndmask_b32 v124, v27, v124, vcc")
    e(f"s_mov_b32 s36, {WS_OB}")
    for i in range(4):
        e(f"buffer_store_dwordx2 {vr(Q+2*i,2)}, v{27 if i < 3 else 124}, s[20:23], s36 offen offset:{8*i}")
    lab("K1_END")
    e("s_endpgm")

K2 = NAME + "_k2_kernel"; K3 = NAME + "_k3_kernel"
OS = 912; OT = 64 * OS; WOS = 160; OP_LDS = OT + 448 * WOS

def gen_outproj(name, isA):
    P = "K3" if isA else "K2"
    kernel_header(name)
    e(f"s_cmp_ge_u32 s2, {224 if isA else 256}"); e(f"s_cbranch_scc1 {P}_END")
    e(f"s_load_dwordx2 s[4:5], s[0:1], {16 if isA else 40}")
    e("s_load_dwordx2 s[6:7], s[0:1], 48"); e("s_load_dwordx2 s[8:9], s[0:1], 64")
    e("v_lshrrev_b32 v1, 6, v0"); e("s_nop 0"); e("v_readfirstlane_b32 s27, v1")
    e("s_waitcnt lgkmcnt(0)")
    srd(12, 4, 448 * 896); srd(16, 6, 2048 * 1792); srd(20, 8, WS_END)
    e("v_and_b32 v16, 15, v0"); e("v_bfe_u32 v17, v0, 4, 2")
    if not isA:
        e("s_cmp_lt_u32 s2, 224"); e("s_cbranch_scc1 K2_GEMM")
        e("s_sub_u32 s3, s2, 224"); e("s_lshr_b32 s24, s3, 1"); e("s_and_b32 s25, s3, 1"); e("s_lshl_b32 s25, s25, 9")
        e(f"s_mov_b32 s35, {WS_KVP}"); e(f"s_mov_b32 s36, {WS_ZP}"); e(f"s_mov_b32 s37, {WS_KVZ}")
        e("v_add_u32 v2, s25, v0"); e("v_lshrrev_b32 v3, 5, v2"); e("v_and_b32 v4, 31, v2")
        e("s_lshl_b32 s26, s24, 12"); e("v_lshlrev_b32 v5, 7, v4"); e("v_lshl_add_u32 v5, v3, 2, v5"); e("v_add_u32 v5, s26, v5")
        e("s_lshl_b32 s26, s24, 7"); e("v_lshlrev_b32 v6, 2, v4"); e("v_add_u32 v6, s26, v6")
        for rt in range(16):
            e(f"v_add_u32 v7, {65536*rt}, v5"); e(f"buffer_load_dword v{24+rt}, v7, s[20:23], s35 offen")
            e(f"v_add_u32 v7, {2048*rt}, v6"); e(f"buffer_load_dword v{40+rt}, v7, s[20:23], s36 offen")
        e("s_waitcnt vmcnt(0)")
        for rt in range(1, 16):
            e(f"v_add_f32 v24, v24, v{24+rt}"); e(f"v_add_f32 v40, v40, v{40+rt}")
        e("v_cmp_eq_u32 vcc, 28, v3"); e("s_nop 1"); e("v_cndmask_b32 v24, v24, v40, vcc")
        e("v_mov_b32 v8, 0"); e("v_cmp_lt_u32 vcc, 28, v3"); e("s_nop 1"); e("v_cndmask_b32 v24, v24, v8, vcc")
        e("v_cmp_lt_u32 vcc, 27, v4"); e("s_nop 1"); e("v_cndmask_b32 v24, v24, v8, vcc"); e("s_nop 0")
        cvt_pk(24, 24, 24)
        e("s_lshl_b32 s26, s24, 11"); e("v_lshlrev_b32 v7, 1, v2"); e("v_add_u32 v7, s26, v7")
        e("buffer_store_short v24, v7, s[20:23], s37 offen")
        e(f"s_branch {P}_END")
        lab("K2_GEMM")
    e("s_mul_hi_u32 s24, s2, 0x24924925"); e("s_mul_i32 s25, s24, 7"); e("s_sub_u32 s25, s2, s25"); e("s_lshl_b32 s28, s24, 6")
    e("v_lshrrev_b32 v8, 3, v0"); e("v_and_b32 v9, 7, v0"); e("s_movk_i32 s30, 896")
    e("v_mul_lo_u32 v2, v8, s30"); e("v_lshl_add_u32 v2, v9, 4, v2"); e("s_lshl_b32 s29, s25, 7"); e("v_add_u32 v2, s29, v2")
    e(f"v_mul_u32_u24 v3, {WOS}, v8"); e("v_lshl_add_u32 v3, v9, 4, v3"); e(f"v_add_u32 v3, {OT}, v3")
    for j in range(7):
        e(f"v_add_u32 v4, {64*896*j}, v2"); e(f"buffer_load_dwordx4 {vr(24+4*j,4)}, v4, s[12:15], 0 offen")
    if not isA:
        e(f"s_mov_b32 s36, {WS_OB}"); e("s_mov_b32 s31, 0x4924925")
        for j in range(7):
            e(f"v_add_u32 v4, {512*j}, v0"); e("v_mul_hi_u32 v5, v4, s31"); e("v_mul_u32_u24 v6, 56, v5"); e("v_sub_u32 v6, v4, v6")
            e("v_add_u32 v7, s28, v5"); e("v_mul_lo_u32 v7, v7, s30"); e("v_lshl_add_u32 v7, v6, 4, v7")
            e(f"buffer_load_dwordx4 {vr(52+4*j,4)}, v7, s[20:23], s36 offen")
            e(f"v_mul_u32_u24 v5, {OS}, v5"); e(f"v_lshl_add_u32 v{80+j}, v6, 4, v5")
        e("s_waitcnt vmcnt(0)")
        for j in range(7): e(f"ds_write_b128 v{80+j}, {vr(52+4*j,4)}")
    else:
        e(f"s_mov_b32 s36, {WS_PQA}"); e(f"s_mov_b32 s37, {WS_KVZ}"); e("s_mov_b32 s34, 0x358637bd")
        e("s_and_b32 s31, s27, 3"); e("s_lshr_b32 s32, s27, 2")
        e("s_lshl_b32 s29, s31, 4"); e("s_add_u32 s29, s29, s28")
        e("v_add_u32 v4, s29, v16"); e("v_mul_lo_u32 v4, v4, s30"); e("v_lshl_add_u32 v4, v17, 4, v4")
        e("s_mul_i32 s29, s32, 448"); e("v_add_u32 v4, s29, v4")
        e("v_lshlrev_b32 v5, 6, v16"); e("v_lshl_add_u32 v5, v17, 4, v5"); e("s_lshl_b32 s29, s32, 14"); e("v_add_u32 v5, s29, v5")
        e("s_lshl_b32 s29, s31, 4"); e("v_lshl_add_u32 v6, v17, 2, s29"); e(f"v_mul_u32_u24 v6, {OS}, v6")
        e("v_lshl_add_u32 v6, v16, 1, v6"); e("s_mul_i32 s29, s32, 448"); e("v_add_u32 v6, s29, v6")
        e("v_and_b32 v7, 48, v0"); e("v_or_b32 v7, 12, v7"); e("v_lshlrev_b32 v7, 2, v7")
        for h in range(8):
            e(f"buffer_load_dwordx4 {vr(52+4*h,4)}, v4, s[20:23], s36 offen offset:{56*h}")
            e(f"v_add_u32 v10, {2048*h}, v5")
            e(f"buffer_load_dwordx4 {ar(8*h,4)}, v10, s[20:23], s37 offen")
            e(f"buffer_load_dwordx4 {ar(8*h+4,4)}, v10, s[20:23], s37 offen offset:1024")
        for h in range(8):
            e(f"s_waitcnt vmcnt({3*(7-h)})")
            e(f"v_mfma_f32_16x16x32_bf16 {vr(84+8*h,4)}, {vr(52+4*h,4)}, {ar(8*h,4)}, 0")
            e(f"v_mfma_f32_16x16x32_bf16 {vr(88+8*h,4)}, {vr(52+4*h,4)}, {ar(8*h+4,4)}, 0")
        e("s_nop 7"); e("s_nop 7")
        for h in range(8):
            for i in range(4): e(f"ds_bpermute_b32 v{52+4*h+i}, v7, v{88+8*h+i}")
        for h in range(8):
            e(f"s_waitcnt lgkmcnt({min(15,4*(7-h))})")
            d = 52 + 4 * h
            cvt_pk(10, d, d + 1); cvt_pk(11, d + 2, d + 3)
            unpk_lo(12, 10); unpk_hi(13, 10); unpk_lo(14, 11); unpk_hi(15, 11)
            for i in range(4): e(f"v_add_f32 v{12+i}, s34, v{12+i}")
            cvt_pk(10, 12, 13); cvt_pk(11, 14, 15)
            unpk_lo(12, 10); unpk_hi(13, 10); unpk_lo(14, 11); unpk_hi(15, 11)
            for i in range(4): e(f"v_rcp_f32 v{12+i}, v{12+i}")
            for nb in range(2):
                a_ = 84 + 8 * h + 4 * nb
                cvt_pk(10, a_, a_ + 1); cvt_pk(11, a_ + 2, a_ + 3)
                unpk_lo(18, 10); unpk_hi(19, 10); unpk_lo(20, 11); unpk_hi(21, 11)
                for i in range(4): e(f"v_mul_f32 v{18+i}, v{18+i}, v{12+i}")
                cvt_pk(10, 18, 19); cvt_pk(11, 20, 21)
                o_ = 56 * h + 32 * nb
                if nb == 1:
                    e("s_mov_b32 exec_lo, 0x0fff0fff"); e("s_mov_b32 exec_hi, 0x0fff0fff")
                e(f"ds_write_b16 v6, v10 offset:{o_}"); e(f"ds_write_b16_d16_hi v6, v10 offset:{OS+o_}")
                e(f"ds_write_b16 v6, v11 offset:{2*OS+o_}"); e(f"ds_write_b16_d16_hi v6, v11 offset:{3*OS+o_}")
                if nb == 1:
                    e("s_mov_b64 exec, -1")
    e(f"v_add_u32 v10, {4*64*WOS}, v3")
    for j in range(7):
        e(f"ds_write_b128 v{3 if j < 4 else 10}, {vr(24+4*j,4)} offset:{64*WOS*(j%4)}")
    e("s_waitcnt lgkmcnt(0)"); e("s_barrier")
    e("s_lshr_b32 s29, s27, 1"); e("s_lshl_b32 s29, s29, 4")
    e("v_add_u32 v18, s29, v16"); e(f"v_mul_u32_u24 v18, {OS}, v18"); e("v_lshl_add_u32 v18, v17, 3, v18")
    e("v_lshrrev_b32 v20, 2, v16"); e("v_lshl_add_u32 v20, v17, 2, v20"); e(f"v_mul_u32_u24 v20, {WOS}, v20")
    e("v_and_b32 v21, 3, v16"); e("v_lshl_add_u32 v20, v21, 3, v20")
    e("s_and_b32 s30, s27, 1"); e("s_lshl_b32 s30, s30, 6"); e(f"s_add_u32 s30, s30, {OT}")
    e("v_add_u32 v20, s30, v20"); e(f"v_add_u32 v21, {224*WOS}, v20")
    for i in range(8): e(f"v_mov_b32 v{24+i}, 0")
    for ks in range(14):
        b = 32 + 12 * (ks % 7)
        for h in range(2): e(f"ds_read_b64 {vr(b+2*h,2)}, v18 offset:{64*ks+32*h}")
        for cb in range(2):
            for h in range(2):
                e(f"ds_read_b64_tr_b16 {vr(b+4+4*cb+2*h,2)}, v{20 if ks < 7 else 21} offset:{(32*(ks%7)+16*h)*WOS+32*cb}")
        if ks % 7 == 6:
            for k2 in range(ks - 6, ks + 1):
                b2 = 32 + 12 * (k2 % 7)
                e(f"s_waitcnt lgkmcnt({min(15, 6*(ks-k2))})")
                for cb in range(2):
                    e(f"v_mfma_f32_16x16x32_bf16 {vr(24+4*cb,4)}, {vr(b2,4)}, {vr(b2+4+4*cb,4)}, {vr(24+4*cb,4)}")
    e("s_lshr_b32 s29, s27, 1"); e("s_lshl_b32 s29, s29, 4"); e("s_add_u32 s29, s29, s28")
    e("v_lshl_add_u32 v2, v17, 2, s29"); e("s_movk_i32 s30, 1792"); e("v_mul_lo_u32 v2, v2, s30"); e("v_lshl_add_u32 v2, v16, 1, v2")
    e("s_and_b32 s30, s27, 1"); e("s_lshl_b32 s30, s30, 6"); e("s_lshl_b32 s31, s25, 7"); e("s_add_u32 s30, s30, s31")
    e(f"s_add_u32 s30, s30, {0 if isA else 896}"); e("v_add_u32 v2, s30, v2"); e(f"v_add_u32 v3, {2*1792}, v2")
    e("s_nop 4")
    for cb in range(2):
        a = 24 + 4 * cb
        cvt_pk(4, a, a + 1); cvt_pk(5, a + 2, a + 3)
        e(f"buffer_store_short v4, v2, s[16:19], 0 offen offset:{32*cb}")
        e(f"buffer_store_short_d16_hi v4, v2, s[16:19], 0 offen offset:{32*cb+1792}")
        e(f"buffer_store_short v5, v3, s[16:19], 0 offen offset:{32*cb}")
        e(f"buffer_store_short_d16_hi v5, v3, s[16:19], 0 offen offset:{32*cb+1792}")
    lab(f"{P}_END")
    e("s_endpgm")

def main():
    hdr = open(f"cdna_kernels/{NAME}.s.ref").read().split("\n")
    top = [l for l in hdr if l.startswith(";") and "@launch" not in l]
    top.append(f"; @launch kernel={K1} grid=(256,1,1) block=(512,1,1) lds={K1_LDS}")
    top.append(f"; @launch kernel={K2} grid=(256,1,1) block=(512,1,1) lds={OP_LDS}")
    top.append(f"; @launch kernel={K3} grid=(224,1,1) block=(512,1,1) lds={OP_LDS}")
    L.extend(top)
    L.append('.amdgcn_target "amdgcn-amd-amdhsa--gfx950"'); L.append(".text")
    gen_k1(); gen_outproj(K2, False); gen_outproj(K3, True)
    L.append('.section .rodata,"a"')
    L.append(kd(K1, 256, 136)); L.append(kd(K2, 128, 128)); L.append(kd(K3, 148 + 64, 148))
    open(OUT, "w").write("\n".join(L) + "\n")
main()
```

```python
import sys, os
VAR = os.environ.get("VAR", "")
NAME = "concat_heads__linear_attn_block__sliding_local_dilated__prompt"
OUT = os.environ.get("OUT", f"cdna_kernels/{NAME}.s")

L = []
def e(s=""):
    L.append("    " + s if s and not s.endswith(":") else s)
def lab(s): L.append(s + ":")
def c(s): L.append("    ; " + s)

WS_PQA, WS_OB, WS_KVP, WS_ZP, WS_KVZ, WS_END = 0, 0x200000, 0x400000, 0x500000, 0x600000, 0x700000

def vr(a, n=1):
    return f"v{a}" if n == 1 else f"v[{a}:{a+n-1}]"
def ar(a, n=1):
    return f"a{a}" if n == 1 else f"a[{a}:{a+n-1}]"

def srd(dst, ptr_lo, nbytes):
    e(f"s_mov_b32 s{dst}, s{ptr_lo}")
    e(f"s_and_b32 s{dst+1}, s{ptr_lo+1}, 0xffff")
    e(f"s_mov_b32 s{dst+2}, {nbytes}")
    e(f"s_mov_b32 s{dst+3}, 0x00020000")

def kernel_header(name):
    L.append(".p2align 8")
    L.append(f".globl {name}")
    L.append(f".type {name},@function")
    lab(name)

def kd(name, nvgpr, accum, nsgpr=96):
    return f""".p2align 6
.amdhsa_kernel {name}
  .amdhsa_next_free_vgpr {nvgpr}
  .amdhsa_next_free_sgpr {nsgpr}
  .amdhsa_accum_offset {accum}
  .amdhsa_group_segment_fixed_size 0
  .amdhsa_kernarg_size 72
  .amdhsa_user_sgpr_count 2
  .amdhsa_user_sgpr_kernarg_segment_ptr 1
  .amdhsa_system_sgpr_workgroup_id_x 1
.end_amdhsa_kernel"""

def cvt_pk(dst, a, b): e(f"v_cvt_pk_bf16_f32 v{dst}, v{a}, v{b}")
def unpk_lo(dst, src): e(f"v_lshlrev_b32 v{dst}, 16, v{src}")
def unpk_hi(dst, src): e(f"v_and_b32 v{dst}, 0xffff0000, v{src}")


K1 = NAME + "_k1_kernel"
XS = 144; XBUF = 144 * XS; WSr = 352; WBUF = 64 * WSr; BUF = XBUF + WBUF; K1_LDS = 2 * BUF; TS = 352
OOB = "0x7fff0000"

def gen_k1():
    kernel_header(K1)
    e("s_cmp_ge_u32 s2, 256"); e("s_cbranch_scc1 K1_END")
    e("s_lshr_b32 s24, s2, 7"); e("s_lshr_b32 s25, s2, 3"); e("s_and_b32 s25, s25, 15"); e("s_and_b32 s26, s2, 7")
    e("s_mul_i32 s29, s24, 24"); e("s_add_u32 s30, s0, s29"); e("s_addc_u32 s31, s1, 0")
    e("s_load_dwordx4 s[4:7], s[30:31], 0"); e("s_load_dwordx2 s[8:9], s[0:1], 64")
    e("v_lshrrev_b32 v1, 6, v0"); e("s_nop 0"); e("v_readfirstlane_b32 s27, v1")
    e("s_lshl_b32 s28, s25, 7")
    e("s_waitcnt lgkmcnt(0)")
    srd(12, 4, 1835008); srd(16, 6, 448 * 2688); srd(20, 8, WS_END)
    e("v_lshrrev_b32 v8, 3, v0"); e("v_and_b32 v9, 7, v0")
    e("s_sub_u32 s29, s28, 16"); e("v_add_u32 v10, s29, v8"); e("s_movk_i32 s30, 896")
    e("v_mul_lo_u32 v2, v10, s30"); e("v_lshl_add_u32 v2, v9, 4, v2")
    e(f"v_add_u32 v3, {64*896}, v2"); e(f"v_add_u32 v4, {128*896}, v2")
    e("s_cmp_lt_u32 s27, 2"); e("s_cbranch_scc1 K1_V4OK"); e(f"v_mov_b32 v4, {OOB}"); lab("K1_V4OK")
    e("v_mul_u32_u24 v7, 144, v8"); e("v_lshl_add_u32 v7, v9, 4, v7")
    e("s_mul_i32 s29, s26, 112"); e("s_movk_i32 s30, 2688")
    e("v_mul_lo_u32 v11, v8, s30"); e("v_lshl_add_u32 v11, v9, 4, v11"); e("v_add_u32 v11, s29, v11")
    e("v_cmp_eq_u32 vcc, 7, v9"); e(f"v_mov_b32 v12, {OOB}"); e("s_nop 1")
    e("v_cndmask_b32 v11, v11, v12, vcc")
    e("v_mul_u32_u24 v13, 352, v8"); e("v_lshl_add_u32 v14, v9, 4, v13"); e("v_add_u32 v13, 336, v13"); e("s_nop 0")
    e("v_cndmask_b32 v13, v14, v13, vcc")
    e("v_mov_b32 v14, 0"); e("v_mov_b32 v15, 112"); e("v_cndmask_b32 v14, v15, v14, vcc")
    e("v_add_u32 v15, v13, v14"); e("v_add_u32 v14, v15, v14")
    for r_ in (13, 14, 15): e(f"v_add_u32 v{r_}, {XBUF}, v{r_}")
    e("v_and_b32 v16, 15, v0"); e("v_bfe_u32 v17, v0, 4, 2")
    e("s_lshr_b32 s38, s27, 1"); e("s_and_b32 s39, s27, 1")
    e("s_lshl_b32 s29, s38, 5"); e("s_add_u32 s29, s29, 16")
    e("v_add_u32 v18, s29, v16"); e("v_mul_u32_u24 v18, 144, v18"); e("v_lshl_add_u32 v18, v17, 3, v18")
    e("v_mul_u32_u24 v19, 144, v16"); e("v_lshl_add_u32 v19, v17, 3, v19")
    e("v_lshrrev_b32 v20, 2, v16"); e("v_lshl_add_u32 v20, v17, 2, v20"); e("v_mul_u32_u24 v20, 352, v20")
    e("v_and_b32 v21, 3, v16"); e("v_lshl_add_u32 v20, v21, 3, v20"); e(f"v_add_u32 v20, {XBUF}, v20")
    e("s_lshl_b32 s29, s27, 5"); e("s_add_u32 s29, s29, 96"); e("v_add_u32 v21, s29, v20")
    e("s_mul_i32 s29, s39, 192"); e("v_add_u32 v20, s29, v20")
    for i in range(52): e(f"v_accvgpr_write_b32 a{i}, 0")
    F = [24, 64]
    SB = 52
    def gload(cn):
        S = SB + 24 * (cn % 3)
        for j in range(3):
            e(f"buffer_load_dwordx4 {ar(S+4*j,4)}, v{2+j}, s[12:15], 0 offen offset:{128*cn}")
        e(f"s_mov_b32 s32, {64*2688*cn}")
        for p in range(3):
            e(f"buffer_load_dwordx4 {ar(S+12+4*p,4)}, v11, s[16:19], s32 offen offset:{896*p}")
    def lwrite_list(cn):
        S = SB + 24 * (cn % 3); b = (cn & 1) * BUF
        r = [[f"ds_write_b128 v7, {ar(S+4*j,4)} offset:{b+64*XS*j}"] for j in range(2)]
        r.append(["s_cmp_ge_u32 s27, 2", f"s_cbranch_scc1 K1_SKW{cn}", f"ds_write_b128 v7, {ar(S+8,4)} offset:{b+128*XS}", f"K1_SKW{cn}:"])
        r += [[f"ds_write_b128 v{va}, {ar(S+12+4*p,4)} offset:{b}"] for p, va in enumerate((13, 15, 14))]
        return r
    def emit(lst):
        for x in lst:
            if x.endswith(":"): lab(x[:-1])
            else: e(x)
    def fread_list(cn, ks, f):
        b = (cn & 1) * BUF; base = F[f]; r = []
        for rb in range(2):
            for h in range(2): r.append(f"ds_read_b64 {vr(base+4*rb+2*h,2)}, v18 offset:{b+16*XS*rb+64*ks+32*h}")
        for cb in range(6):
            for h in range(2): r.append(f"ds_read_b64_tr_b16 {vr(base+16+4*cb+2*h,2)}, v20 offset:{b+(32*ks+16*h)*WSr+32*cb}")
        for h in range(2): r.append(f"ds_read_b64 {vr(base+8+2*h,2)}, v19 offset:{b+64*ks+32*h}")
        for h in range(2): r.append(f"ds_read_b64_tr_b16 {vr(base+12+2*h,2)}, v21 offset:{b+(32*ks+16*h)*WSr}")
        return r
    def mfma_list(f):
        base = F[f]; r = []
        for cb in range(6):
            for rb in range(2):
                r.append((4 + 2 * (cb + 1), f"v_mfma_f32_16x16x32_bf16 {ar(4*(rb*6+cb),4)}, {vr(base+4*rb,4)}, {vr(base+16+4*cb,4)}, {ar(4*(rb*6+cb),4)}"))
        r.append((20, f"v_mfma_f32_16x16x32_bf16 a[48:51], {vr(base+8,4)}, {vr(base+12,4)}, a[48:51]"))
        return r
    gload(0); gload(1); gload(2)
    e("s_waitcnt vmcnt(12)")
    for x in lwrite_list(0): emit(x)
    e("s_waitcnt lgkmcnt(0)"); e("s_barrier")
    gload(3)
    if VAR == "proonly": e("s_branch K1_END")
    for cn in range(7):
        for x in fread_list(cn, 0, 0): e(x)
        nxt = fread_list(cn, 1, 1)
        issued = 0
        for need, ins in mfma_list(0):
            e(f"s_waitcnt lgkmcnt({min(15, 20-need+issued)})"); e(ins)
            for _ in range(2):
                if nxt: e(nxt.pop(0)); issued += 1
        while nxt: e(nxt.pop(0))
        wl = lwrite_list(cn + 1) if cn < 6 else []
        if cn < 6: e(f"s_waitcnt vmcnt({6*(min(6,cn+3)-(cn+1))})")
        first = True
        for need, ins in mfma_list(1):
            e(f"s_waitcnt lgkmcnt({min(15, 20-need)})" if first or True else ""); e(ins)
        for x in wl: emit(x)
        e("s_waitcnt lgkmcnt(0)"); e("s_barrier")
        if cn + 4 <= 6: gload(cn + 4)
    if VAR == "noepi": e("s_branch K1_END")
    e("s_nop 7"); e("s_nop 7")
    e("s_lshl_b32 s29, s38, 5"); e("s_add_u32 s29, s29, 16")
    e("v_lshl_add_u32 v22, v17, 2, s29"); e(f"v_mul_u32_u24 v22, {TS}, v22"); e("v_lshl_add_u32 v22, v16, 1, v22")
    e("s_mul_i32 s29, s39, 192"); e("v_add_u32 v22, s29, v22")
    e("v_lshlrev_b32 v23, 2, v17"); e(f"v_mul_u32_u24 v23, {TS}, v23"); e("v_lshl_add_u32 v23, v16, 1, v23")
    e("s_lshl_b32 s29, s27, 5"); e("v_add_u32 v23, s29, v23")
    e("s_mov_b32 s33, 0x3fb8aa3b"); e("s_mov_b32 s34, 0x358637bd")
    def store_block(a, vaddr, off, phi):
        for i in range(4): e(f"v_accvgpr_read_b32 v{24+i}, a{a+i}")
        e("s_nop 0")
        cvt_pk(28, 24, 25); cvt_pk(29, 26, 27)
        if phi:
            unpk_lo(24, 28); unpk_hi(25, 28); unpk_lo(26, 29); unpk_hi(27, 29)
            for i in range(4): e(f"v_mul_f32 v{30+i}, s33, v{24+i}")
            for i in range(4): e(f"v_exp_f32 v{30+i}, v{30+i}")
            for i in range(4): e(f"v_cmp_lt_f32 s[{40+2*i}:{41+2*i}], 0, v{24+i}")
            for i in range(4): e(f"v_add_f32 v{34+i}, 1.0, v{24+i}")
            for i in range(4): e(f"v_cndmask_b32 v{24+i}, v{30+i}, v{34+i}, s[{40+2*i}:{41+2*i}]")
            cvt_pk(28, 24, 25); cvt_pk(29, 26, 27)
            unpk_lo(24, 28); unpk_hi(25, 28); unpk_lo(26, 29); unpk_hi(27, 29)
            for i in range(4): e(f"v_add_f32 v{24+i}, s34, v{24+i}")
            cvt_pk(28, 24, 25); cvt_pk(29, 26, 27)
        e(f"ds_write_b16 v{vaddr}, v28 offset:{off}")
        e(f"ds_write_b16_d16_hi v{vaddr}, v28 offset:{off+TS}")
        e(f"ds_write_b16 v{vaddr}, v29 offset:{off+2*TS}")
        e(f"ds_write_b16_d16_hi v{vaddr}, v29 offset:{off+3*TS}")
    e("s_cmp_eq_u32 s24, 0"); e("s_cbranch_scc0 K1_EPB")
    e("s_cmp_eq_u32 s39, 0"); e("s_cbranch_scc0 K1_EPA1")
    for rb in range(2):
        for cb in range(6): store_block(4 * (rb * 6 + cb), 22, 16 * TS * rb + 32 * cb, True)
    e("s_branch K1_EPD")
    lab("K1_EPA1")
    for rb in range(2):
        for cb in range(5): store_block(4 * (rb * 6 + cb), 22, 16 * TS * rb + 32 * cb, cb == 0)
    e("s_branch K1_EPD")
    lab("K1_EPB")
    for rb in range(2):
        for cb in range(5): store_block(4 * (rb * 6 + cb), 22, 16 * TS * rb + 32 * cb, False)
    store_block(48, 23, 96, False)
    e("s_cmp_eq_u32 s39, 0"); e("s_cbranch_scc0 K1_EPD")
    for rb in range(2): store_block(4 * (rb * 6 + 5), 22, 16 * TS * rb + 32 * 5, False)
    lab("K1_EPD")
    e("s_waitcnt lgkmcnt(0)"); e("s_barrier")
    if VAR == "noatt": e("s_branch K1_END")
    e("s_cmp_eq_u32 s24, 0"); e("s_cbranch_scc0 K1_ATTB")
    for j in range(2):
        e(f"v_add_u32 v24, {16+64*j}, v8"); e(f"v_mul_u32_u24 v24, {TS}, v24"); e("v_lshl_add_u32 v24, v9, 4, v24")
        e(f"ds_read_b128 {vr(28+4*j,4)}, v24")
    e("v_add_u32 v24, s28, v8"); e("s_movk_i32 s30, 896"); e("v_mul_lo_u32 v24, v24, s30")
    e("v_lshl_add_u32 v24, v9, 4, v24"); e("s_mul_i32 s29, s26, 112"); e("v_add_u32 v24, s29, v24")
    e("v_cmp_eq_u32 vcc, 7, v9"); e(f"v_mov_b32 v25, {OOB}"); e("s_nop 1"); e("v_cndmask_b32 v24, v24, v25, vcc")
    e("s_waitcnt lgkmcnt(0)")
    for j in range(2):
        e(f"v_add_u32 v25, {64*896*j}, v24")
        e(f"buffer_store_dwordx4 {vr(28+4*j,4)}, v25, s[20:23], 0 offen")
    e("s_cmp_ge_u32 s27, 4"); e("s_cbranch_scc1 K1_END")
    e("v_lshrrev_b32 v24, 2, v16"); e("v_lshl_add_u32 v24, v17, 2, v24"); e("v_add_u32 v24, 16, v24")
    e(f"v_mul_u32_u24 v24, {TS}, v24"); e("v_and_b32 v25, 3, v16"); e("v_lshl_add_u32 v24, v25, 3, v24")
    e("s_lshr_b32 s29, s27, 1"); e("s_and_b32 s30, s27, 1"); e("s_mul_i32 s31, s29, 56")
    e("s_lshl_b32 s32, s30, 5"); e("s_add_u32 s32, s32, s31"); e("s_add_u32 s32, s32, 112"); e("s_add_u32 s31, s31, 224")
    e("v_add_u32 v25, s32, v24"); e("v_add_u32 v26, s31, v24")
    for i in range(12): e(f"v_accvgpr_write_b32 a{i}, 0")
    for i in range(4): e(f"v_mov_b32 v{76+i}, 0x3f803f80")
    for ks in range(4):
        o = 28 + 12 * ks
        for h in range(2): e(f"ds_read_b64_tr_b16 {vr(o+2*h,2)}, v25 offset:{(32*ks+16*h)*TS}")
        for nb in range(2):
            for h in range(2): e(f"ds_read_b64_tr_b16 {vr(o+4+4*nb+2*h,2)}, v26 offset:{(32*ks+16*h)*TS+32*nb}")
    for ks in range(4):
        o = 28 + 12 * ks
        e(f"s_waitcnt lgkmcnt({min(15,6*(3-ks))})")
        e(f"v_mfma_f32_16x16x32_bf16 a[0:3], {vr(o,4)}, {vr(o+4,4)}, a[0:3]")
        e(f"v_mfma_f32_16x16x32_bf16 a[4:7], {vr(o,4)}, {vr(o+8,4)}, a[4:7]")
        e(f"v_mfma_f32_16x16x32_bf16 a[8:11], {vr(o,4)}, v[76:79], a[8:11]")
    e("s_lshl_b32 s31, s26, 1"); e("s_add_u32 s31, s31, s29"); e("s_lshl_b32 s32, s25, 4"); e("s_add_u32 s31, s31, s32")
    e("s_lshl_b32 s32, s31, 12"); e("s_lshl_b32 s33, s31, 7"); e("s_lshl_b32 s34, s30, 4")
    e("v_lshl_add_u32 v24, v17, 2, s34"); e("v_lshlrev_b32 v25, 7, v24"); e("v_lshl_add_u32 v25, v16, 2, v25")
    e("v_add_u32 v25, s32, v25"); e("v_lshlrev_b32 v26, 2, v24"); e("v_add_u32 v26, s33, v26")
    e(f"s_mov_b32 s35, {WS_KVP}"); e(f"s_mov_b32 s36, {WS_ZP}")
    e("s_nop 7")
    for i in range(12): e(f"v_accvgpr_read_b32 v{28+i}, a{i}")
    e("s_nop 0")
    for nb in range(2):
        for i in range(4): e(f"buffer_store_dword v{28+4*nb+i}, v25, s[20:23], s35 offen offset:{128*i + 64*nb}")
    for i in range(4): e(f"buffer_store_dword v{36+i}, v26, s[20:23], s36 offen offset:{4*i}")
    e("s_branch K1_END")
    lab("K1_ATTB")
    e("v_lshrrev_b32 v24, 2, v0"); e("v_bfe_u32 v25, v0, 1, 1"); e("v_and_b32 v23, 1, v0")
    e("v_add_u32 v26, 2, v24"); e(f"v_mul_u32_u24 v26, {TS}, v26"); e("v_mul_u32_u24 v27, 56, v25")
    e("v_add_u32 v26, v26, v27"); e("v_lshl_add_u32 v26, v23, 5, v26")
    Q, KV, LG, O = 28, 36, 100, 108
    for i in range(4): e(f"ds_read_b64 {vr(Q+2*i,2)}, v26 offset:{14*TS+8*i}")
    for w in range(8):
        for i in range(4): e(f"ds_read_b64 {vr(KV+8*w+2*i,2)}, v26 offset:{(14-2*w)*TS+112+8*i}")
    e("v_add_u32 v27, s28, v24")
    e("s_mov_b32 s33, 0x3e4184d8"); e("s_mov_b32 s34, 0xce6e6b28"); e("s_mov_b32 s35, 0x3fb8aa3b")
    e("v_cmp_eq_u32 vcc, 1, v23"); e("v_mov_b32 v124, 0")
    e("s_waitcnt lgkmcnt(15)")
    e(f"v_cndmask_b32 v{Q+6}, v{Q+6}, v124, vcc"); e(f"v_cndmask_b32 v{Q+7}, v{Q+7}, v124, vcc")
    for w in range(8):
        e(f"s_waitcnt lgkmcnt({min(15,4*(7-w))})")
        e(f"v_dot2_f32_bf16 v{LG+w}, v{Q}, v{KV+8*w}, 0")
        for i in range(1, 8): e(f"v_dot2_f32_bf16 v{LG+w}, v{Q+i}, v{KV+8*w+i}, v{LG+w}")
    for w in range(8):
        for i in range(4): e(f"ds_read_b64 {vr(KV+8*w+2*i,2)}, v26 offset:{(14-2*w)*TS+224+8*i}")
    e("s_nop 1")
    for w in range(8):
        e(f"v_add_f32_dpp v{O+w}, v{LG+w}, v{LG+w} quad_perm:[1,0,3,2] row_mask:0xf bank_mask:0xf")
    for w in range(0, 8, 2):
        cvt_pk(124, O + w, O + w + 1); unpk_lo(LG + w, 124); unpk_hi(LG + w + 1, 124)
        e(f"v_mul_f32 v{LG+w}, s33, v{LG+w}"); e(f"v_mul_f32 v{LG+w+1}, s33, v{LG+w+1}")
        cvt_pk(124, LG + w, LG + w + 1); unpk_lo(LG + w, 124); unpk_hi(LG + w + 1, 124)
    e("v_mov_b32 v125, s34")
    for w in range(1, 8): e(f"v_cmp_gt_u32 s[{40+2*w}:{41+2*w}], {2*w}, v27")
    e("s_nop 1")
    for w in range(1, 8): e(f"v_cndmask_b32 v{LG+w}, v{LG+w}, v125, s[{40+2*w}:{41+2*w}]")
    e(f"v_max3_f32 v124, v{LG}, v{LG+1}, v{LG+2}"); e(f"v_max3_f32 v125, v{LG+3}, v{LG+4}, v{LG+5}")
    e(f"v_max3_f32 v124, v124, v{LG+6}, v{LG+7}"); e("v_max_f32 v124, v124, v125")
    for w in range(8): e(f"v_sub_f32 v{LG+w}, v{LG+w}, v124")
    for w in range(8): e(f"v_mul_f32 v{LG+w}, s35, v{LG+w}")
    for w in range(8): e(f"v_exp_f32 v{LG+w}, v{LG+w}")
    e("s_nop 0")
    e(f"v_add_f32 v124, v{LG}, v{LG+1}"); e(f"v_add_f32 v125, v{LG+2}, v{LG+3}")
    e(f"v_add_f32 v126, v{LG+4}, v{LG+5}"); e(f"v_add_f32 v127, v{LG+6}, v{LG+7}")
    e("v_add_f32 v124, v124, v125"); e("v_add_f32 v126, v126, v127"); e("v_add_f32 v124, v124, v126")
    e("v_rcp_f32 v124, v124"); e("s_nop 0")
    for w in range(8): e(f"v_mul_f32 v{LG+w}, v124, v{LG+w}")
    for w in range(0, 8, 2):
        cvt_pk(124, LG + w, LG + w + 1); unpk_lo(LG + w, 124); unpk_hi(LG + w + 1, 124)
    for w in range(8):
        e(f"s_waitcnt lgkmcnt({min(15,4*(7-w))})")
        for i in range(8):
            unpk_lo(124, KV + 8 * w + i); unpk_hi(125, KV + 8 * w + i)
            if w == 0:
                e(f"v_mul_f32 v{O+2*i}, v124, v{LG}"); e(f"v_mul_f32 v{O+2*i+1}, v125, v{LG}")
            else:
                e(f"v_fma_f32 v{O+2*i}, v124, v{LG+w}, v{O+2*i}"); e(f"v_fma_f32 v{O+2*i+1}, v125, v{LG+w}, v{O+2*i+1}")
    for i in range(8): cvt_pk(Q + i, O + 2 * i, O + 2 * i + 1)
    e("s_movk_i32 s30, 896"); e("v_mul_lo_u32 v27, v27, s30"); e("v_mul_u32_u24 v124, 56, v25")
    e("v_add_u32 v27, v27, v124"); e("v_lshl_add_u32 v27, v23, 5, v27")
    e("s_mul_i32 s29, s26, 112"); e("v_add_u32 v27, s29, v27")
    e(f"v_mov_b32 v124, {OOB}"); e("v_cndmask_b32 v124, v27, v124, vcc")
    e(f"s_mov_b32 s36, {WS_OB}")
    for i in range(4):
        e(f"buffer_store_dwordx2 {vr(Q+2*i,2)}, v{27 if i < 3 else 124}, s[20:23], s36 offen offset:{8*i}")
    lab("K1_END")
    e("s_endpgm")

K2 = NAME + "_k2_kernel"; K3 = NAME + "_k3_kernel"
OS = 912; OT = 64 * OS; WOS = 160; OP_LDS = OT + 448 * WOS

def gen_outproj(name, isA):
    P = "K3" if isA else "K2"
    kernel_header(name)
    e(f"s_cmp_ge_u32 s2, {224 if isA else 256}"); e(f"s_cbranch_scc1 {P}_END")
    e(f"s_load_dwordx2 s[4:5], s[0:1], {16 if isA else 40}")
    e("s_load_dwordx2 s[6:7], s[0:1], 48"); e("s_load_dwordx2 s[8:9], s[0:1], 64")
    e("v_lshrrev_b32 v1, 6, v0"); e("s_nop 0"); e("v_readfirstlane_b32 s27, v1")
    e("s_waitcnt lgkmcnt(0)")
    srd(12, 4, 448 * 896); srd(16, 6, 2048 * 1792); srd(20, 8, WS_END)
    e("v_and_b32 v16, 15, v0"); e("v_bfe_u32 v17, v0, 4, 2")
    if not isA:
        e("s_cmp_lt_u32 s2, 224"); e("s_cbranch_scc1 K2_GEMM")
        e("s_sub_u32 s3, s2, 224"); e("s_lshr_b32 s24, s3, 1"); e("s_and_b32 s25, s3, 1"); e("s_lshl_b32 s25, s25, 9")
        e(f"s_mov_b32 s35, {WS_KVP}"); e(f"s_mov_b32 s36, {WS_ZP}"); e(f"s_mov_b32 s37, {WS_KVZ}")
        e("v_add_u32 v2, s25, v0"); e("v_lshrrev_b32 v3, 5, v2"); e("v_and_b32 v4, 31, v2")
        e("s_lshl_b32 s26, s24, 12"); e("v_lshlrev_b32 v5, 7, v4"); e("v_lshl_add_u32 v5, v3, 2, v5"); e("v_add_u32 v5, s26, v5")
        e("s_lshl_b32 s26, s24, 7"); e("v_lshlrev_b32 v6, 2, v4"); e("v_add_u32 v6, s26, v6")
        for rt in range(16):
            e(f"v_add_u32 v7, {65536*rt}, v5"); e(f"buffer_load_dword v{24+rt}, v7, s[20:23], s35 offen")
            e(f"v_add_u32 v7, {2048*rt}, v6"); e(f"buffer_load_dword v{40+rt}, v7, s[20:23], s36 offen")
        e("s_waitcnt vmcnt(0)")
        for rt in range(1, 16):
            e(f"v_add_f32 v24, v24, v{24+rt}"); e(f"v_add_f32 v40, v40, v{40+rt}")
        e("v_cmp_eq_u32 vcc, 28, v3"); e("s_nop 1"); e("v_cndmask_b32 v24, v24, v40, vcc")
        e("v_mov_b32 v8, 0"); e("v_cmp_lt_u32 vcc, 28, v3"); e("s_nop 1"); e("v_cndmask_b32 v24, v24, v8, vcc")
        e("v_cmp_lt_u32 vcc, 27, v4"); e("s_nop 1"); e("v_cndmask_b32 v24, v24, v8, vcc"); e("s_nop 0")
        cvt_pk(24, 24, 24)
        e("s_lshl_b32 s26, s24, 11"); e("v_lshlrev_b32 v7, 1, v2"); e("v_add_u32 v7, s26, v7")
        e("buffer_store_short v24, v7, s[20:23], s37 offen")
        e(f"s_branch {P}_END")
        lab("K2_GEMM")
    e("s_mul_hi_u32 s24, s2, 0x24924925"); e("s_mul_i32 s25, s24, 7"); e("s_sub_u32 s25, s2, s25"); e("s_lshl_b32 s28, s24, 6")
    e("v_lshrrev_b32 v8, 3, v0"); e("v_and_b32 v9, 7, v0"); e("s_movk_i32 s30, 896")
    e("v_mul_lo_u32 v2, v8, s30"); e("v_lshl_add_u32 v2, v9, 4, v2"); e("s_lshl_b32 s29, s25, 7"); e("v_add_u32 v2, s29, v2")
    e(f"v_mul_u32_u24 v3, {WOS}, v8"); e("v_lshl_add_u32 v3, v9, 4, v3"); e(f"v_add_u32 v3, {OT}, v3")
    for j in range(7):
        e(f"v_add_u32 v4, {64*896*j}, v2"); e(f"buffer_load_dwordx4 {vr(24+4*j,4)}, v4, s[12:15], 0 offen")
    if not isA:
        e(f"s_mov_b32 s36, {WS_OB}"); e("s_mov_b32 s31, 0x4924925")
        for j in range(7):
            e(f"v_add_u32 v4, {512*j}, v0"); e("v_mul_hi_u32 v5, v4, s31"); e("v_mul_u32_u24 v6, 56, v5"); e("v_sub_u32 v6, v4, v6")
            e("v_add_u32 v7, s28, v5"); e("v_mul_lo_u32 v7, v7, s30"); e("v_lshl_add_u32 v7, v6, 4, v7")
            e(f"buffer_load_dwordx4 {vr(52+4*j,4)}, v7, s[20:23], s36 offen")
            e(f"v_mul_u32_u24 v5, {OS}, v5"); e(f"v_lshl_add_u32 v{80+j}, v6, 4, v5")
        e("s_waitcnt vmcnt(0)")
        for j in range(7): e(f"ds_write_b128 v{80+j}, {vr(52+4*j,4)}")
    else:
        e(f"s_mov_b32 s36, {WS_PQA}"); e(f"s_mov_b32 s37, {WS_KVZ}"); e("s_mov_b32 s34, 0x358637bd")
        e("s_and_b32 s31, s27, 3"); e("s_lshr_b32 s32, s27, 2")
        e("s_lshl_b32 s29, s31, 4"); e("s_add_u32 s29, s29, s28")
        e("v_add_u32 v4, s29, v16"); e("v_mul_lo_u32 v4, v4, s30"); e("v_lshl_add_u32 v4, v17, 4, v4")
        e("s_mul_i32 s29, s32, 448"); e("v_add_u32 v4, s29, v4")
        e("v_lshlrev_b32 v5, 6, v16"); e("v_lshl_add_u32 v5, v17, 4, v5"); e("s_lshl_b32 s29, s32, 14"); e("v_add_u32 v5, s29, v5")
        e("s_lshl_b32 s29, s31, 4"); e("v_lshl_add_u32 v6, v17, 2, s29"); e(f"v_mul_u32_u24 v6, {OS}, v6")
        e("v_lshl_add_u32 v6, v16, 1, v6"); e("s_mul_i32 s29, s32, 448"); e("v_add_u32 v6, s29, v6")
        e("v_and_b32 v7, 48, v0"); e("v_or_b32 v7, 12, v7"); e("v_lshlrev_b32 v7, 2, v7")
        for h in range(8):
            e(f"buffer_load_dwordx4 {vr(52+4*h,4)}, v4, s[20:23], s36 offen offset:{56*h}")
            e(f"v_add_u32 v10, {2048*h}, v5")
            e(f"buffer_load_dwordx4 {ar(8*h,4)}, v10, s[20:23], s37 offen")
            e(f"buffer_load_dwordx4 {ar(8*h+4,4)}, v10, s[20:23], s37 offen offset:1024")
        for h in range(8):
            e(f"s_waitcnt vmcnt({3*(7-h)})")
            e(f"v_mfma_f32_16x16x32_bf16 {vr(84+8*h,4)}, {vr(52+4*h,4)}, {ar(8*h,4)}, 0")
            e(f"v_mfma_f32_16x16x32_bf16 {vr(88+8*h,4)}, {vr(52+4*h,4)}, {ar(8*h+4,4)}, 0")
        e("s_nop 7"); e("s_nop 7")
        for h in range(8):
            for i in range(4): e(f"ds_bpermute_b32 v{52+4*h+i}, v7, v{88+8*h+i}")
        for h in range(8):
            e(f"s_waitcnt lgkmcnt({min(15,4*(7-h))})")
            d = 52 + 4 * h
            cvt_pk(10, d, d + 1); cvt_pk(11, d + 2, d + 3)
            unpk_lo(12, 10); unpk_hi(13, 10); unpk_lo(14, 11); unpk_hi(15, 11)
            for i in range(4): e(f"v_add_f32 v{12+i}, s34, v{12+i}")
            cvt_pk(10, 12, 13); cvt_pk(11, 14, 15)
            unpk_lo(12, 10); unpk_hi(13, 10); unpk_lo(14, 11); unpk_hi(15, 11)
            for i in range(4): e(f"v_rcp_f32 v{12+i}, v{12+i}")
            for nb in range(2):
                a_ = 84 + 8 * h + 4 * nb
                cvt_pk(10, a_, a_ + 1); cvt_pk(11, a_ + 2, a_ + 3)
                unpk_lo(18, 10); unpk_hi(19, 10); unpk_lo(20, 11); unpk_hi(21, 11)
                for i in range(4): e(f"v_mul_f32 v{18+i}, v{18+i}, v{12+i}")
                cvt_pk(10, 18, 19); cvt_pk(11, 20, 21)
                o_ = 56 * h + 32 * nb
                if nb == 1:
                    e("s_mov_b32 exec_lo, 0x0fff0fff"); e("s_mov_b32 exec_hi, 0x0fff0fff")
                e(f"ds_write_b16 v6, v10 offset:{o_}"); e(f"ds_write_b16_d16_hi v6, v10 offset:{OS+o_}")
                e(f"ds_write_b16 v6, v11 offset:{2*OS+o_}"); e(f"ds_write_b16_d16_hi v6, v11 offset:{3*OS+o_}")
                if nb == 1:
                    e("s_mov_b64 exec, -1")
    e(f"v_add_u32 v10, {4*64*WOS}, v3")
    for j in range(7):
        e(f"ds_write_b128 v{3 if j < 4 else 10}, {vr(24+4*j,4)} offset:{64*WOS*(j%4)}")
    e("s_waitcnt lgkmcnt(0)"); e("s_barrier")
    e("s_lshr_b32 s29, s27, 1"); e("s_lshl_b32 s29, s29, 4")
    e("v_add_u32 v18, s29, v16"); e(f"v_mul_u32_u24 v18, {OS}, v18"); e("v_lshl_add_u32 v18, v17, 3, v18")
    e("v_lshrrev_b32 v20, 2, v16"); e("v_lshl_add_u32 v20, v17, 2, v20"); e(f"v_mul_u32_u24 v20, {WOS}, v20")
    e("v_and_b32 v21, 3, v16"); e("v_lshl_add_u32 v20, v21, 3, v20")
    e("s_and_b32 s30, s27, 1"); e("s_lshl_b32 s30, s30, 6"); e(f"s_add_u32 s30, s30, {OT}")
    e("v_add_u32 v20, s30, v20"); e(f"v_add_u32 v21, {224*WOS}, v20")
    for i in range(8): e(f"v_mov_b32 v{24+i}, 0")
    for ks in range(14):
        b = 32 + 12 * (ks % 7)
        for h in range(2): e(f"ds_read_b64 {vr(b+2*h,2)}, v18 offset:{64*ks+32*h}")
        for cb in range(2):
            for h in range(2):
                e(f"ds_read_b64_tr_b16 {vr(b+4+4*cb+2*h,2)}, v{20 if ks < 7 else 21} offset:{(32*(ks%7)+16*h)*WOS+32*cb}")
        if ks % 7 == 6:
            for k2 in range(ks - 6, ks + 1):
                b2 = 32 + 12 * (k2 % 7)
                e(f"s_waitcnt lgkmcnt({min(15, 6*(ks-k2))})")
                for cb in range(2):
                    e(f"v_mfma_f32_16x16x32_bf16 {vr(24+4*cb,4)}, {vr(b2,4)}, {vr(b2+4+4*cb,4)}, {vr(24+4*cb,4)}")
    e("s_lshr_b32 s29, s27, 1"); e("s_lshl_b32 s29, s29, 4"); e("s_add_u32 s29, s29, s28")
    e("v_lshl_add_u32 v2, v17, 2, s29"); e("s_movk_i32 s30, 1792"); e("v_mul_lo_u32 v2, v2, s30"); e("v_lshl_add_u32 v2, v16, 1, v2")
    e("s_and_b32 s30, s27, 1"); e("s_lshl_b32 s30, s30, 6"); e("s_lshl_b32 s31, s25, 7"); e("s_add_u32 s30, s30, s31")
    e(f"s_add_u32 s30, s30, {0 if isA else 896}"); e("v_add_u32 v2, s30, v2"); e(f"v_add_u32 v3, {2*1792}, v2")
    e("s_nop 4")
    for cb in range(2):
        a = 24 + 4 * cb
        cvt_pk(4, a, a + 1); cvt_pk(5, a + 2, a + 3)
        e(f"buffer_store_short v4, v2, s[16:19], 0 offen offset:{32*cb}")
        e(f"buffer_store_short_d16_hi v4, v2, s[16:19], 0 offen offset:{32*cb+1792}")
        e(f"buffer_store_short v5, v3, s[16:19], 0 offen offset:{32*cb}")
        e(f"buffer_store_short_d16_hi v5, v3, s[16:19], 0 offen offset:{32*cb+1792}")
    lab(f"{P}_END")
    e("s_endpgm")

def main():
    hdr = open(f"cdna_kernels/{NAME}.s.ref").read().split("\n")
    top = [l for l in hdr if l.startswith(";") and "@launch" not in l]
    top.append(f"; @launch kernel={K1} grid=(256,1,1) block=(512,1,1) lds={K1_LDS}")
    top.append(f"; @launch kernel={K2} grid=(256,1,1) block=(512,1,1) lds={OP_LDS}")
    top.append(f"; @launch kernel={K3} grid=(224,1,1) block=(512,1,1) lds={OP_LDS}")
    L.extend(top)
    L.append('.amdgcn_target "amdgcn-amd-amdhsa--gfx950"'); L.append(".text")
    gen_k1(); gen_outproj(K2, False); gen_outproj(K3, True)
    L.append('.section .rodata,"a"')
    L.append(kd(K1, 256, 132)); L.append(kd(K2, 128, 128)); L.append(kd(K3, 148 + 64, 148))
    open(OUT, "w").write("\n".join(L) + "\n")
main()
```

```python
import sys, os
VAR = os.environ.get("VAR", "")
NAME = "concat_heads__linear_attn_block__sliding_local_dilated__prompt"
OUT = os.environ.get("OUT", f"cdna_kernels/{NAME}.s")

L = []
def e(s=""):
    L.append("    " + s if s and not s.endswith(":") else s)
def lab(s): L.append(s + ":")
def c(s): L.append("    ; " + s)

WS_PQA, WS_OB, WS_KVP, WS_ZP, WS_KVZ, WS_END = 0, 0x200000, 0x400000, 0x500000, 0x600000, 0x700000

def vr(a, n=1):
    return f"v{a}" if n == 1 else f"v[{a}:{a+n-1}]"
def ar(a, n=1):
    return f"a{a}" if n == 1 else f"a[{a}:{a+n-1}]"

def srd(dst, ptr_lo, nbytes):
    e(f"s_mov_b32 s{dst}, s{ptr_lo}")
    e(f"s_and_b32 s{dst+1}, s{ptr_lo+1}, 0xffff")
    e(f"s_mov_b32 s{dst+2}, {nbytes}")
    e(f"s_mov_b32 s{dst+3}, 0x00020000")

def kernel_header(name):
    L.append(".p2align 8")
    L.append(f".globl {name}")
    L.append(f".type {name},@function")
    lab(name)

def kd(name, nvgpr, accum, nsgpr=96):
    return f""".p2align 6
.amdhsa_kernel {name}
  .amdhsa_next_free_vgpr {nvgpr}
  .amdhsa_next_free_sgpr {nsgpr}
  .amdhsa_accum_offset {accum}
  .amdhsa_group_segment_fixed_size 0
  .amdhsa_kernarg_size 72
  .amdhsa_user_sgpr_count 2
  .amdhsa_user_sgpr_kernarg_segment_ptr 1
  .amdhsa_system_sgpr_workgroup_id_x 1
.end_amdhsa_kernel"""

def cvt_pk(dst, a, b): e(f"v_cvt_pk_bf16_f32 v{dst}, v{a}, v{b}")
def unpk_lo(dst, src): e(f"v_lshlrev_b32 v{dst}, 16, v{src}")
def unpk_hi(dst, src): e(f"v_and_b32 v{dst}, 0xffff0000, v{src}")


K1 = NAME + "_k1_kernel"
XS = 144; XBUF = 144 * XS; WSr = 352; WBUF = 64 * WSr; BUF = XBUF + WBUF; K1_LDS = 2 * BUF; TS = 352
OOB = "0x7fff0000"

def gen_k1():
    kernel_header(K1)
    e("s_cmp_ge_u32 s2, 256"); e("s_cbranch_scc1 K1_END")
    if "xcd" in VAR:
        e("s_and_b32 s24, s2, 1"); e("s_bfe_u32 s25, s2, 0x20001"); e("s_lshl_b32 s25, s25, 2")
        e("s_bfe_u32 s26, s2, 0x20003"); e("s_add_u32 s25, s25, s26"); e("s_lshr_b32 s26, s2, 5")
    else:
        e("s_lshr_b32 s24, s2, 7"); e("s_lshr_b32 s25, s2, 3"); e("s_and_b32 s25, s25, 15"); e("s_and_b32 s26, s2, 7")
    if VAR == "loadsame": e("s_mov_b32 s24, 0"); e("s_mov_b32 s25, 1"); e("s_mov_b32 s26, 0")
    if VAR == "loadx8": e("s_mov_b32 s26, 0")
    e("s_mul_i32 s29, s24, 24"); e("s_add_u32 s30, s0, s29"); e("s_addc_u32 s31, s1, 0")
    e("s_load_dwordx4 s[4:7], s[30:31], 0"); e("s_load_dwordx2 s[8:9], s[0:1], 64")
    e("v_lshrrev_b32 v1, 6, v0"); e("s_nop 0"); e("v_readfirstlane_b32 s27, v1")
    e("s_lshl_b32 s28, s25, 7")
    e("s_waitcnt lgkmcnt(0)")
    srd(12, 4, 1835008); srd(16, 6, 448 * 2688); srd(20, 8, WS_END)
    e("v_lshrrev_b32 v8, 3, v0"); e("v_and_b32 v9, 7, v0")
    e("s_sub_u32 s29, s28, 16"); e("v_add_u32 v10, s29, v8"); e("s_movk_i32 s30, 896")
    e("v_mul_lo_u32 v2, v10, s30"); e("v_lshl_add_u32 v2, v9, 4, v2")
    e(f"v_add_u32 v3, {64*896}, v2"); e(f"v_add_u32 v4, {128*896}, v2")
    e("s_cmp_lt_u32 s27, 2"); e("s_cbranch_scc1 K1_V4OK"); e(f"v_mov_b32 v4, {OOB}"); lab("K1_V4OK")
    e("v_mul_u32_u24 v7, 144, v8"); e("v_lshl_add_u32 v7, v9, 4, v7")
    e("s_mul_i32 s29, s26, 112"); e("s_movk_i32 s30, 2688")
    e("v_mul_lo_u32 v11, v8, s30"); e("v_lshl_add_u32 v11, v9, 4, v11"); e("v_add_u32 v11, s29, v11")
    e("v_cmp_eq_u32 vcc, 7, v9"); e(f"v_mov_b32 v12, {OOB}"); e("s_nop 1")
    e("v_cndmask_b32 v11, v11, v12, vcc")
    e("v_mul_u32_u24 v13, 352, v8"); e("v_lshl_add_u32 v14, v9, 4, v13"); e("v_add_u32 v13, 336, v13"); e("s_nop 0")
    e("v_cndmask_b32 v13, v14, v13, vcc")
    e("v_mov_b32 v14, 0"); e("v_mov_b32 v15, 112"); e("v_cndmask_b32 v14, v15, v14, vcc")
    e("v_add_u32 v15, v13, v14"); e("v_add_u32 v14, v15, v14")
    for r_ in (13, 14, 15): e(f"v_add_u32 v{r_}, {XBUF}, v{r_}")
    e("v_and_b32 v16, 15, v0"); e("v_bfe_u32 v17, v0, 4, 2")
    e("s_lshr_b32 s38, s27, 1"); e("s_and_b32 s39, s27, 1")
    e("s_lshl_b32 s29, s38, 5"); e("s_add_u32 s29, s29, 16")
    e("v_add_u32 v18, s29, v16"); e("v_mul_u32_u24 v18, 144, v18"); e("v_lshl_add_u32 v18, v17, 3, v18")
    e("v_mul_u32_u24 v19, 144, v16"); e("v_lshl_add_u32 v19, v17, 3, v19")
    e("v_lshrrev_b32 v20, 2, v16"); e("v_lshl_add_u32 v20, v17, 2, v20"); e("v_mul_u32_u24 v20, 352, v20")
    e("v_and_b32 v21, 3, v16"); e("v_lshl_add_u32 v20, v21, 3, v20"); e(f"v_add_u32 v20, {XBUF}, v20")
    e("s_lshl_b32 s29, s27, 5"); e("s_add_u32 s29, s29, 96"); e("v_add_u32 v21, s29, v20")
    e("s_mul_i32 s29, s39, 192"); e("v_add_u32 v20, s29, v20")
    for i in range(52): e(f"v_accvgpr_write_b32 a{i}, 0")
    F = [24, 64]
    SB = 52
    if "nostag" in VAR: e("s_mov_b32 s29, 0")
    else:
        e("s_add_u32 s29, s25, s26")
        for _ in range(3): e("s_cmp_ge_u32 s29, 7"); e("s_cselect_b32 s30, 7, 0"); e("s_sub_u32 s29, s29, s30")
    for i in range(7):
        e(f"s_lshl_b32 s{60+i}, s29, 7"); e(f"s_mul_i32 s{70+i}, s29, {64*2688}")
        e("s_add_u32 s29, s29, 1"); e("s_cmp_ge_u32 s29, 7"); e("s_cselect_b32 s30, 7, 0"); e("s_sub_u32 s29, s29, s30")
    def gload(cn):
        S = SB + 24 * (cn % 3)
        for j in range(3):
            e(f"buffer_load_dwordx4 {ar(S+4*j,4)}, v{2+j}, s[12:15], s{60+cn} offen")
        for p in range(3):
            e(f"buffer_load_dwordx4 {ar(S+12+4*p,4)}, v11, s[16:19], s{70+cn} offen offset:{896*p}")
    def lwrite_list(cn):
        S = SB + 24 * (cn % 3); b = (cn & 1) * BUF
        r = [[f"ds_write_b128 v7, {ar(S+4*j,4)} offset:{b+64*XS*j}"] for j in range(2)]
        r.append(["s_cmp_ge_u32 s27, 2", f"s_cbranch_scc1 K1_SKW{cn}", f"ds_write_b128 v7, {ar(S+8,4)} offset:{b+128*XS}", f"K1_SKW{cn}:"])
        r += [[f"ds_write_b128 v{va}, {ar(S+12+4*p,4)} offset:{b}"] for p, va in enumerate((13, 15, 14))]
        return r
    def emit(lst):
        for x in lst:
            if x.endswith(":"): lab(x[:-1])
            else: e(x)
    def fread_list(cn, ks, f):
        b = (cn & 1) * BUF; base = F[f]; r = []
        for rb in range(2):
            for h in range(2): r.append(f"ds_read_b64 {vr(base+4*rb+2*h,2)}, v18 offset:{b+16*XS*rb+64*ks+32*h}")
        for cb in range(6):
            for h in range(2): r.append(f"ds_read_b64_tr_b16 {vr(base+16+4*cb+2*h,2)}, v20 offset:{b+(32*ks+16*h)*WSr+32*cb}")
        for h in range(2): r.append(f"ds_read_b64 {vr(base+8+2*h,2)}, v19 offset:{b+64*ks+32*h}")
        for h in range(2): r.append(f"ds_read_b64_tr_b16 {vr(base+12+2*h,2)}, v21 offset:{b+(32*ks+16*h)*WSr}")
        return r
    def mfma_list(f):
        base = F[f]; r = []
        for cb in range(6):
            for rb in range(2):
                r.append((4 + 2 * (cb + 1), f"v_mfma_f32_16x16x32_bf16 {ar(4*(rb*6+cb),4)}, {vr(base+4*rb,4)}, {vr(base+16+4*cb,4)}, {ar(4*(rb*6+cb),4)}"))
        r.append((20, f"v_mfma_f32_16x16x32_bf16 a[48:51], {vr(base+8,4)}, {vr(base+12,4)}, a[48:51]"))
        return r
    gload(0); gload(1); gload(2)
    if VAR.startswith("load"):
        for cn in range(3, 7): gload(cn)
        e("s_waitcnt vmcnt(0)"); e("s_branch K1_END")
    e("s_waitcnt vmcnt(12)")
    for x in lwrite_list(0): emit(x)
    e("s_waitcnt lgkmcnt(0)"); e("s_barrier")
    gload(3)
    if VAR == "proonly": e("s_branch K1_END")
    for cn in range(7):
        for x in fread_list(cn, 0, 0): e(x)
        nxt = fread_list(cn, 1, 1)
        issued = 0
        for need, ins in mfma_list(0):
            e(f"s_waitcnt lgkmcnt({min(15, 20-need+issued)})"); e(ins)
            for _ in range(2):
                if nxt: e(nxt.pop(0)); issued += 1
        while nxt: e(nxt.pop(0))
        wl = lwrite_list(cn + 1) if cn < 6 else []
        if cn < 6: e(f"s_waitcnt vmcnt({6*(min(6,cn+3)-(cn+1))})")
        first = True
        for need, ins in mfma_list(1):
            e(f"s_waitcnt lgkmcnt({min(15, 20-need)})" if first or True else ""); e(ins)
        for x in wl: emit(x)
        e("s_waitcnt lgkmcnt(0)"); e("s_barrier")
        if cn + 4 <= 6: gload(cn + 4)
    if VAR == "noepi": e("s_branch K1_END")
    e("s_nop 7"); e("s_nop 7")
    e("s_lshl_b32 s29, s38, 5"); e("s_add_u32 s29, s29, 16")
    e("v_lshl_add_u32 v22, v17, 2, s29"); e(f"v_mul_u32_u24 v22, {TS}, v22"); e("v_lshl_add_u32 v22, v16, 1, v22")
    e("s_mul_i32 s29, s39, 192"); e("v_add_u32 v22, s29, v22")
    e("v_lshlrev_b32 v23, 2, v17"); e(f"v_mul_u32_u24 v23, {TS}, v23"); e("v_lshl_add_u32 v23, v16, 1, v23")
    e("s_lshl_b32 s29, s27, 5"); e("v_add_u32 v23, s29, v23")
    e("s_mov_b32 s33, 0x3fb8aa3b"); e("s_mov_b32 s34, 0x358637bd")
    def store_block(a, vaddr, off, phi):
        for i in range(4): e(f"v_accvgpr_read_b32 v{24+i}, a{a+i}")
        e("s_nop 0")
        cvt_pk(28, 24, 25); cvt_pk(29, 26, 27)
        if phi:
            unpk_lo(24, 28); unpk_hi(25, 28); unpk_lo(26, 29); unpk_hi(27, 29)
            for i in range(4): e(f"v_mul_f32 v{30+i}, s33, v{24+i}")
            for i in range(4): e(f"v_exp_f32 v{30+i}, v{30+i}")
            for i in range(4): e(f"v_cmp_lt_f32 s[{40+2*i}:{41+2*i}], 0, v{24+i}")
            for i in range(4): e(f"v_add_f32 v{34+i}, 1.0, v{24+i}")
            for i in range(4): e(f"v_cndmask_b32 v{24+i}, v{30+i}, v{34+i}, s[{40+2*i}:{41+2*i}]")
            cvt_pk(28, 24, 25); cvt_pk(29, 26, 27)
            unpk_lo(24, 28); unpk_hi(25, 28); unpk_lo(26, 29); unpk_hi(27, 29)
            for i in range(4): e(f"v_add_f32 v{24+i}, s34, v{24+i}")
            cvt_pk(28, 24, 25); cvt_pk(29, 26, 27)
        e(f"ds_write_b16 v{vaddr}, v28 offset:{off}")
        e(f"ds_write_b16_d16_hi v{vaddr}, v28 offset:{off+TS}")
        e(f"ds_write_b16 v{vaddr}, v29 offset:{off+2*TS}")
        e(f"ds_write_b16_d16_hi v{vaddr}, v29 offset:{off+3*TS}")
    e("s_cmp_eq_u32 s24, 0"); e("s_cbranch_scc0 K1_EPB")
    e("s_cmp_eq_u32 s39, 0"); e("s_cbranch_scc0 K1_EPA1")
    for rb in range(2):
        for cb in range(6): store_block(4 * (rb * 6 + cb), 22, 16 * TS * rb + 32 * cb, True)
    e("s_branch K1_EPD")
    lab("K1_EPA1")
    for rb in range(2):
        for cb in range(5): store_block(4 * (rb * 6 + cb), 22, 16 * TS * rb + 32 * cb, cb == 0)
    e("s_branch K1_EPD")
    lab("K1_EPB")
    for rb in range(2):
        for cb in range(5): store_block(4 * (rb * 6 + cb), 22, 16 * TS * rb + 32 * cb, False)
    store_block(48, 23, 96, False)
    e("s_cmp_eq_u32 s39, 0"); e("s_cbranch_scc0 K1_EPD")
    for rb in range(2): store_block(4 * (rb * 6 + 5), 22, 16 * TS * rb + 32 * 5, False)
    lab("K1_EPD")
    e("s_waitcnt lgkmcnt(0)"); e("s_barrier")
    if VAR == "noatt": e("s_branch K1_END")
    e("s_cmp_eq_u32 s24, 0"); e("s_cbranch_scc0 K1_ATTB")
    for j in range(2):
        e(f"v_add_u32 v24, {16+64*j}, v8"); e(f"v_mul_u32_u24 v24, {TS}, v24"); e("v_lshl_add_u32 v24, v9, 4, v24")
        e(f"ds_read_b128 {vr(28+4*j,4)}, v24")
    e("v_add_u32 v24, s28, v8"); e("s_movk_i32 s30, 896"); e("v_mul_lo_u32 v24, v24, s30")
    e("v_lshl_add_u32 v24, v9, 4, v24"); e("s_mul_i32 s29, s26, 112"); e("v_add_u32 v24, s29, v24")
    e("v_cmp_eq_u32 vcc, 7, v9"); e(f"v_mov_b32 v25, {OOB}"); e("s_nop 1"); e("v_cndmask_b32 v24, v24, v25, vcc")
    e("s_waitcnt lgkmcnt(0)")
    for j in range(2):
        e(f"v_add_u32 v25, {64*896*j}, v24")
        e(f"buffer_store_dwordx4 {vr(28+4*j,4)}, v25, s[20:23], 0 offen")
    e("s_cmp_ge_u32 s27, 4"); e("s_cbranch_scc1 K1_END")
    e("v_lshrrev_b32 v24, 2, v16"); e("v_lshl_add_u32 v24, v17, 2, v24"); e("v_add_u32 v24, 16, v24")
    e(f"v_mul_u32_u24 v24, {TS}, v24"); e("v_and_b32 v25, 3, v16"); e("v_lshl_add_u32 v24, v25, 3, v24")
    e("s_lshr_b32 s29, s27, 1"); e("s_and_b32 s30, s27, 1"); e("s_mul_i32 s31, s29, 56")
    e("s_lshl_b32 s32, s30, 5"); e("s_add_u32 s32, s32, s31"); e("s_add_u32 s32, s32, 112"); e("s_add_u32 s31, s31, 224")
    e("v_add_u32 v25, s32, v24"); e("v_add_u32 v26, s31, v24")
    for i in range(12): e(f"v_accvgpr_write_b32 a{i}, 0")
    for i in range(4): e(f"v_mov_b32 v{76+i}, 0x3f803f80")
    for ks in range(4):
        o = 28 + 12 * ks
        for h in range(2): e(f"ds_read_b64_tr_b16 {vr(o+2*h,2)}, v25 offset:{(32*ks+16*h)*TS}")
        for nb in range(2):
            for h in range(2): e(f"ds_read_b64_tr_b16 {vr(o+4+4*nb+2*h,2)}, v26 offset:{(32*ks+16*h)*TS+32*nb}")
    for ks in range(4):
        o = 28 + 12 * ks
        e(f"s_waitcnt lgkmcnt({min(15,6*(3-ks))})")
        e(f"v_mfma_f32_16x16x32_bf16 a[0:3], {vr(o,4)}, {vr(o+4,4)}, a[0:3]")
        e(f"v_mfma_f32_16x16x32_bf16 a[4:7], {vr(o,4)}, {vr(o+8,4)}, a[4:7]")
        e(f"v_mfma_f32_16x16x32_bf16 a[8:11], {vr(o,4)}, v[76:79], a[8:11]")
    e("s_lshl_b32 s31, s26, 1"); e("s_add_u32 s31, s31, s29"); e("s_lshl_b32 s32, s25, 4"); e("s_add_u32 s31, s31, s32")
    e("s_lshl_b32 s32, s31, 12"); e("s_lshl_b32 s33, s31, 7"); e("s_lshl_b32 s34, s30, 4")
    e("v_lshl_add_u32 v24, v17, 2, s34"); e("v_lshlrev_b32 v25, 7, v24"); e("v_lshl_add_u32 v25, v16, 2, v25")
    e("v_add_u32 v25, s32, v25"); e("v_lshlrev_b32 v26, 2, v24"); e("v_add_u32 v26, s33, v26")
    e(f"s_mov_b32 s35, {WS_KVP}"); e(f"s_mov_b32 s36, {WS_ZP}")
    e("s_nop 7")
    for i in range(12): e(f"v_accvgpr_read_b32 v{28+i}, a{i}")
    e("s_nop 0")
    for nb in range(2):
        for i in range(4): e(f"buffer_store_dword v{28+4*nb+i}, v25, s[20:23], s35 offen offset:{128*i + 64*nb}")
    for i in range(4): e(f"buffer_store_dword v{36+i}, v26, s[20:23], s36 offen offset:{4*i}")
    e("s_branch K1_END")
    lab("K1_ATTB")
    e("v_lshrrev_b32 v24, 2, v0"); e("v_bfe_u32 v25, v0, 1, 1"); e("v_and_b32 v23, 1, v0")
    e("v_add_u32 v26, 2, v24"); e(f"v_mul_u32_u24 v26, {TS}, v26"); e("v_mul_u32_u24 v27, 56, v25")
    e("v_add_u32 v26, v26, v27"); e("v_lshl_add_u32 v26, v23, 5, v26")
    Q, KV, LG, O = 28, 36, 100, 108
    for i in range(4): e(f"ds_read_b64 {vr(Q+2*i,2)}, v26 offset:{14*TS+8*i}")
    for w in range(8):
        for i in range(4): e(f"ds_read_b64 {vr(KV+8*w+2*i,2)}, v26 offset:{(14-2*w)*TS+112+8*i}")
    e("v_add_u32 v27, s28, v24")
    e("s_mov_b32 s33, 0x3e4184d8"); e("s_mov_b32 s34, 0xce6e6b28"); e("s_mov_b32 s35, 0x3fb8aa3b")
    e("v_cmp_eq_u32 vcc, 1, v23"); e("v_mov_b32 v124, 0")
    e("s_waitcnt lgkmcnt(15)")
    e(f"v_cndmask_b32 v{Q+6}, v{Q+6}, v124, vcc"); e(f"v_cndmask_b32 v{Q+7}, v{Q+7}, v124, vcc")
    for w in range(8):
        e(f"s_waitcnt lgkmcnt({min(15,4*(7-w))})")
        e(f"v_dot2_f32_bf16 v{LG+w}, v{Q}, v{KV+8*w}, 0")
        for i in range(1, 8): e(f"v_dot2_f32_bf16 v{LG+w}, v{Q+i}, v{KV+8*w+i}, v{LG+w}")
    for w in range(8):
        for i in range(4): e(f"ds_read_b64 {vr(KV+8*w+2*i,2)}, v26 offset:{(14-2*w)*TS+224+8*i}")
    e("s_nop 1")
    for w in range(8):
        e(f"v_add_f32_dpp v{O+w}, v{LG+w}, v{LG+w} quad_perm:[1,0,3,2] row_mask:0xf bank_mask:0xf")
    for w in range(0, 8, 2):
        cvt_pk(124, O + w, O + w + 1); unpk_lo(LG + w, 124); unpk_hi(LG + w + 1, 124)
        e(f"v_mul_f32 v{LG+w}, s33, v{LG+w}"); e(f"v_mul_f32 v{LG+w+1}, s33, v{LG+w+1}")
        cvt_pk(124, LG + w, LG + w + 1); unpk_lo(LG + w, 124); unpk_hi(LG + w + 1, 124)
    e("v_mov_b32 v125, s34")
    for w in range(1, 8): e(f"v_cmp_gt_u32 s[{40+2*w}:{41+2*w}], {2*w}, v27")
    e("s_nop 1")
    for w in range(1, 8): e(f"v_cndmask_b32 v{LG+w}, v{LG+w}, v125, s[{40+2*w}:{41+2*w}]")
    e(f"v_max3_f32 v124, v{LG}, v{LG+1}, v{LG+2}"); e(f"v_max3_f32 v125, v{LG+3}, v{LG+4}, v{LG+5}")
    e(f"v_max3_f32 v124, v124, v{LG+6}, v{LG+7}"); e("v_max_f32 v124, v124, v125")
    for w in range(8): e(f"v_sub_f32 v{LG+w}, v{LG+w}, v124")
    for w in range(8): e(f"v_mul_f32 v{LG+w}, s35, v{LG+w}")
    for w in range(8): e(f"v_exp_f32 v{LG+w}, v{LG+w}")
    e("s_nop 0")
    e(f"v_add_f32 v124, v{LG}, v{LG+1}"); e(f"v_add_f32 v125, v{LG+2}, v{LG+3}")
    e(f"v_add_f32 v126, v{LG+4}, v{LG+5}"); e(f"v_add_f32 v127, v{LG+6}, v{LG+7}")
    e("v_add_f32 v124, v124, v125"); e("v_add_f32 v126, v126, v127"); e("v_add_f32 v124, v124, v126")
    e("v_rcp_f32 v124, v124"); e("s_nop 0")
    for w in range(8): e(f"v_mul_f32 v{LG+w}, v124, v{LG+w}")
    for w in range(0, 8, 2):
        cvt_pk(124, LG + w, LG + w + 1); unpk_lo(LG + w, 124); unpk_hi(LG + w + 1, 124)
    for w in range(8):
        e(f"s_waitcnt lgkmcnt({min(15,4*(7-w))})")
        for i in range(8):
            unpk_lo(124, KV + 8 * w + i); unpk_hi(125, KV + 8 * w + i)
            if w == 0:
                e(f"v_mul_f32 v{O+2*i}, v124, v{LG}"); e(f"v_mul_f32 v{O+2*i+1}, v125, v{LG}")
            else:
                e(f"v_fma_f32 v{O+2*i}, v124, v{LG+w}, v{O+2*i}"); e(f"v_fma_f32 v{O+2*i+1}, v125, v{LG+w}, v{O+2*i+1}")
    for i in range(8): cvt_pk(Q + i, O + 2 * i, O + 2 * i + 1)
    e("s_movk_i32 s30, 896"); e("v_mul_lo_u32 v27, v27, s30"); e("v_mul_u32_u24 v124, 56, v25")
    e("v_add_u32 v27, v27, v124"); e("v_lshl_add_u32 v27, v23, 5, v27")
    e("s_mul_i32 s29, s26, 112"); e("v_add_u32 v27, s29, v27")
    e(f"v_mov_b32 v124, {OOB}"); e("v_cndmask_b32 v124, v27, v124, vcc")
    e(f"s_mov_b32 s36, {WS_OB}")
    for i in range(4):
        e(f"buffer_store_dwordx2 {vr(Q+2*i,2)}, v{27 if i < 3 else 124}, s[20:23], s36 offen offset:{8*i}")
    lab("K1_END")
    e("s_endpgm")

K2 = NAME + "_k2_kernel"; K3 = NAME + "_k3_kernel"
OS = 912; OT = 64 * OS; WOS = 160; OP_LDS = OT + 448 * WOS

def gen_outproj(name, isA):
    P = "K3" if isA else "K2"
    kernel_header(name)
    e(f"s_cmp_ge_u32 s2, {224 if isA else 256}"); e(f"s_cbranch_scc1 {P}_END")
    e(f"s_load_dwordx2 s[4:5], s[0:1], {16 if isA else 40}")
    e("s_load_dwordx2 s[6:7], s[0:1], 48"); e("s_load_dwordx2 s[8:9], s[0:1], 64")
    e("v_lshrrev_b32 v1, 6, v0"); e("s_nop 0"); e("v_readfirstlane_b32 s27, v1")
    e("s_waitcnt lgkmcnt(0)")
    srd(12, 4, 448 * 896); srd(16, 6, 2048 * 1792); srd(20, 8, WS_END)
    e("v_and_b32 v16, 15, v0"); e("v_bfe_u32 v17, v0, 4, 2")
    if not isA:
        e("s_cmp_lt_u32 s2, 224"); e("s_cbranch_scc1 K2_GEMM")
        e("s_sub_u32 s3, s2, 224"); e("s_lshr_b32 s24, s3, 1"); e("s_and_b32 s25, s3, 1"); e("s_lshl_b32 s25, s25, 9")
        e(f"s_mov_b32 s35, {WS_KVP}"); e(f"s_mov_b32 s36, {WS_ZP}"); e(f"s_mov_b32 s37, {WS_KVZ}")
        e("v_add_u32 v2, s25, v0"); e("v_lshrrev_b32 v3, 5, v2"); e("v_and_b32 v4, 31, v2")
        e("s_lshl_b32 s26, s24, 12"); e("v_lshlrev_b32 v5, 7, v4"); e("v_lshl_add_u32 v5, v3, 2, v5"); e("v_add_u32 v5, s26, v5")
        e("s_lshl_b32 s26, s24, 7"); e("v_lshlrev_b32 v6, 2, v4"); e("v_add_u32 v6, s26, v6")
        for rt in range(16):
            e(f"v_add_u32 v7, {65536*rt}, v5"); e(f"buffer_load_dword v{24+rt}, v7, s[20:23], s35 offen")
            e(f"v_add_u32 v7, {2048*rt}, v6"); e(f"buffer_load_dword v{40+rt}, v7, s[20:23], s36 offen")
        e("s_waitcnt vmcnt(0)")
        for rt in range(1, 16):
            e(f"v_add_f32 v24, v24, v{24+rt}"); e(f"v_add_f32 v40, v40, v{40+rt}")
        e("v_cmp_eq_u32 vcc, 28, v3"); e("s_nop 1"); e("v_cndmask_b32 v24, v24, v40, vcc")
        e("v_mov_b32 v8, 0"); e("v_cmp_lt_u32 vcc, 28, v3"); e("s_nop 1"); e("v_cndmask_b32 v24, v24, v8, vcc")
        e("v_cmp_lt_u32 vcc, 27, v4"); e("s_nop 1"); e("v_cndmask_b32 v24, v24, v8, vcc"); e("s_nop 0")
        cvt_pk(24, 24, 24)
        e("s_lshl_b32 s26, s24, 11"); e("v_lshlrev_b32 v7, 1, v2"); e("v_add_u32 v7, s26, v7")
        e("buffer_store_short v24, v7, s[20:23], s37 offen")
        e(f"s_branch {P}_END")
        lab("K2_GEMM")
    e("s_mul_hi_u32 s24, s2, 0x24924925"); e("s_mul_i32 s25, s24, 7"); e("s_sub_u32 s25, s2, s25"); e("s_lshl_b32 s28, s24, 6")
    e("v_lshrrev_b32 v8, 3, v0"); e("v_and_b32 v9, 7, v0"); e("s_movk_i32 s30, 896")
    e("v_mul_lo_u32 v2, v8, s30"); e("v_lshl_add_u32 v2, v9, 4, v2"); e("s_lshl_b32 s29, s25, 7"); e("v_add_u32 v2, s29, v2")
    e(f"v_mul_u32_u24 v3, {WOS}, v8"); e("v_lshl_add_u32 v3, v9, 4, v3"); e(f"v_add_u32 v3, {OT}, v3")
    for j in range(7):
        e(f"v_add_u32 v4, {64*896*j}, v2"); e(f"buffer_load_dwordx4 {vr(24+4*j,4)}, v4, s[12:15], 0 offen")
    if not isA:
        e(f"s_mov_b32 s36, {WS_OB}"); e("s_mov_b32 s31, 0x4924925")
        for j in range(7):
            e(f"v_add_u32 v4, {512*j}, v0"); e("v_mul_hi_u32 v5, v4, s31"); e("v_mul_u32_u24 v6, 56, v5"); e("v_sub_u32 v6, v4, v6")
            e("v_add_u32 v7, s28, v5"); e("v_mul_lo_u32 v7, v7, s30"); e("v_lshl_add_u32 v7, v6, 4, v7")
            e(f"buffer_load_dwordx4 {vr(52+4*j,4)}, v7, s[20:23], s36 offen")
            e(f"v_mul_u32_u24 v5, {OS}, v5"); e(f"v_lshl_add_u32 v{80+j}, v6, 4, v5")
        e("s_waitcnt vmcnt(0)")
        for j in range(7): e(f"ds_write_b128 v{80+j}, {vr(52+4*j,4)}")
    else:
        e(f"s_mov_b32 s36, {WS_PQA}"); e(f"s_mov_b32 s37, {WS_KVZ}"); e("s_mov_b32 s34, 0x358637bd")
        e("s_and_b32 s31, s27, 3"); e("s_lshr_b32 s32, s27, 2")
        e("s_lshl_b32 s29, s31, 4"); e("s_add_u32 s29, s29, s28")
        e("v_add_u32 v4, s29, v16"); e("v_mul_lo_u32 v4, v4, s30"); e("v_lshl_add_u32 v4, v17, 4, v4")
        e("s_mul_i32 s29, s32, 448"); e("v_add_u32 v4, s29, v4")
        e("v_lshlrev_b32 v5, 6, v16"); e("v_lshl_add_u32 v5, v17, 4, v5"); e("s_lshl_b32 s29, s32, 14"); e("v_add_u32 v5, s29, v5")
        e("s_lshl_b32 s29, s31, 4"); e("v_lshl_add_u32 v6, v17, 2, s29"); e(f"v_mul_u32_u24 v6, {OS}, v6")
        e("v_lshl_add_u32 v6, v16, 1, v6"); e("s_mul_i32 s29, s32, 448"); e("v_add_u32 v6, s29, v6")
        e("v_and_b32 v7, 48, v0"); e("v_or_b32 v7, 12, v7"); e("v_lshlrev_b32 v7, 2, v7")
        for h in range(8):
            e(f"buffer_load_dwordx4 {vr(52+4*h,4)}, v4, s[20:23], s36 offen offset:{56*h}")
            e(f"v_add_u32 v10, {2048*h}, v5")
            e(f"buffer_load_dwordx4 {ar(8*h,4)}, v10, s[20:23], s37 offen")
            e(f"buffer_load_dwordx4 {ar(8*h+4,4)}, v10, s[20:23], s37 offen offset:1024")
        for h in range(8):
            e(f"s_waitcnt vmcnt({3*(7-h)})")
            e(f"v_mfma_f32_16x16x32_bf16 {vr(84+8*h,4)}, {vr(52+4*h,4)}, {ar(8*h,4)}, 0")
            e(f"v_mfma_f32_16x16x32_bf16 {vr(88+8*h,4)}, {vr(52+4*h,4)}, {ar(8*h+4,4)}, 0")
        e("s_nop 7"); e("s_nop 7")
        for h in range(8):
            for i in range(4): e(f"ds_bpermute_b32 v{52+4*h+i}, v7, v{88+8*h+i}")
        for h in range(8):
            e(f"s_waitcnt lgkmcnt({min(15,4*(7-h))})")
            d = 52 + 4 * h
            cvt_pk(10, d, d + 1); cvt_pk(11, d + 2, d + 3)
            unpk_lo(12, 10); unpk_hi(13, 10); unpk_lo(14, 11); unpk_hi(15, 11)
            for i in range(4): e(f"v_add_f32 v{12+i}, s34, v{12+i}")
            cvt_pk(10, 12, 13); cvt_pk(11, 14, 15)
            unpk_lo(12, 10); unpk_hi(13, 10); unpk_lo(14, 11); unpk_hi(15, 11)
            for i in range(4): e(f"v_rcp_f32 v{12+i}, v{12+i}")
            for nb in range(2):
                a_ = 84 + 8 * h + 4 * nb
                cvt_pk(10, a_, a_ + 1); cvt_pk(11, a_ + 2, a_ + 3)
                unpk_lo(18, 10); unpk_hi(19, 10); unpk_lo(20, 11); unpk_hi(21, 11)
                for i in range(4): e(f"v_mul_f32 v{18+i}, v{18+i}, v{12+i}")
                cvt_pk(10, 18, 19); cvt_pk(11, 20, 21)
                o_ = 56 * h + 32 * nb
                if nb == 1:
                    e("s_mov_b32 exec_lo, 0x0fff0fff"); e("s_mov_b32 exec_hi, 0x0fff0fff")
                e(f"ds_write_b16 v6, v10 offset:{o_}"); e(f"ds_write_b16_d16_hi v6, v10 offset:{OS+o_}")
                e(f"ds_write_b16 v6, v11 offset:{2*OS+o_}"); e(f"ds_write_b16_d16_hi v6, v11 offset:{3*OS+o_}")
                if nb == 1:
                    e("s_mov_b64 exec, -1")
    e(f"v_add_u32 v10, {4*64*WOS}, v3")
    for j in range(7):
        e(f"ds_write_b128 v{3 if j < 4 else 10}, {vr(24+4*j,4)} offset:{64*WOS*(j%4)}")
    e("s_waitcnt lgkmcnt(0)"); e("s_barrier")
    e("s_lshr_b32 s29, s27, 1"); e("s_lshl_b32 s29, s29, 4")
    e("v_add_u32 v18, s29, v16"); e(f"v_mul_u32_u24 v18, {OS}, v18"); e("v_lshl_add_u32 v18, v17, 3, v18")
    e("v_lshrrev_b32 v20, 2, v16"); e("v_lshl_add_u32 v20, v17, 2, v20"); e(f"v_mul_u32_u24 v20, {WOS}, v20")
    e("v_and_b32 v21, 3, v16"); e("v_lshl_add_u32 v20, v21, 3, v20")
    e("s_and_b32 s30, s27, 1"); e("s_lshl_b32 s30, s30, 6"); e(f"s_add_u32 s30, s30, {OT}")
    e("v_add_u32 v20, s30, v20"); e(f"v_add_u32 v21, {224*WOS}, v20")
    for i in range(8): e(f"v_mov_b32 v{24+i}, 0")
    for ks in range(14):
        b = 32 + 12 * (ks % 7)
        for h in range(2): e(f"ds_read_b64 {vr(b+2*h,2)}, v18 offset:{64*ks+32*h}")
        for cb in range(2):
            for h in range(2):
                e(f"ds_read_b64_tr_b16 {vr(b+4+4*cb+2*h,2)}, v{20 if ks < 7 else 21} offset:{(32*(ks%7)+16*h)*WOS+32*cb}")
        if ks % 7 == 6:
            for k2 in range(ks - 6, ks + 1):
                b2 = 32 + 12 * (k2 % 7)
                e(f"s_waitcnt lgkmcnt({min(15, 6*(ks-k2))})")
                for cb in range(2):
                    e(f"v_mfma_f32_16x16x32_bf16 {vr(24+4*cb,4)}, {vr(b2,4)}, {vr(b2+4+4*cb,4)}, {vr(24+4*cb,4)}")
    e("s_lshr_b32 s29, s27, 1"); e("s_lshl_b32 s29, s29, 4"); e("s_add_u32 s29, s29, s28")
    e("v_lshl_add_u32 v2, v17, 2, s29"); e("s_movk_i32 s30, 1792"); e("v_mul_lo_u32 v2, v2, s30"); e("v_lshl_add_u32 v2, v16, 1, v2")
    e("s_and_b32 s30, s27, 1"); e("s_lshl_b32 s30, s30, 6"); e("s_lshl_b32 s31, s25, 7"); e("s_add_u32 s30, s30, s31")
    e(f"s_add_u32 s30, s30, {0 if isA else 896}"); e("v_add_u32 v2, s30, v2"); e(f"v_add_u32 v3, {2*1792}, v2")
    e("s_nop 4")
    for cb in range(2):
        a = 24 + 4 * cb
        cvt_pk(4, a, a + 1); cvt_pk(5, a + 2, a + 3)
        e(f"buffer_store_short v4, v2, s[16:19], 0 offen offset:{32*cb}")
        e(f"buffer_store_short_d16_hi v4, v2, s[16:19], 0 offen offset:{32*cb+1792}")
        e(f"buffer_store_short v5, v3, s[16:19], 0 offen offset:{32*cb}")
        e(f"buffer_store_short_d16_hi v5, v3, s[16:19], 0 offen offset:{32*cb+1792}")
    lab(f"{P}_END")
    e("s_endpgm")

def main():
    hdr = open(f"cdna_kernels/{NAME}.s.ref").read().split("\n")
    top = [l for l in hdr if l.startswith(";") and "@launch" not in l]
    top.append(f"; @launch kernel={K1} grid=(256,1,1) block=(512,1,1) lds={K1_LDS}")
    top.append(f"; @launch kernel={K2} grid=(256,1,1) block=(512,1,1) lds={OP_LDS}")
    top.append(f"; @launch kernel={K3} grid=(224,1,1) block=(512,1,1) lds={OP_LDS}")
    L.extend(top)
    L.append('.amdgcn_target "amdgcn-amd-amdhsa--gfx950"'); L.append(".text")
    gen_k1(); gen_outproj(K2, False); gen_outproj(K3, True)
    L.append('.section .rodata,"a"')
    L.append(kd(K1, 256, 132)); L.append(kd(K2, 128, 128)); L.append(kd(K3, 148 + 64, 148))
    open(OUT, "w").write("\n".join(L) + "\n")
main()
```

```python
import sys, os
VAR = os.environ.get("VAR", "")
NAME = "concat_heads__linear_attn_block__sliding_local_dilated__prompt"
OUT = os.environ.get("OUT", f"cdna_kernels/{NAME}.s")

L = []
def e(s=""):
    L.append("    " + s if s and not s.endswith(":") else s)
def lab(s): L.append(s + ":")

WS_PQA = 0
WS_OB = 0x200000
WS_KVP = 0x400000
WS_ZP = 0x500000
WS_WOT = 0x600000
WS_MT = 0x700000
WS_ZC = 0x780000
WS_END = 0x800000

def vr(a, n=1): return f"v{a}" if n == 1 else f"v[{a}:{a+n-1}]"
def ar(a, n=1): return f"a{a}" if n == 1 else f"a[{a}:{a+n-1}]"

def srd(dst, ptr_lo, nbytes):
    e(f"s_mov_b32 s{dst}, s{ptr_lo}")
    e(f"s_and_b32 s{dst+1}, s{ptr_lo+1}, 0xffff")
    e(f"s_mov_b32 s{dst+2}, {nbytes}")
    e(f"s_mov_b32 s{dst+3}, 0x00020000")

def kernel_header(name):
    L.append(".p2align 8"); L.append(f".globl {name}"); L.append(f".type {name},@function"); lab(name)

def kd(name, nvgpr, accum, nsgpr=100):
    return f""".p2align 6
.amdhsa_kernel {name}
  .amdhsa_next_free_vgpr {nvgpr}
  .amdhsa_next_free_sgpr {nsgpr}
  .amdhsa_accum_offset {accum}
  .amdhsa_group_segment_fixed_size 0
  .amdhsa_kernarg_size 72
  .amdhsa_user_sgpr_count 2
  .amdhsa_user_sgpr_kernarg_segment_ptr 1
  .amdhsa_system_sgpr_workgroup_id_x 1
.end_amdhsa_kernel"""

def cvt_pk(dst, a, b): e(f"v_cvt_pk_bf16_f32 v{dst}, v{a}, v{b}")
def unpk_lo(dst, src): e(f"v_lshlrev_b32 v{dst}, 16, v{src}")
def unpk_hi(dst, src): e(f"v_and_b32 v{dst}, 0xffff0000, v{src}")

K1 = NAME + "_k1_kernel"; K2 = NAME + "_k2_kernel"; K3 = NAME + "_k3_kernel"
OOB = "0x7fff0000"
XREG = 144 * 64
WSr = 352
SLOT = XREG + 32 * WSr + 1024
NSLOT = 7
K1_LDS = NSLOT * SLOT
TS = 352
NCH = 14

def gen_k1():
    kernel_header(K1)
    e("s_cmp_ge_u32 s2, 256"); e("s_cbranch_scc1 K1_END")
    e("s_and_b32 s24, s2, 1"); e("s_bfe_u32 s25, s2, 0x20001"); e("s_lshl_b32 s25, s25, 2")
    e("s_bfe_u32 s26, s2, 0x20003"); e("s_add_u32 s25, s25, s26"); e("s_lshr_b32 s26, s2, 5")
    e("s_mul_i32 s29, s24, 24"); e("s_add_u32 s30, s0, s29"); e("s_addc_u32 s31, s1, 0")
    e("s_load_dwordx4 s[4:7], s[30:31], 0"); e("s_load_dwordx2 s[10:11], s[30:31], 16"); e("s_load_dwordx2 s[8:9], s[0:1], 64")
    e("v_lshrrev_b32 v1, 6, v0"); e("s_nop 0"); e("v_readfirstlane_b32 s27, v1")
    e("s_lshl_b32 s28, s25, 7")
    e("s_lshr_b32 s38, s27, 1"); e("s_and_b32 s39, s27, 1")
    e("v_and_b32 v16, 15, v0"); e("v_bfe_u32 v17, v0, 4, 2"); e("v_and_b32 v5, 63, v0")
    e("s_add_u32 s29, s25, s26"); e("s_lshl_b32 s30, s24, 2"); e("s_add_u32 s29, s29, s30")
    for _ in range(2): e(f"s_cmp_ge_u32 s29, {NCH}"); e(f"s_cselect_b32 s30, {NCH}, 0"); e("s_sub_u32 s29, s29, s30")
    if "nostag" in VAR: e("s_mov_b32 s29, 0")
    for i in range(NCH):
        e(f"s_lshl_b32 s{56+i}, s29, 6"); e(f"s_mul_i32 s{70+i}, s29, {32*2688}")
        e("s_cmp_eq_u32 s27, 0"); e(f"s_cselect_b32 s{84+i}, s{56+i}, s{70+i}")
        e("s_add_u32 s29, s29, 1"); e(f"s_cmp_ge_u32 s29, {NCH}"); e(f"s_cselect_b32 s30, {NCH}, 0"); e("s_sub_u32 s29, s29, s30")
    e("v_lshrrev_b32 v6, 2, v5"); e("v_and_b32 v7, 3, v5"); e("v_xor_b32 v7, v7, v17")
    e("s_sub_u32 s29, s28, 16"); e("s_lshl_b32 s30, s27, 4"); e("s_add_u32 s30, s30, s29")
    e("v_add_u32 v2, s30, v6"); e("s_movk_i32 s31, 896"); e("v_mul_lo_u32 v2, v2, s31"); e("v_lshl_add_u32 v2, v7, 4, v2")
    e("s_add_u32 s30, s29, 128"); e("v_add_u32 v8, s30, v6"); e("v_mul_lo_u32 v8, v8, s31"); e("v_lshl_add_u32 v8, v7, 4, v8")
    def wvoff(dst, sbw):
        e(f"s_lshl_b32 s30, s{sbw}, 6"); e("v_add_u32 v6, s30, v5")
        e("s_mov_b32 s31, 0xba2e8bb"); e("v_mul_hi_u32 v7, v6, s31")
        e("v_mul_u32_u24 v9, 22, v7"); e("v_sub_u32 v9, v6, v9")
        e("s_mov_b32 s31, 0x24924925"); e("v_mul_hi_u32 v10, v9, s31")
        e("v_mul_u32_u24 v11, 7, v10"); e("v_sub_u32 v11, v9, v11")
        e(f"v_mul_u32_u24 v{dst}, 2688, v7"); e("v_mul_u32_u24 v10, 896, v10"); e(f"v_add_u32 v{dst}, v{dst}, v10")
        e(f"v_lshl_add_u32 v{dst}, v11, 4, v{dst}"); e("s_mul_i32 s30, s26, 112"); e(f"v_add_u32 v{dst}, s30, v{dst}")
        e("v_cmp_eq_u32 vcc, 21, v9"); e(f"v_mov_b32 v10, {OOB}"); e("s_nop 1"); e(f"v_cndmask_b32 v{dst}, v{dst}, v10, vcc")
    e("s_sub_u32 s32, s27, 1"); wvoff(3, 32)
    e("s_add_u32 s32, s27, 7"); wvoff(4, 32)
    e("s_cmp_eq_u32 s27, 0"); e("s_cbranch_scc0 K1_NW0"); e("v_mov_b32 v3, v8"); lab("K1_NW0")
    e("s_cmp_lt_u32 s27, 4"); e("s_cbranch_scc1 K1_NW4"); e(f"v_mov_b32 v4, {OOB}"); lab("K1_NW4")
    e("s_lshl_b32 s52, s27, 10")
    e("s_lshl_b32 s53, s27, 10"); e(f"s_add_u32 s53, s53, {XREG-1024}")
    e("s_lshl_b32 s54, s27, 10"); e(f"s_add_u32 s54, s54, {XREG+7*1024}")
    e("s_cmp_lt_u32 s27, 4"); e(f"s_cselect_b32 s54, s54, {XREG+32*WSr}")
    e("v_lshrrev_b32 v6, 2, v16"); e("v_lshrrev_b32 v7, 1, v17"); e("v_xor_b32 v7, v7, v6")
    e("v_lshlrev_b32 v8, 6, v16"); e("v_lshl_add_u32 v8, v7, 4, v8"); e("v_and_b32 v9, 1, v17"); e("v_lshl_add_u32 v8, v9, 3, v8")
    e("s_lshl_b32 s29, s38, 11"); e("s_add_u32 s29, s29, 1024")
    AB, BB = 112, 124
    for g3 in range(3):
        o = g3 * 3 * SLOT
        e(f"v_add_u32 v{AB+4*g3+2}, {o}, v8"); e(f"v_xor_b32 v{AB+4*g3+3}, 32, v{AB+4*g3+2}")
        e(f"v_add_u32 v{AB+4*g3}, s29, v{AB+4*g3+2}"); e(f"v_add_u32 v{AB+4*g3+1}, s29, v{AB+4*g3+3}")
    e("v_lshl_add_u32 v9, v17, 2, v6"); e(f"v_mul_u32_u24 v9, {WSr}, v9"); e("v_and_b32 v10, 3, v16"); e("v_lshl_add_u32 v9, v10, 3, v9")
    e(f"v_add_u32 v9, {XREG}, v9")
    e("s_mul_i32 s29, s39, 192"); e("s_lshl_b32 s30, s27, 5"); e("s_add_u32 s30, s30, 96")
    for g3 in range(3):
        o = g3 * 3 * SLOT
        e(f"v_add_u32 v10, {o}, v9"); e(f"v_add_u32 v{BB+2*g3}, s29, v10"); e(f"v_add_u32 v{BB+2*g3+1}, s30, v10")
    for i in range(52): e(f"v_accvgpr_write_b32 a{i}, 0")
    e("s_waitcnt lgkmcnt(0)")
    srd(12, 4, 1835008); srd(16, 6, 448 * 2688); srd(20, 8, WS_END); srd(48, 10, 448 * 896)
    e("s_cmp_eq_u32 s27, 0")
    for i in range(4): e(f"s_cselect_b32 s{44+i}, s{12+i}, s{16+i}")
    e("s_lshl_b32 s29, s25, 3"); e("s_add_u32 s29, s29, s26"); e("s_mul_i32 s29, s29, 196")
    e("v_add_u32 v6, s29, v0"); e("s_mov_b32 s31, 0x924925"); e("v_mul_hi_u32 v7, v6, s31")
    e("v_mul_u32_u24 v8, 448, v7"); e("v_sub_u32 v8, v6, v8")
    e("v_mul_u32_u24 v9, 7168, v7"); e("v_lshl_add_u32 v9, v8, 1, v9")
    e("v_mul_u32_u24 v138, 896, v8"); e("v_lshl_add_u32 v138, v7, 4, v138")
    e("v_cmp_gt_u32 vcc, 196, v0"); e(f"v_mov_b32 v10, {OOB}"); e("s_nop 1")
    e("v_cndmask_b32 v9, v10, v9, vcc"); e("v_cndmask_b32 v138, v10, v138, vcc")
    e("s_movk_i32 s29, 3584")
    for i in range(4):
        so = "0" if i < 2 else "s29"
        e(f"buffer_load_ushort v{130+i}, v9, s[48:51], {so} offen offset:{1792*(i%2)}")
        e(f"buffer_load_ushort v{134+i}, v9, s[48:51], {so} offen offset:{1792*(i%2)+896}")
    def gload(cn):
        sb = (cn % NSLOT) * SLOT
        for i, (sr, so) in enumerate((("s[12:15]", 56), ("s[44:47]", 84), ("s[16:19]", 70))):
            e(f"s_add_u32 m0, s{52+i}, {sb}"); e("s_nop 0")
            e(f"buffer_load_dwordx4 v{2+i}, {sr}, s{so+cn} offen lds")
    F = [32, 72]
    def fread_list(cn, f):
        sl = cn % NSLOT; g3 = sl // 3; b = (sl % 3) * SLOT; base = F[f]; r = []
        for rb in range(2):
            for h in range(2): r.append(f"ds_read_b64 {vr(base+4*rb+2*h,2)}, v{AB+4*g3+h} offset:{b+1024*rb}")
        for cb in range(6):
            for h in range(2): r.append(f"ds_read_b64_tr_b16 {vr(base+16+4*cb+2*h,2)}, v{BB+2*g3} offset:{b+16*h*WSr+32*cb}")
        for h in range(2): r.append(f"ds_read_b64 {vr(base+8+2*h,2)}, v{AB+4*g3+2+h} offset:{b}")
        for h in range(2): r.append(f"ds_read_b64_tr_b16 {vr(base+12+2*h,2)}, v{BB+2*g3+1} offset:{b+16*h*WSr}")
        return r
    def mfma_list(f):
        base = F[f]; r = []
        for cb in range(6):
            for rb in range(2):
                r.append((4 + 2 * (cb + 1), f"v_mfma_f32_16x16x32_bf16 {ar(4*(rb*6+cb),4)}, {vr(base+16+4*cb,4)}, {vr(base+4*rb,4)}, {ar(4*(rb*6+cb),4)}"))
        r.append((20, f"v_mfma_f32_16x16x32_bf16 a[48:51], {vr(base+12,4)}, {vr(base+8,4)}, a[48:51]"))
        return r
    for cn in range(6): gload(cn)
    e("s_waitcnt vmcnt(15)")
    e(f"s_mov_b32 s29, {WS_WOT}"); e("s_lshl_b32 s30, s24, 19"); e("s_add_u32 s29, s29, s30")
    for i in range(4): e(f"v_lshl_or_b32 v{130+i}, v{134+i}, 16, v{130+i}")
    e("buffer_store_dwordx4 v[130:133], v138, s[20:23], s29 offen")
    e("s_barrier")
    for x in fread_list(0, 0): e(x)
    for cn in range(NCH):
        if cn + 1 < NCH:
            last = min(NCH - 1, cn + 5)
            extra = 0
            e(f"s_waitcnt vmcnt({3*(last-(cn+1)) + extra})"); e("s_barrier")
            if cn + 6 < NCH: gload(cn + 6)
            nxt = fread_list(cn + 1, (cn + 1) & 1)
        else:
            nxt = []
        issued = 0
        for need, ins in mfma_list(cn & 1):
            e(f"s_waitcnt lgkmcnt({min(15, 20-need+issued)})"); e(ins)
            for _ in range(2):
                if nxt: e(nxt.pop(0)); issued += 1
        while nxt: e(nxt.pop(0))
    e("s_barrier")
    if "noepi" in VAR: e("s_branch K1_END")
    e("s_nop 7"); e("s_nop 7")
    e("s_lshl_b32 s29, s38, 5"); e("s_add_u32 s29, s29, 16")
    e("v_add_u32 v22, s29, v16"); e(f"v_mul_u32_u24 v22, {TS}, v22"); e("v_lshl_add_u32 v22, v17, 3, v22")
    e("s_mul_i32 s29, s39, 192"); e("v_add_u32 v22, s29, v22")
    e(f"v_mul_u32_u24 v23, {TS}, v16"); e("v_lshl_add_u32 v23, v17, 3, v23")
    e("s_lshl_b32 s29, s27, 5"); e("v_add_u32 v23, s29, v23")
    e("s_mov_b32 s33, 0x3fb8aa3b"); e("s_mov_b32 s34, 0x358637bd")
    cnt = [0]
    def store_block(a, vaddr, off, phi):
        B = 24 + 16 * (cnt[0] % 4); cnt[0] += 1
        for i in range(4): e(f"v_accvgpr_read_b32 v{B+i}, a{a+i}")
        e("s_nop 0")
        cvt_pk(B+4, B, B+1); cvt_pk(B+5, B+2, B+3)
        if phi:
            unpk_lo(B, B+4); unpk_hi(B+1, B+4); unpk_lo(B+2, B+5); unpk_hi(B+3, B+5)
            for i in range(4): e(f"v_mul_f32 v{B+6+i}, s33, v{B+i}")
            for i in range(4): e(f"v_exp_f32 v{B+6+i}, v{B+6+i}")
            for i in range(4): e(f"v_cmp_lt_f32 s[{40+2*i}:{41+2*i}], 0, v{B+i}")
            for i in range(4): e(f"v_add_f32 v{B+10+i}, 1.0, v{B+i}")
            for i in range(4): e(f"v_cndmask_b32 v{B+i}, v{B+6+i}, v{B+10+i}, s[{40+2*i}:{41+2*i}]")
            cvt_pk(B+4, B, B+1); cvt_pk(B+5, B+2, B+3)
            unpk_lo(B, B+4); unpk_hi(B+1, B+4); unpk_lo(B+2, B+5); unpk_hi(B+3, B+5)
            for i in range(4): e(f"v_add_f32 v{B+i}, s34, v{B+i}")
            cvt_pk(B+4, B, B+1); cvt_pk(B+5, B+2, B+3)
        e(f"ds_write_b64 v{vaddr}, {vr(B+4,2)} offset:{off}")
    e("s_cmp_eq_u32 s24, 0"); e("s_cbranch_scc0 K1_EPB")
    e("s_cmp_eq_u32 s39, 0"); e("s_cbranch_scc0 K1_EPA1")
    for rb in range(2):
        for cb in range(6): store_block(4 * (rb * 6 + cb), 22, 16 * TS * rb + 32 * cb, True)
    e("s_branch K1_EPD")
    lab("K1_EPA1")
    for rb in range(2):
        for cb in range(5): store_block(4 * (rb * 6 + cb), 22, 16 * TS * rb + 32 * cb, cb == 0)
    e("s_branch K1_EPD")
    lab("K1_EPB")
    for rb in range(2):
        for cb in range(5): store_block(4 * (rb * 6 + cb), 22, 16 * TS * rb + 32 * cb, False)
    store_block(48, 23, 96, False)
    e("s_cmp_eq_u32 s39, 0"); e("s_cbranch_scc0 K1_EPD")
    for rb in range(2): store_block(4 * (rb * 6 + 5), 22, 16 * TS * rb + 32 * 5, False)
    lab("K1_EPD")
    e("s_waitcnt lgkmcnt(0)"); e("s_barrier")
    if "noatt" in VAR: e("s_branch K1_END")
    e("s_cmp_eq_u32 s24, 0"); e("s_cbranch_scc0 K1_ATTB")
    e("v_lshrrev_b32 v24, 2, v0"); e("v_bfe_u32 v25, v0, 1, 1"); e("v_and_b32 v23, 1, v0")
    e("v_add_u32 v26, 16, v24"); e(f"v_mul_u32_u24 v26, {TS}, v26"); e("v_mul_u32_u24 v27, 56, v25")
    e("v_add_u32 v26, v26, v27"); e("v_lshl_add_u32 v26, v23, 5, v26")
    for i in range(4): e(f"ds_read_b64 {vr(80+2*i,2)}, v26 offset:{8*i}")
    e("v_add_u32 v27, s28, v24"); e("v_lshlrev_b32 v27, 10, v27"); e("v_and_b32 v28, 3, v0"); e("v_lshl_add_u32 v27, v28, 5, v27")
    e("s_lshl_b32 s29, s26, 7"); e("v_add_u32 v27, s29, v27")
    e("v_cmp_eq_u32 vcc, 1, v23"); e("v_mov_b32 v28, 0")
    e("s_waitcnt lgkmcnt(0)")
    e("v_cndmask_b32 v86, v86, v28, vcc"); e("v_cndmask_b32 v87, v87, v28, vcc")
    e("buffer_store_dwordx4 v[80:83], v27, s[20:23], 0 offen"); e("buffer_store_dwordx4 v[84:87], v27, s[20:23], 0 offen offset:16")
    e("s_cmp_ge_u32 s27, 4"); e("s_cbranch_scc1 K1_END")
    e("v_lshrrev_b32 v24, 2, v16"); e("v_lshl_add_u32 v24, v17, 2, v24"); e("v_add_u32 v24, 16, v24")
    e(f"v_mul_u32_u24 v24, {TS}, v24"); e("v_and_b32 v25, 3, v16"); e("v_lshl_add_u32 v24, v25, 3, v24")
    e("s_lshr_b32 s29, s27, 1"); e("s_and_b32 s30, s27, 1"); e("s_mul_i32 s31, s29, 56")
    e("s_lshl_b32 s32, s30, 5"); e("s_add_u32 s32, s32, s31"); e("s_add_u32 s32, s32, 112"); e("s_add_u32 s31, s31, 224")
    e("v_add_u32 v25, s32, v24"); e("v_add_u32 v26, s31, v24")
    for i in range(12): e(f"v_accvgpr_write_b32 a{i}, 0")
    for i in range(4): e(f"v_mov_b32 v{76+i}, 0x3f803f80")
    for ks in range(4):
        o = 28 + 12 * ks
        for h in range(2): e(f"ds_read_b64_tr_b16 {vr(o+2*h,2)}, v25 offset:{(32*ks+16*h)*TS}")
        for nb in range(2):
            for h in range(2): e(f"ds_read_b64_tr_b16 {vr(o+4+4*nb+2*h,2)}, v26 offset:{(32*ks+16*h)*TS+32*nb}")
    for ks in range(4):
        o = 28 + 12 * ks
        e(f"s_waitcnt lgkmcnt({min(15,6*(3-ks))})")
        e(f"v_mfma_f32_16x16x32_bf16 a[0:3], {vr(o,4)}, {vr(o+4,4)}, a[0:3]")
        e(f"v_mfma_f32_16x16x32_bf16 a[4:7], {vr(o,4)}, {vr(o+8,4)}, a[4:7]")
        e(f"v_mfma_f32_16x16x32_bf16 a[8:11], {vr(o,4)}, v[76:79], a[8:11]")
    e("s_lshl_b32 s31, s26, 1"); e("s_add_u32 s31, s31, s29"); e("s_lshl_b32 s32, s25, 4"); e("s_add_u32 s31, s31, s32")
    e("s_lshl_b32 s32, s31, 12"); e("s_lshl_b32 s33, s31, 7"); e("s_lshl_b32 s34, s30, 4")
    e("v_lshl_add_u32 v24, v17, 2, s34"); e("v_lshlrev_b32 v25, 7, v24"); e("v_lshl_add_u32 v25, v16, 2, v25")
    e("v_add_u32 v25, s32, v25"); e("v_lshlrev_b32 v26, 2, v24"); e("v_add_u32 v26, s33, v26")
    e(f"s_mov_b32 s35, {WS_KVP}"); e(f"s_mov_b32 s36, {WS_ZP}")
    e("s_nop 7")
    for i in range(12): e(f"v_accvgpr_read_b32 v{28+i}, a{i}")
    e("s_nop 0")
    for nb in range(2):
        for i in range(4): e(f"buffer_store_dword v{28+4*nb+i}, v25, s[20:23], s35 offen offset:{128*i + 64*nb}")
    for i in range(4): e(f"buffer_store_dword v{36+i}, v26, s[20:23], s36 offen offset:{4*i}")
    e("s_branch K1_END")
    lab("K1_ATTB")
    e("v_lshrrev_b32 v24, 2, v0"); e("v_bfe_u32 v25, v0, 1, 1"); e("v_and_b32 v23, 1, v0")
    e("v_add_u32 v26, 2, v24"); e(f"v_mul_u32_u24 v26, {TS}, v26"); e("v_mul_u32_u24 v27, 56, v25")
    e("v_add_u32 v26, v26, v27"); e("v_lshl_add_u32 v26, v23, 5, v26")
    Q, KV, LG, O = 28, 36, 100, 108
    for i in range(4): e(f"ds_read_b64 {vr(Q+2*i,2)}, v26 offset:{14*TS+8*i}")
    for w in range(8):
        for i in range(4): e(f"ds_read_b64 {vr(KV+8*w+2*i,2)}, v26 offset:{(14-2*w)*TS+112+8*i}")
    e("v_add_u32 v27, s28, v24")
    e("s_mov_b32 s33, 0x3e4184d8"); e("s_mov_b32 s34, 0xce6e6b28"); e("s_mov_b32 s35, 0x3fb8aa3b")
    e("v_cmp_eq_u32 vcc, 1, v23"); e("v_mov_b32 v124, 0")
    e("s_waitcnt lgkmcnt(15)")
    e(f"v_cndmask_b32 v{Q+6}, v{Q+6}, v124, vcc"); e(f"v_cndmask_b32 v{Q+7}, v{Q+7}, v124, vcc")
    for w in range(8):
        e(f"s_waitcnt lgkmcnt({min(15,4*(7-w))})")
        e(f"v_dot2_f32_bf16 v{LG+w}, v{Q}, v{KV+8*w}, 0")
        for i in range(1, 8): e(f"v_dot2_f32_bf16 v{LG+w}, v{Q+i}, v{KV+8*w+i}, v{LG+w}")
    for w in range(8):
        for i in range(4): e(f"ds_read_b64 {vr(KV+8*w+2*i,2)}, v26 offset:{(14-2*w)*TS+224+8*i}")
    e("s_nop 1")
    for w in range(8):
        e(f"v_add_f32_dpp v{O+w}, v{LG+w}, v{LG+w} quad_perm:[1,0,3,2] row_mask:0xf bank_mask:0xf")
    for w in range(0, 8, 2):
        cvt_pk(124, O + w, O + w + 1); unpk_lo(LG + w, 124); unpk_hi(LG + w + 1, 124)
        e(f"v_mul_f32 v{LG+w}, s33, v{LG+w}"); e(f"v_mul_f32 v{LG+w+1}, s33, v{LG+w+1}")
        cvt_pk(124, LG + w, LG + w + 1); unpk_lo(LG + w, 124); unpk_hi(LG + w + 1, 124)
    e("v_mov_b32 v125, s34")
    for w in range(1, 8): e(f"v_cmp_gt_u32 s[{40+2*w}:{41+2*w}], {2*w}, v27")
    e("s_nop 1")
    for w in range(1, 8): e(f"v_cndmask_b32 v{LG+w}, v{LG+w}, v125, s[{40+2*w}:{41+2*w}]")
    e(f"v_max3_f32 v124, v{LG}, v{LG+1}, v{LG+2}"); e(f"v_max3_f32 v125, v{LG+3}, v{LG+4}, v{LG+5}")
    e(f"v_max3_f32 v124, v124, v{LG+6}, v{LG+7}"); e("v_max_f32 v124, v124, v125")
    for w in range(8): e(f"v_sub_f32 v{LG+w}, v{LG+w}, v124")
    for w in range(8): e(f"v_mul_f32 v{LG+w}, s35, v{LG+w}")
    for w in range(8): e(f"v_exp_f32 v{LG+w}, v{LG+w}")
    e("s_nop 0")
    e(f"v_add_f32 v124, v{LG}, v{LG+1}"); e(f"v_add_f32 v125, v{LG+2}, v{LG+3}")
    e(f"v_add_f32 v126, v{LG+4}, v{LG+5}"); e(f"v_add_f32 v127, v{LG+6}, v{LG+7}")
    e("v_add_f32 v124, v124, v125"); e("v_add_f32 v126, v126, v127"); e("v_add_f32 v124, v124, v126")
    e("v_rcp_f32 v124, v124"); e("s_nop 0")
    for w in range(8): e(f"v_mul_f32 v{LG+w}, v124, v{LG+w}")
    for w in range(0, 8, 2):
        cvt_pk(124, LG + w, LG + w + 1); unpk_lo(LG + w, 124); unpk_hi(LG + w + 1, 124)
    for w in range(8):
        e(f"s_waitcnt lgkmcnt({min(15,4*(7-w))})")
        for i in range(8):
            unpk_lo(124, KV + 8 * w + i); unpk_hi(125, KV + 8 * w + i)
            if w == 0:
                e(f"v_mul_f32 v{O+2*i}, v124, v{LG}"); e(f"v_mul_f32 v{O+2*i+1}, v125, v{LG}")
            else:
                e(f"v_fma_f32 v{O+2*i}, v124, v{LG+w}, v{O+2*i}"); e(f"v_fma_f32 v{O+2*i+1}, v125, v{LG+w}, v{O+2*i+1}")
    for i in range(8): cvt_pk(Q + i, O + 2 * i, O + 2 * i + 1)
    e("s_movk_i32 s30, 896"); e("v_mul_lo_u32 v27, v27, s30"); e("v_mul_u32_u24 v124, 56, v25")
    e("v_add_u32 v27, v27, v124"); e("v_lshl_add_u32 v27, v23, 5, v27")
    e("s_mul_i32 s29, s26, 112"); e("v_add_u32 v27, s29, v27")
    e(f"v_mov_b32 v124, {OOB}"); e("v_cndmask_b32 v124, v27, v124, vcc")
    e(f"s_mov_b32 s36, {WS_OB}")
    for i in range(4):
        e(f"buffer_store_dwordx2 {vr(Q+2*i,2)}, v{27 if i < 3 else 124}, s[20:23], s36 offen offset:{8*i}")
    lab("K1_END")
    e("s_endpgm")

def tile_setup(rowbytes):
    e("s_mul_hi_u32 s24, s2, 0x24924925"); e("s_mul_i32 s25, s24, 7"); e("s_sub_u32 s25, s2, s25")
    e("s_lshr_b32 s30, s27, 1"); e("s_and_b32 s31, s27, 1")
    e("s_lshl_b32 s28, s24, 6"); e("s_lshl_b32 s29, s30, 5"); e("s_add_u32 s28, s28, s29")
    e("s_lshl_b32 s26, s25, 6"); e("s_lshl_b32 s29, s31, 5"); e("s_add_u32 s26, s26, s29")
    e(f"s_movk_i32 s29, {rowbytes}")
    e("v_add_u32 v2, s28, v16"); e("v_mul_lo_u32 v2, v2, s29"); e("v_lshl_add_u32 v2, v17, 4, v2")
    e("v_add_u32 v3, s26, v16"); e("v_mul_lo_u32 v3, v3, s29"); e("v_lshl_add_u32 v3, v17, 4, v3")
    e(f"v_add_u32 v4, {16*rowbytes}, v2"); e(f"v_add_u32 v5, {16*rowbytes}, v3")

def out_store(acc, colofs):
    e("v_add_u32 v6, s28, v16"); e("s_movk_i32 s29, 1792"); e("v_mul_lo_u32 v6, v6, s29"); e("v_lshl_add_u32 v6, v17, 3, v6")
    e("s_lshl_b32 s29, s26, 1"); e(f"s_add_u32 s29, s29, {colofs}"); e("v_add_u32 v6, s29, v6"); e(f"v_add_u32 v7, {16*1792}, v6")
    for rb in range(2):
        for cb in range(2):
            a = acc + 8 * rb + 4 * cb
            cvt_pk(8 + 2 * cb + 4 * rb, a, a + 1); cvt_pk(9 + 2 * cb + 4 * rb, a + 2, a + 3)
            e(f"buffer_store_dwordx2 {vr(8+2*cb+4*rb,2)}, v{6+rb}, s[16:19], 0 offen offset:{32*cb}")

def gen_k2():
    kernel_header(K2)
    e("s_cmp_ge_u32 s2, 256"); e("s_cbranch_scc1 K2_END")
    e("s_load_dwordx2 s[6:7], s[0:1], 48"); e("s_load_dwordx2 s[8:9], s[0:1], 64")
    e("v_lshrrev_b32 v1, 6, v0"); e("s_nop 0"); e("v_readfirstlane_b32 s27, v1")
    e("v_and_b32 v16, 15, v0"); e("v_bfe_u32 v17, v0, 4, 2")
    e("s_cmp_lt_u32 s2, 224"); e("s_cbranch_scc1 K2_GEMM")
    e("s_sub_u32 s3, s2, 224"); e("s_lshr_b32 s24, s3, 1"); e("s_and_b32 s25, s3, 1")
    e("v_lshlrev_b32 v2, 4, v0"); e("s_lshl_b32 s26, s24, 12"); e("v_add_u32 v2, s26, v2")
    e("v_lshlrev_b32 v3, 2, v0"); e("s_lshl_b32 s26, s24, 7"); e("v_add_u32 v3, s26, v3")
    e("v_cmp_gt_u32 vcc, 32, v0"); e(f"v_mov_b32 v4, {OOB}"); e("s_nop 1"); e("v_cndmask_b32 v3, v4, v3, vcc")
    e("s_mul_i32 s26, s25, 14"); e("s_add_u32 s26, s26, s27"); e("s_lshl_b32 s26, s26, 4")
    e("v_add_u32 v5, s26, v16"); e("s_movk_i32 s29, 896"); e("v_mul_lo_u32 v6, v5, s29"); e("v_lshl_add_u32 v6, v17, 4, v6")
    e("s_mul_i32 s29, s24, 56"); e("v_add_u32 v6, s29, v6")
    e("v_lshlrev_b32 v7, 10, v5"); e("v_lshl_add_u32 v7, v17, 3, v7"); e("s_lshl_b32 s29, s24, 6"); e("v_add_u32 v7, s29, v7")
    e("s_waitcnt lgkmcnt(0)")
    srd(16, 6, 2048 * 1792); srd(20, 8, WS_END)
    e(f"s_mov_b32 s35, {WS_KVP}"); e(f"s_mov_b32 s36, {WS_ZP}"); e(f"s_mov_b32 s37, {WS_WOT}")
    for rt in range(16):
        e(f"v_add_u32 v8, {65536*rt}, v2"); e(f"buffer_load_dwordx4 {vr(32+4*rt,4)}, v8, s[20:23], s35 offen")
    for i in range(4):
        e(f"v_add_u32 v8, {64*896*i}, v6")
        if i == 3:
            e("s_cmp_lt_u32 s27, 2"); e("s_cbranch_scc1 K2_I3"); e(f"v_mov_b32 v8, {OOB}"); lab("K2_I3")
        e(f"buffer_load_dwordx4 {vr(112+4*i,4)}, v8, s[20:23], s37 offen")
    for rt in range(16):
        e(f"v_add_u32 v8, {2048*rt}, v3"); e(f"buffer_load_dword v{96+rt}, v8, s[20:23], s36 offen")
    for rt in range(1, 16):
        e(f"s_waitcnt vmcnt({20+15-rt})")
        for i in range(4): e(f"v_add_f32 v{32+i}, v{32+i}, v{32+4*rt+i}")
    e("v_and_b32 v8, 7, v0"); e("v_cmp_eq_u32 s[40:41], 7, v8"); e("v_cmp_lt_u32 vcc, 223, v0"); e("s_or_b64 vcc, vcc, s[40:41]")
    e("v_mov_b32 v9, 0"); cvt_pk(36, 32, 33); cvt_pk(37, 34, 35)
    e("v_cndmask_b32 v36, v36, v9, vcc"); e("v_cndmask_b32 v37, v37, v9, vcc")
    e("v_lshrrev_b32 v10, 3, v0"); e("v_mul_u32_u24 v10, 80, v10"); e("v_lshl_add_u32 v10, v8, 3, v10")
    e("ds_write_b64 v10, v[36:37]")
    e("v_mul_u32_u24 v11, 80, v16"); e("v_lshl_add_u32 v11, v17, 4, v11")
    e("s_waitcnt lgkmcnt(0)"); e("s_barrier")
    e("ds_read_b128 v[40:43], v11"); e(f"ds_read_b128 v[44:47], v11 offset:{16*80}")
    e("v_cmp_eq_u32 vcc, 3, v17")
    e("s_waitcnt lgkmcnt(0) vmcnt(16)")
    for i in range(4):
        e(f"v_cndmask_b32 v{114+4*i}, v{114+4*i}, v9, vcc"); e(f"v_cndmask_b32 v{115+4*i}, v{115+4*i}, v9, vcc")
    e("s_nop 1")
    for i in range(4):
        for db in range(2):
            e(f"v_mfma_f32_16x16x32_bf16 {vr(48+8*i+4*db,4)}, {vr(40+4*db,4)}, {vr(112+4*i,4)}, 0")
    e("s_waitcnt vmcnt(0)")
    for rt in range(1, 16): e(f"v_add_f32 v96, v96, v{96+rt}")
    e("v_cmp_lt_u32 vcc, 27, v0"); e("s_nop 1"); e("v_cndmask_b32 v96, v96, v9, vcc"); e("s_nop 0"); cvt_pk(96, 96, 96)
    e("v_lshlrev_b32 v12, 1, v0"); e("s_lshl_b32 s29, s24, 6"); e("v_add_u32 v12, s29, v12")
    e("v_cmp_gt_u32 vcc, 32, v0"); e("s_cmp_eq_u32 s25, 0"); e("s_cselect_b64 s[40:41], -1, 0"); e("s_and_b64 vcc, vcc, s[40:41]")
    e(f"v_cndmask_b32 v12, v4, v12, vcc"); e(f"s_mov_b32 s38, {WS_ZC}")
    e("buffer_store_short v96, v12, s[20:23], s38 offen")
    e(f"s_mov_b32 s38, {WS_MT}")
    for i in range(4):
        e(f"v_add_u32 v8, {64*1024*i}, v7")
        if i == 3:
            e("s_cmp_lt_u32 s27, 2"); e("s_cbranch_scc1 K2_I3S"); e(f"v_mov_b32 v8, {OOB}"); lab("K2_I3S")
        for db in range(2):
            a = 48 + 8 * i + 4 * db
            cvt_pk(80 + 2 * db, a, a + 1); cvt_pk(81 + 2 * db, a + 2, a + 3)
            e(f"buffer_store_dwordx2 {vr(80+2*db,2)}, v8, s[20:23], s38 offen offset:{32*db}")
    e("s_branch K2_END")
    lab("K2_GEMM")
    tile_setup(896)
    e("s_waitcnt lgkmcnt(0)")
    srd(16, 6, 2048 * 1792); srd(20, 8, WS_END)
    e(f"s_mov_b32 s36, {WS_OB}"); e(f"s_mov_b32 s37, {WS_WOT+0x80000}")
    for j in range(14):
        for rb in range(2): e(f"buffer_load_dwordx4 {vr(32+56*rb+4*j,4)}, v{2+2*rb}, s[20:23], s36 offen offset:{64*j}")
        for cb in range(2): e(f"buffer_load_dwordx4 {ar(56*cb+4*j,4)}, v{3+2*cb}, s[20:23], s37 offen offset:{64*j}")
    ACC = 144
    for j in range(14):
        e(f"s_waitcnt vmcnt({4*(13-j)})")
        for rb in range(2):
            for cb in range(2):
                a = ACC + 8 * rb + 4 * cb
                e(f"v_mfma_f32_16x16x32_bf16 {vr(a,4)}, {ar(56*cb+4*j,4)}, {vr(32+56*rb+4*j,4)}, {vr(a,4) if j else 0}")
    e("s_nop 7"); e("s_nop 7")
    out_store(ACC, 896)
    lab("K2_END")
    e("s_endpgm")

def gen_k3():
    kernel_header(K3)
    e("s_cmp_ge_u32 s2, 224"); e("s_cbranch_scc1 K3_END")
    e("s_load_dwordx2 s[6:7], s[0:1], 48"); e("s_load_dwordx2 s[8:9], s[0:1], 64")
    e("v_lshrrev_b32 v1, 6, v0"); e("s_nop 0"); e("v_readfirstlane_b32 s27, v1")
    e("v_and_b32 v16, 15, v0"); e("v_bfe_u32 v17, v0, 4, 2")
    tile_setup(1024)
    e("v_lshlrev_b32 v6, 6, v16"); e("v_lshl_add_u32 v6, v17, 4, v6")
    e("s_waitcnt lgkmcnt(0)")
    srd(16, 6, 2048 * 1792); srd(20, 8, WS_END)
    e(f"s_mov_b32 s36, {WS_PQA}"); e(f"s_mov_b32 s37, {WS_MT}"); e(f"s_mov_b32 s38, {WS_ZC}"); e("s_mov_b32 s34, 0x358637bd")
    Z, ZF, DEN, RD, P, ACC = 160, 164, 180, 188, 220, 164
    e(f"buffer_load_dwordx4 {vr(Z,4)}, v6, s[20:23], s38 offen")
    for j in range(16):
        for rb in range(2): e(f"buffer_load_dwordx4 {vr(32+64*rb+4*j,4)}, v{2+2*rb}, s[20:23], s36 offen offset:{64*j}")
    for j in range(16):
        for cb in range(2): e(f"buffer_load_dwordx4 {ar(64*cb+4*j,4)}, v{3+2*cb}, s[20:23], s37 offen offset:{64*j}")
    for gg in range(4): e(f"v_add_u32 v{24+gg}, {16*gg}, v16"); e(f"v_lshlrev_b32 v{24+gg}, 2, v{24+gg}")
    e("v_mov_b32 v28, 0")
    for j in range(16):
        zf = ZF + 4 * (j % 4)
        e(f"v_cmp_eq_u32 vcc, {j}, v16")
        e(f"s_waitcnt vmcnt({min(63, 32 + 2*(15-j))})")
        for i in range(4): e(f"v_cndmask_b32 v{zf+i}, v28, v{Z+i}, vcc")
        e("s_nop 1")
        for rb in range(2):
            e(f"v_mfma_f32_16x16x32_bf16 {vr(DEN+4*rb,4)}, {vr(zf,4)}, {vr(32+64*rb+4*j,4)}, {vr(DEN+4*rb,4) if j else 0}")
    e("s_nop 7"); e("s_nop 7")
    for rb in range(2):
        d = DEN + 4 * rb
        cvt_pk(29, d, d + 1); cvt_pk(30, d + 2, d + 3)
        unpk_lo(d, 29); unpk_hi(d + 1, 29); unpk_lo(d + 2, 30); unpk_hi(d + 3, 30)
        for i in range(4): e(f"v_add_f32 v{d+i}, s34, v{d+i}")
        cvt_pk(29, d, d + 1); cvt_pk(30, d + 2, d + 3)
        unpk_lo(d, 29); unpk_hi(d + 1, 29); unpk_lo(d + 2, 30); unpk_hi(d + 3, 30)
        for i in range(4): e(f"v_rcp_f32 v{d+i}, v{d+i}")
    e("s_nop 0")
    for rb in range(2):
        for h in range(16): e(f"ds_bpermute_b32 v{RD+16*rb+h}, v{24+(h>>2)}, v{DEN+4*rb+(h&3)}")
    def scale(j):
        p = P + 16 * (j & 1)
        for rb in range(2):
            for k in range(8):
                a = ACC + 8 * rb + k
                if j == 0: e(f"v_mul_f32 v{a}, v{p+8*rb+k}, v{RD+16*rb+j}")
                else: e(f"v_fmac_f32 v{a}, v{p+8*rb+k}, v{RD+16*rb+j}")
    for j in range(16):
        e(f"s_waitcnt vmcnt({2*(15-j)})")
        p = P + 16 * (j & 1)
        for rb in range(2):
            for cb in range(2):
                e(f"v_mfma_f32_16x16x32_bf16 {vr(p+8*rb+4*cb,4)}, {ar(64*cb+4*j,4)}, {vr(32+64*rb+4*j,4)}, 0")
        if j == 1: e("s_waitcnt lgkmcnt(0)")
        if j >= 1: scale(j - 1)
    e("s_nop 7"); e("s_nop 7")
    scale(15)
    e("v_add_u32 v6, s28, v16"); e("s_movk_i32 s29, 1792"); e("v_mul_lo_u32 v6, v6, s29"); e("v_lshl_add_u32 v6, v17, 3, v6")
    e("s_lshl_b32 s29, s26, 1"); e("v_add_u32 v6, s29, v6"); e(f"v_add_u32 v7, {16*1792}, v6")
    for rb in range(2):
        for cb in range(2):
            a = ACC + 8 * rb + 4 * cb; t = 32 + 4 * rb + 2 * cb
            cvt_pk(t, a, a + 1); cvt_pk(t + 1, a + 2, a + 3)
            e(f"buffer_store_dwordx2 {vr(t,2)}, v{6+rb}, s[16:19], 0 offen offset:{32*cb}")
    lab("K3_END")
    e("s_endpgm")

def main():
    hdr = open(f"cdna_kernels/{NAME}.s.ref").read().split("\n")
    top = [l for l in hdr if l.startswith(";") and "@launch" not in l]
    top.append(f"; @launch kernel={K1} grid=(256,1,1) block=(512,1,1) lds={K1_LDS}")
    top.append(f"; @launch kernel={K2} grid=(256,1,1) block=(256,1,1) lds=4096")
    top.append(f"; @launch kernel={K3} grid=(224,1,1) block=(256,1,1) lds=0")
    L.extend(top)
    L.append('.amdgcn_target "amdgcn-amd-amdhsa--gfx950"'); L.append(".text")
    gen_k1(); gen_k2(); gen_k3()
    L.append('.section .rodata,"a"')
    L.append(kd(K1, 140 + 52, 140)); L.append(kd(K2, 160 + 112, 160)); L.append(kd(K3, 256 + 128, 256))
    open(OUT, "w").write("\n".join(L) + "\n")
main()
```

```python
import sys, os
VAR = os.environ.get("VAR", "")
NAME = "concat_heads__linear_attn_block__sliding_local_dilated__prompt"
OUT = os.environ.get("OUT", f"cdna_kernels/{NAME}.s")

L = []
def e(s=""):
    L.append("    " + s if s and not s.endswith(":") else s)
def lab(s): L.append(s + ":")

WS_PQA = 0
WS_OB = 0x200000
WS_KVP = 0x400000
WS_ZP = 0x500000
WS_WOT = 0x600000
WS_MT = 0x700000
WS_ZC = 0x780000
WS_END = 0x800000

def vr(a, n=1): return f"v{a}" if n == 1 else f"v[{a}:{a+n-1}]"
def ar(a, n=1): return f"a{a}" if n == 1 else f"a[{a}:{a+n-1}]"

def srd(dst, ptr_lo, nbytes):
    e(f"s_mov_b32 s{dst}, s{ptr_lo}")
    e(f"s_and_b32 s{dst+1}, s{ptr_lo+1}, 0xffff")
    e(f"s_mov_b32 s{dst+2}, {nbytes}")
    e(f"s_mov_b32 s{dst+3}, 0x00020000")

def kernel_header(name):
    L.append(".p2align 8"); L.append(f".globl {name}"); L.append(f".type {name},@function"); lab(name)

def kd(name, nvgpr, accum, nsgpr=100):
    return f""".p2align 6
.amdhsa_kernel {name}
  .amdhsa_next_free_vgpr {nvgpr}
  .amdhsa_next_free_sgpr {nsgpr}
  .amdhsa_accum_offset {accum}
  .amdhsa_group_segment_fixed_size 0
  .amdhsa_kernarg_size 72
  .amdhsa_user_sgpr_count 2
  .amdhsa_user_sgpr_kernarg_segment_ptr 1
  .amdhsa_system_sgpr_workgroup_id_x 1
.end_amdhsa_kernel"""

def cvt_pk(dst, a, b): e(f"v_cvt_pk_bf16_f32 v{dst}, v{a}, v{b}")
def unpk_lo(dst, src): e(f"v_lshlrev_b32 v{dst}, 16, v{src}")
def unpk_hi(dst, src): e(f"v_and_b32 v{dst}, 0xffff0000, v{src}")

K1 = NAME + "_k1_kernel"; K2 = NAME + "_k2_kernel"; K3 = NAME + "_k3_kernel"
OOB = "0x7fff0000"
XREG = 144 * 64
WSr = 352
SLOT = XREG + 32 * WSr + 1024
NSLOT = 7
K1_LDS = NSLOT * SLOT
TS = 352
NCH = 14

def gen_k1():
    kernel_header(K1)
    e("s_cmp_ge_u32 s2, 256"); e("s_cbranch_scc1 K1_END")
    e("s_and_b32 s24, s2, 1"); e("s_bfe_u32 s25, s2, 0x20001"); e("s_lshl_b32 s25, s25, 2")
    e("s_bfe_u32 s26, s2, 0x20003"); e("s_add_u32 s25, s25, s26"); e("s_lshr_b32 s26, s2, 5")
    e("s_mul_i32 s29, s24, 24"); e("s_add_u32 s30, s0, s29"); e("s_addc_u32 s31, s1, 0")
    e("s_load_dwordx4 s[4:7], s[30:31], 0"); e("s_load_dwordx2 s[10:11], s[30:31], 16"); e("s_load_dwordx2 s[8:9], s[0:1], 64")
    e("v_lshrrev_b32 v1, 6, v0"); e("s_nop 0"); e("v_readfirstlane_b32 s27, v1")
    e("s_lshl_b32 s28, s25, 7")
    e("s_lshr_b32 s38, s27, 1"); e("s_and_b32 s39, s27, 1")
    e("v_and_b32 v16, 15, v0"); e("v_bfe_u32 v17, v0, 4, 2"); e("v_and_b32 v5, 63, v0")
    e("s_add_u32 s29, s25, s26"); e("s_lshl_b32 s30, s24, 2"); e("s_add_u32 s29, s29, s30")
    for _ in range(2): e(f"s_cmp_ge_u32 s29, {NCH}"); e(f"s_cselect_b32 s30, {NCH}, 0"); e("s_sub_u32 s29, s29, s30")
    if "nostag" in VAR: e("s_mov_b32 s29, 0")
    for i in range(NCH):
        e(f"s_lshl_b32 s{56+i}, s29, 6"); e(f"s_mul_i32 s{70+i}, s29, {32*2688}")
        e("s_cmp_eq_u32 s27, 0"); e(f"s_cselect_b32 s{84+i}, s{56+i}, s{70+i}")
        e("s_add_u32 s29, s29, 1"); e(f"s_cmp_ge_u32 s29, {NCH}"); e(f"s_cselect_b32 s30, {NCH}, 0"); e("s_sub_u32 s29, s29, s30")
    e("v_lshrrev_b32 v6, 2, v5"); e("v_and_b32 v7, 3, v5"); e("v_xor_b32 v7, v7, v17")
    e("s_sub_u32 s29, s28, 16"); e("s_lshl_b32 s30, s27, 4"); e("s_add_u32 s30, s30, s29")
    e("v_add_u32 v2, s30, v6"); e("s_movk_i32 s31, 896"); e("v_mul_lo_u32 v2, v2, s31"); e("v_lshl_add_u32 v2, v7, 4, v2")
    e("s_add_u32 s30, s29, 128"); e("v_add_u32 v8, s30, v6"); e("v_mul_lo_u32 v8, v8, s31"); e("v_lshl_add_u32 v8, v7, 4, v8")
    def wvoff(dst, sbw):
        e(f"s_lshl_b32 s30, s{sbw}, 6"); e("v_add_u32 v6, s30, v5")
        e("s_mov_b32 s31, 0xba2e8bb"); e("v_mul_hi_u32 v7, v6, s31")
        e("v_mul_u32_u24 v9, 22, v7"); e("v_sub_u32 v9, v6, v9")
        e("s_mov_b32 s31, 0x24924925"); e("v_mul_hi_u32 v10, v9, s31")
        e("v_mul_u32_u24 v11, 7, v10"); e("v_sub_u32 v11, v9, v11")
        e(f"v_mul_u32_u24 v{dst}, 2688, v7"); e("v_mul_u32_u24 v10, 896, v10"); e(f"v_add_u32 v{dst}, v{dst}, v10")
        e(f"v_lshl_add_u32 v{dst}, v11, 4, v{dst}"); e("s_mul_i32 s30, s26, 112"); e(f"v_add_u32 v{dst}, s30, v{dst}")
        e("v_cmp_eq_u32 vcc, 21, v9"); e(f"v_mov_b32 v10, {OOB}"); e("s_nop 1"); e(f"v_cndmask_b32 v{dst}, v{dst}, v10, vcc")
    e("s_sub_u32 s32, s27, 1"); wvoff(3, 32)
    e("s_add_u32 s32, s27, 7"); wvoff(4, 32)
    e("s_cmp_eq_u32 s27, 0"); e("s_cbranch_scc0 K1_NW0"); e("v_mov_b32 v3, v8"); lab("K1_NW0")
    e("s_cmp_lt_u32 s27, 4"); e("s_cbranch_scc1 K1_NW4"); e(f"v_mov_b32 v4, {OOB}"); lab("K1_NW4")
    e("s_lshl_b32 s52, s27, 10")
    e("s_lshl_b32 s53, s27, 10"); e(f"s_add_u32 s53, s53, {XREG-1024}")
    e("s_lshl_b32 s54, s27, 10"); e(f"s_add_u32 s54, s54, {XREG+7*1024}")
    e("s_cmp_lt_u32 s27, 4"); e(f"s_cselect_b32 s54, s54, {XREG+32*WSr}")
    e("v_lshrrev_b32 v6, 2, v16"); e("v_lshrrev_b32 v7, 1, v17"); e("v_xor_b32 v7, v7, v6")
    e("v_lshlrev_b32 v8, 6, v16"); e("v_lshl_add_u32 v8, v7, 4, v8"); e("v_and_b32 v9, 1, v17"); e("v_lshl_add_u32 v8, v9, 3, v8")
    e("s_lshl_b32 s29, s38, 11"); e("s_add_u32 s29, s29, 1024")
    AB, BB = 112, 124
    for g3 in range(3):
        o = g3 * 3 * SLOT
        e(f"v_add_u32 v{AB+4*g3+2}, {o}, v8"); e(f"v_xor_b32 v{AB+4*g3+3}, 32, v{AB+4*g3+2}")
        e(f"v_add_u32 v{AB+4*g3}, s29, v{AB+4*g3+2}"); e(f"v_add_u32 v{AB+4*g3+1}, s29, v{AB+4*g3+3}")
    e("v_lshl_add_u32 v9, v17, 2, v6"); e(f"v_mul_u32_u24 v9, {WSr}, v9"); e("v_and_b32 v10, 3, v16"); e("v_lshl_add_u32 v9, v10, 3, v9")
    e(f"v_add_u32 v9, {XREG}, v9")
    e("s_mul_i32 s29, s39, 192"); e("s_lshl_b32 s30, s27, 5"); e("s_add_u32 s30, s30, 96")
    for g3 in range(3):
        o = g3 * 3 * SLOT
        e(f"v_add_u32 v10, {o}, v9"); e(f"v_add_u32 v{BB+2*g3}, s29, v10"); e(f"v_add_u32 v{BB+2*g3+1}, s30, v10")
    for i in range(52): e(f"v_accvgpr_write_b32 a{i}, 0")
    e("s_waitcnt lgkmcnt(0)")
    srd(12, 4, 1835008); srd(16, 6, 448 * 2688); srd(20, 8, WS_END); srd(48, 10, 448 * 896)
    e("s_cmp_eq_u32 s27, 0")
    for i in range(4): e(f"s_cselect_b32 s{44+i}, s{12+i}, s{16+i}")
    e("s_lshl_b32 s29, s25, 3"); e("s_add_u32 s29, s29, s26"); e("s_mul_i32 s29, s29, 196")
    e("v_add_u32 v6, s29, v0"); e("s_mov_b32 s31, 0x924925"); e("v_mul_hi_u32 v7, v6, s31")
    e("v_mul_u32_u24 v8, 448, v7"); e("v_sub_u32 v8, v6, v8")
    e("v_mul_u32_u24 v9, 7168, v7"); e("v_lshl_add_u32 v9, v8, 1, v9")
    e("v_mul_u32_u24 v138, 896, v8"); e("v_lshl_add_u32 v138, v7, 4, v138")
    e("v_cmp_gt_u32 vcc, 196, v0"); e(f"v_mov_b32 v10, {OOB}"); e("s_nop 1")
    e("v_cndmask_b32 v9, v10, v9, vcc"); e("v_cndmask_b32 v138, v10, v138, vcc")
    e("s_movk_i32 s29, 3584")
    for i in range(4):
        so = "0" if i < 2 else "s29"
        e(f"buffer_load_ushort v{130+i}, v9, s[48:51], {so} offen offset:{1792*(i%2)}")
        e(f"buffer_load_ushort v{134+i}, v9, s[48:51], {so} offen offset:{1792*(i%2)+896}")
    def gload(cn):
        sb = (cn % NSLOT) * SLOT
        for i, (sr, so) in enumerate((("s[12:15]", 56), ("s[44:47]", 84), ("s[16:19]", 70))):
            e(f"s_add_u32 m0, s{52+i}, {sb}"); e("s_nop 0")
            e(f"buffer_load_dwordx4 v{2+i}, {sr}, s{so+cn} offen lds")
    F = [32, 72]
    def fread_list(cn, f):
        sl = cn % NSLOT; g3 = sl // 3; b = (sl % 3) * SLOT; base = F[f]; r = []
        for rb in range(2):
            for h in range(2): r.append(f"ds_read_b64 {vr(base+4*rb+2*h,2)}, v{AB+4*g3+h} offset:{b+1024*rb}")
        for cb in range(6):
            for h in range(2): r.append(f"ds_read_b64_tr_b16 {vr(base+16+4*cb+2*h,2)}, v{BB+2*g3} offset:{b+16*h*WSr+32*cb}")
        for h in range(2): r.append(f"ds_read_b64 {vr(base+8+2*h,2)}, v{AB+4*g3+2+h} offset:{b}")
        for h in range(2): r.append(f"ds_read_b64_tr_b16 {vr(base+12+2*h,2)}, v{BB+2*g3+1} offset:{b+16*h*WSr}")
        return r
    def mfma_list(f):
        base = F[f]; r = []
        for cb in range(6):
            for rb in range(2):
                r.append((4 + 2 * (cb + 1), f"v_mfma_f32_16x16x32_bf16 {ar(4*(rb*6+cb),4)}, {vr(base+16+4*cb,4)}, {vr(base+4*rb,4)}, {ar(4*(rb*6+cb),4)}"))
        r.append((20, f"v_mfma_f32_16x16x32_bf16 a[48:51], {vr(base+12,4)}, {vr(base+8,4)}, a[48:51]"))
        return r
    for cn in range(6): gload(cn)
    e("s_waitcnt vmcnt(15)")
    e(f"s_mov_b32 s29, {WS_WOT}"); e("s_lshl_b32 s30, s24, 19"); e("s_add_u32 s29, s29, s30")
    for i in range(4): e(f"v_lshl_or_b32 v{130+i}, v{134+i}, 16, v{130+i}")
    e("buffer_store_dwordx4 v[130:133], v138, s[20:23], s29 offen")
    e("s_barrier")
    for x in fread_list(0, 0): e(x)
    for cn in range(NCH):
        if cn + 1 < NCH:
            last = min(NCH - 1, cn + 5)
            extra = 0
            e(f"s_waitcnt vmcnt({3*(last-(cn+1)) + extra})"); e("s_barrier")
            if cn + 6 < NCH and "nogl" not in VAR: gload(cn + 6)
            nxt = fread_list(cn + 1, (cn + 1) & 1)
        else:
            nxt = []
        if "nocomp" in VAR: continue
        if "nomfma" in VAR:
            while nxt: e(nxt.pop(0))
            e("s_waitcnt lgkmcnt(0)"); continue
        if "nofr" in VAR: nxt = []
        if "delay" in VAR:
            for _ in range(30): e("s_nop 15")
            continue
        if "valu" in VAR:
            for _ in range(60): e("v_mul_f32 v32, v33, v34"); e("v_mul_f32 v35, v33, v34")
            continue
        issued = 0
        for need, ins in mfma_list(cn & 1):
            e(f"s_waitcnt lgkmcnt({min(15, 20-need+issued)})"); e(ins)
            for _ in range(2):
                if nxt: e(nxt.pop(0)); issued += 1
        while nxt: e(nxt.pop(0))
    e("s_barrier")
    if "noepi" in VAR: e("s_branch K1_END")
    e("s_nop 7"); e("s_nop 7")
    e("s_lshl_b32 s29, s38, 5"); e("s_add_u32 s29, s29, 16")
    e("v_add_u32 v22, s29, v16"); e(f"v_mul_u32_u24 v22, {TS}, v22"); e("v_lshl_add_u32 v22, v17, 3, v22")
    e("s_mul_i32 s29, s39, 192"); e("v_add_u32 v22, s29, v22")
    e(f"v_mul_u32_u24 v23, {TS}, v16"); e("v_lshl_add_u32 v23, v17, 3, v23")
    e("s_lshl_b32 s29, s27, 5"); e("v_add_u32 v23, s29, v23")
    e("s_mov_b32 s33, 0x3fb8aa3b"); e("s_mov_b32 s34, 0x358637bd")
    cnt = [0]
    def store_block(a, vaddr, off, phi):
        B = 24 + 16 * (cnt[0] % 4); cnt[0] += 1
        for i in range(4): e(f"v_accvgpr_read_b32 v{B+i}, a{a+i}")
        e("s_nop 0")
        cvt_pk(B+4, B, B+1); cvt_pk(B+5, B+2, B+3)
        if phi:
            unpk_lo(B, B+4); unpk_hi(B+1, B+4); unpk_lo(B+2, B+5); unpk_hi(B+3, B+5)
            for i in range(4): e(f"v_mul_f32 v{B+6+i}, s33, v{B+i}")
            for i in range(4): e(f"v_exp_f32 v{B+6+i}, v{B+6+i}")
            for i in range(4): e(f"v_cmp_lt_f32 s[{40+2*i}:{41+2*i}], 0, v{B+i}")
            for i in range(4): e(f"v_add_f32 v{B+10+i}, 1.0, v{B+i}")
            for i in range(4): e(f"v_cndmask_b32 v{B+i}, v{B+6+i}, v{B+10+i}, s[{40+2*i}:{41+2*i}]")
            cvt_pk(B+4, B, B+1); cvt_pk(B+5, B+2, B+3)
            unpk_lo(B, B+4); unpk_hi(B+1, B+4); unpk_lo(B+2, B+5); unpk_hi(B+3, B+5)
            for i in range(4): e(f"v_add_f32 v{B+i}, s34, v{B+i}")
            cvt_pk(B+4, B, B+1); cvt_pk(B+5, B+2, B+3)
        e(f"ds_write_b64 v{vaddr}, {vr(B+4,2)} offset:{off}")
    e("s_cmp_eq_u32 s24, 0"); e("s_cbranch_scc0 K1_EPB")
    e("s_cmp_eq_u32 s39, 0"); e("s_cbranch_scc0 K1_EPA1")
    for rb in range(2):
        for cb in range(6): store_block(4 * (rb * 6 + cb), 22, 16 * TS * rb + 32 * cb, True)
    e("s_branch K1_EPD")
    lab("K1_EPA1")
    for rb in range(2):
        for cb in range(5): store_block(4 * (rb * 6 + cb), 22, 16 * TS * rb + 32 * cb, cb == 0)
    e("s_branch K1_EPD")
    lab("K1_EPB")
    for rb in range(2):
        for cb in range(5): store_block(4 * (rb * 6 + cb), 22, 16 * TS * rb + 32 * cb, False)
    store_block(48, 23, 96, False)
    e("s_cmp_eq_u32 s39, 0"); e("s_cbranch_scc0 K1_EPD")
    for rb in range(2): store_block(4 * (rb * 6 + 5), 22, 16 * TS * rb + 32 * 5, False)
    lab("K1_EPD")
    e("s_waitcnt lgkmcnt(0)"); e("s_barrier")
    if "noatt" in VAR: e("s_branch K1_END")
    e("s_cmp_eq_u32 s24, 0"); e("s_cbranch_scc0 K1_ATTB")
    e("v_lshrrev_b32 v24, 2, v0"); e("v_bfe_u32 v25, v0, 1, 1"); e("v_and_b32 v23, 1, v0")
    e("v_add_u32 v26, 16, v24"); e(f"v_mul_u32_u24 v26, {TS}, v26"); e("v_mul_u32_u24 v27, 56, v25")
    e("v_add_u32 v26, v26, v27"); e("v_lshl_add_u32 v26, v23, 5, v26")
    for i in range(4): e(f"ds_read_b64 {vr(80+2*i,2)}, v26 offset:{8*i}")
    e("v_add_u32 v27, s28, v24"); e("v_lshlrev_b32 v27, 10, v27"); e("v_and_b32 v28, 3, v0"); e("v_lshl_add_u32 v27, v28, 5, v27")
    e("s_lshl_b32 s29, s26, 7"); e("v_add_u32 v27, s29, v27")
    e("v_cmp_eq_u32 vcc, 1, v23"); e("v_mov_b32 v28, 0")
    e("s_waitcnt lgkmcnt(0)")
    e("v_cndmask_b32 v86, v86, v28, vcc"); e("v_cndmask_b32 v87, v87, v28, vcc")
    e("buffer_store_dwordx4 v[80:83], v27, s[20:23], 0 offen"); e("buffer_store_dwordx4 v[84:87], v27, s[20:23], 0 offen offset:16")
    e("s_cmp_ge_u32 s27, 4"); e("s_cbranch_scc1 K1_END")
    e("v_lshrrev_b32 v24, 2, v16"); e("v_lshl_add_u32 v24, v17, 2, v24"); e("v_add_u32 v24, 16, v24")
    e(f"v_mul_u32_u24 v24, {TS}, v24"); e("v_and_b32 v25, 3, v16"); e("v_lshl_add_u32 v24, v25, 3, v24")
    e("s_lshr_b32 s29, s27, 1"); e("s_and_b32 s30, s27, 1"); e("s_mul_i32 s31, s29, 56")
    e("s_lshl_b32 s32, s30, 5"); e("s_add_u32 s32, s32, s31"); e("s_add_u32 s32, s32, 112"); e("s_add_u32 s31, s31, 224")
    e("v_add_u32 v25, s32, v24"); e("v_add_u32 v26, s31, v24")
    for i in range(12): e(f"v_accvgpr_write_b32 a{i}, 0")
    for i in range(4): e(f"v_mov_b32 v{76+i}, 0x3f803f80")
    for ks in range(4):
        o = 28 + 12 * ks
        for h in range(2): e(f"ds_read_b64_tr_b16 {vr(o+2*h,2)}, v25 offset:{(32*ks+16*h)*TS}")
        for nb in range(2):
            for h in range(2): e(f"ds_read_b64_tr_b16 {vr(o+4+4*nb+2*h,2)}, v26 offset:{(32*ks+16*h)*TS+32*nb}")
    for ks in range(4):
        o = 28 + 12 * ks
        e(f"s_waitcnt lgkmcnt({min(15,6*(3-ks))})")
        e(f"v_mfma_f32_16x16x32_bf16 a[0:3], {vr(o,4)}, {vr(o+4,4)}, a[0:3]")
        e(f"v_mfma_f32_16x16x32_bf16 a[4:7], {vr(o,4)}, {vr(o+8,4)}, a[4:7]")
        e(f"v_mfma_f32_16x16x32_bf16 a[8:11], {vr(o,4)}, v[76:79], a[8:11]")
    e("s_lshl_b32 s31, s26, 1"); e("s_add_u32 s31, s31, s29"); e("s_lshl_b32 s32, s25, 4"); e("s_add_u32 s31, s31, s32")
    e("s_lshl_b32 s32, s31, 12"); e("s_lshl_b32 s33, s31, 7"); e("s_lshl_b32 s34, s30, 4")
    e("v_lshl_add_u32 v24, v17, 2, s34"); e("v_lshlrev_b32 v25, 7, v24"); e("v_lshl_add_u32 v25, v16, 2, v25")
    e("v_add_u32 v25, s32, v25"); e("v_lshlrev_b32 v26, 2, v24"); e("v_add_u32 v26, s33, v26")
    e(f"s_mov_b32 s35, {WS_KVP}"); e(f"s_mov_b32 s36, {WS_ZP}")
    e("s_nop 7")
    for i in range(12): e(f"v_accvgpr_read_b32 v{28+i}, a{i}")
    e("s_nop 0")
    for nb in range(2):
        for i in range(4): e(f"buffer_store_dword v{28+4*nb+i}, v25, s[20:23], s35 offen offset:{128*i + 64*nb}")
    for i in range(4): e(f"buffer_store_dword v{36+i}, v26, s[20:23], s36 offen offset:{4*i}")
    e("s_branch K1_END")
    lab("K1_ATTB")
    e("v_lshrrev_b32 v24, 2, v0"); e("v_bfe_u32 v25, v0, 1, 1"); e("v_and_b32 v23, 1, v0")
    e("v_add_u32 v26, 2, v24"); e(f"v_mul_u32_u24 v26, {TS}, v26"); e("v_mul_u32_u24 v27, 56, v25")
    e("v_add_u32 v26, v26, v27"); e("v_lshl_add_u32 v26, v23, 5, v26")
    Q, KV, LG, O = 28, 36, 100, 108
    for i in range(4): e(f"ds_read_b64 {vr(Q+2*i,2)}, v26 offset:{14*TS+8*i}")
    for w in range(8):
        for i in range(4): e(f"ds_read_b64 {vr(KV+8*w+2*i,2)}, v26 offset:{(14-2*w)*TS+112+8*i}")
    e("v_add_u32 v27, s28, v24")
    e("s_mov_b32 s33, 0x3e4184d8"); e("s_mov_b32 s34, 0xce6e6b28"); e("s_mov_b32 s35, 0x3fb8aa3b")
    e("v_cmp_eq_u32 vcc, 1, v23"); e("v_mov_b32 v124, 0")
    e("s_waitcnt lgkmcnt(15)")
    e(f"v_cndmask_b32 v{Q+6}, v{Q+6}, v124, vcc"); e(f"v_cndmask_b32 v{Q+7}, v{Q+7}, v124, vcc")
    for w in range(8):
        e(f"s_waitcnt lgkmcnt({min(15,4*(7-w))})")
        e(f"v_dot2_f32_bf16 v{LG+w}, v{Q}, v{KV+8*w}, 0")
        for i in range(1, 8): e(f"v_dot2_f32_bf16 v{LG+w}, v{Q+i}, v{KV+8*w+i}, v{LG+w}")
    for w in range(8):
        for i in range(4): e(f"ds_read_b64 {vr(KV+8*w+2*i,2)}, v26 offset:{(14-2*w)*TS+224+8*i}")
    e("s_nop 1")
    for w in range(8):
        e(f"v_add_f32_dpp v{O+w}, v{LG+w}, v{LG+w} quad_perm:[1,0,3,2] row_mask:0xf bank_mask:0xf")
    for w in range(0, 8, 2):
        cvt_pk(124, O + w, O + w + 1); unpk_lo(LG + w, 124); unpk_hi(LG + w + 1, 124)
        e(f"v_mul_f32 v{LG+w}, s33, v{LG+w}"); e(f"v_mul_f32 v{LG+w+1}, s33, v{LG+w+1}")
        cvt_pk(124, LG + w, LG + w + 1); unpk_lo(LG + w, 124); unpk_hi(LG + w + 1, 124)
    e("v_mov_b32 v125, s34")
    for w in range(1, 8): e(f"v_cmp_gt_u32 s[{40+2*w}:{41+2*w}], {2*w}, v27")
    e("s_nop 1")
    for w in range(1, 8): e(f"v_cndmask_b32 v{LG+w}, v{LG+w}, v125, s[{40+2*w}:{41+2*w}]")
    e(f"v_max3_f32 v124, v{LG}, v{LG+1}, v{LG+2}"); e(f"v_max3_f32 v125, v{LG+3}, v{LG+4}, v{LG+5}")
    e(f"v_max3_f32 v124, v124, v{LG+6}, v{LG+7}"); e("v_max_f32 v124, v124, v125")
    for w in range(8): e(f"v_sub_f32 v{LG+w}, v{LG+w}, v124")
    for w in range(8): e(f"v_mul_f32 v{LG+w}, s35, v{LG+w}")
    for w in range(8): e(f"v_exp_f32 v{LG+w}, v{LG+w}")
    e("s_nop 0")
    e(f"v_add_f32 v124, v{LG}, v{LG+1}"); e(f"v_add_f32 v125, v{LG+2}, v{LG+3}")
    e(f"v_add_f32 v126, v{LG+4}, v{LG+5}"); e(f"v_add_f32 v127, v{LG+6}, v{LG+7}")
    e("v_add_f32 v124, v124, v125"); e("v_add_f32 v126, v126, v127"); e("v_add_f32 v124, v124, v126")
    e("v_rcp_f32 v124, v124"); e("s_nop 0")
    for w in range(8): e(f"v_mul_f32 v{LG+w}, v124, v{LG+w}")
    for w in range(0, 8, 2):
        cvt_pk(124, LG + w, LG + w + 1); unpk_lo(LG + w, 124); unpk_hi(LG + w + 1, 124)
    for w in range(8):
        e(f"s_waitcnt lgkmcnt({min(15,4*(7-w))})")
        for i in range(8):
            unpk_lo(124, KV + 8 * w + i); unpk_hi(125, KV + 8 * w + i)
            if w == 0:
                e(f"v_mul_f32 v{O+2*i}, v124, v{LG}"); e(f"v_mul_f32 v{O+2*i+1}, v125, v{LG}")
            else:
                e(f"v_fma_f32 v{O+2*i}, v124, v{LG+w}, v{O+2*i}"); e(f"v_fma_f32 v{O+2*i+1}, v125, v{LG+w}, v{O+2*i+1}")
    for i in range(8): cvt_pk(Q + i, O + 2 * i, O + 2 * i + 1)
    e("s_movk_i32 s30, 896"); e("v_mul_lo_u32 v27, v27, s30"); e("v_mul_u32_u24 v124, 56, v25")
    e("v_add_u32 v27, v27, v124"); e("v_lshl_add_u32 v27, v23, 5, v27")
    e("s_mul_i32 s29, s26, 112"); e("v_add_u32 v27, s29, v27")
    e(f"v_mov_b32 v124, {OOB}"); e("v_cndmask_b32 v124, v27, v124, vcc")
    e(f"s_mov_b32 s36, {WS_OB}")
    for i in range(4):
        e(f"buffer_store_dwordx2 {vr(Q+2*i,2)}, v{27 if i < 3 else 124}, s[20:23], s36 offen offset:{8*i}")
    lab("K1_END")
    e("s_endpgm")

def outproj(P_, isA):
    rowbytes = 1024 if isA else 896
    e("s_mul_hi_u32 s24, s2, 0x24924925"); e("s_mul_i32 s25, s24, 7"); e("s_sub_u32 s25, s2, s25")
    e("s_lshr_b32 s30, s27, 1"); e("s_and_b32 s31, s27, 1")
    e("s_lshl_b32 s28, s24, 6"); e("s_lshl_b32 s26, s25, 6")
    e(f"s_movk_i32 s29, {rowbytes}")
    e("s_lshl_b32 s32, s27, 4"); e("s_add_u32 s33, s32, s28"); e("s_add_u32 s32, s32, s26")
    for ii in range(4):
        e(f"v_add_u32 v22, {4*ii}, v17"); e("v_xor_b32 v23, v22, v16")
        e("v_add_u32 v24, s33, v22"); e(f"v_mul_lo_u32 v{2+ii}, v24, s29"); e(f"v_lshl_add_u32 v{2+ii}, v23, 4, v{2+ii}")
        e("v_add_u32 v24, s32, v22"); e(f"v_mul_lo_u32 v{6+ii}, v24, s29"); e(f"v_lshl_add_u32 v{6+ii}, v23, 4, v{6+ii}")
        if not isA:
            e("v_cmp_lt_u32 vcc, 7, v23"); e(f"v_mov_b32 v24, {OOB}"); e("s_nop 0")
            e(f"v_cndmask_b32 v{10+ii}, v{2+ii}, v24, vcc"); e(f"v_cndmask_b32 v{18+ii}, v{6+ii}, v24, vcc")
    e("s_lshl_b32 s34, s27, 12")
    e("s_waitcnt lgkmcnt(0)")
    srd(16, 6, 2048 * 1792); srd(20, 8, WS_END)
    sa, sb = (WS_PQA, WS_MT) if isA else (WS_OB, WS_WOT + 0x80000)
    Z, ZF, DEN, RD, PP, ACC = 96, 100, 116, 124, 132, 196
    if isA:
        e("v_lshlrev_b32 v22, 6, v16"); e("v_lshl_add_u32 v22, v17, 4, v22"); e(f"s_mov_b32 s38, {WS_ZC}")
        e(f"buffer_load_dwordx4 {vr(Z,4)}, v22, s[20:23], s38 offen")
    for q in range(4):
        e(f"s_mov_b32 s36, {sa+256*q}"); e(f"s_mov_b32 s37, {sb+256*q}")
        for ii in range(4):
            va = (2 if (isA or q < 3) else 10) + ii; vb = (6 if (isA or q < 3) else 18) + ii
            e(f"s_add_u32 m0, s34, {q*16384+ii*1024}"); e("s_nop 0"); e(f"buffer_load_dwordx4 v{va}, s[20:23], s36 offen lds")
            e(f"s_add_u32 m0, s34, {65536+q*16384+ii*1024}"); e("s_nop 0"); e(f"buffer_load_dwordx4 v{vb}, s[20:23], s37 offen lds")
    e("v_lshrrev_b32 v22, 2, v16"); e("v_and_b32 v23, 3, v16"); e("v_xor_b32 v23, v23, v17")
    e("v_lshlrev_b32 v1, 8, v16"); e("v_lshl_add_u32 v1, v23, 4, v1")
    e("s_lshl_b32 s35, s30, 13"); e("s_lshl_b32 s39, s31, 13"); e("s_add_u32 s39, s39, 65536")
    for jl in range(4):
        e(f"v_xor_b32 v23, {jl}, v22"); e("v_lshl_add_u32 v23, v23, 6, v1")
        e(f"v_add_u32 v{24+jl}, s35, v23"); e(f"v_add_u32 v{28+jl}, s39, v23")
    if isA:
        e("v_mov_b32 v15, 0"); e("s_mov_b32 s34, 0x358637bd")
    FA, FB = 32, 64
    for q in range(4):
        nst = 4 if (isA or q < 3) else 2
        e(f"s_waitcnt vmcnt({8*(3-q)})"); e("s_barrier")
        for jl in range(nst):
            for rb in range(2): e(f"ds_read_b128 {vr(FA+16*rb+4*jl,4)}, v{24+jl} offset:{q*16384+rb*4096}")
        for jl in range(nst):
            for cb in range(2): e(f"ds_read_b128 {vr(FB+16*cb+4*jl,4)}, v{28+jl} offset:{q*16384+cb*4096}")
        if isA:
            e(f"v_lshlrev_b32 v14, 2, v16"); e(f"v_add_u32 v14, {64*q}, v14")
            for jl in range(4):
                j = 4 * q + jl
                e(f"v_cmp_eq_u32 vcc, {j}, v16"); e("s_nop 0")
                for i in range(4): e(f"v_cndmask_b32 v{ZF+4*jl+i}, v15, v{Z+i}, vcc")
            for jl in range(4):
                e(f"s_waitcnt lgkmcnt({8+2*(3-jl)})")
                for rb in range(2):
                    e(f"v_mfma_f32_16x16x32_bf16 {vr(DEN+4*rb,4)}, {vr(ZF+4*jl,4)}, {vr(FA+16*rb+4*jl,4)}, {vr(DEN+4*rb,4) if (q or jl) else 0}")
            for jl in range(4):
                e(f"s_waitcnt lgkmcnt({2*(3-jl)})")
                for rb in range(2):
                    for cb in range(2):
                        e(f"v_mfma_f32_16x16x32_bf16 {vr(PP+16*jl+8*rb+4*cb,4)}, {vr(FB+16*cb+4*jl,4)}, {vr(FA+16*rb+4*jl,4)}, 0")
            T = 10
            for rb in range(2):
                d = DEN + 4 * rb; t = 2 + 4 * rb
                cvt_pk(T, d, d + 1); cvt_pk(T + 1, d + 2, d + 3)
                unpk_lo(t, T); unpk_hi(t + 1, T); unpk_lo(t + 2, T + 1); unpk_hi(t + 3, T + 1)
                for i in range(4): e(f"v_add_f32 v{t+i}, s34, v{t+i}")
                cvt_pk(T, t, t + 1); cvt_pk(T + 1, t + 2, t + 3)
                unpk_lo(t, T); unpk_hi(t + 1, T); unpk_lo(t + 2, T + 1); unpk_hi(t + 3, T + 1)
                for i in range(4): e(f"v_rcp_f32 v{t+i}, v{t+i}")
            e("s_nop 0")
            for rb in range(2):
                for i in range(4): e(f"ds_bpermute_b32 v{RD+4*rb+i}, v14, v{2+4*rb+i}")
            e("s_waitcnt lgkmcnt(0)")
            for jl in range(4):
                for rb in range(2):
                    for k in range(8):
                        a = ACC + 8 * rb + k
                        if q == 0 and jl == 0: e(f"v_mul_f32 v{a}, v{PP+16*jl+8*rb+k}, v{RD+4*rb+jl}")
                        else: e(f"v_fmac_f32 v{a}, v{PP+16*jl+8*rb+k}, v{RD+4*rb+jl}")
        else:
            for jl in range(nst):
                e(f"s_waitcnt lgkmcnt({2*(nst-1-jl)})")
                for rb in range(2):
                    for cb in range(2):
                        a = ACC + 8 * rb + 4 * cb
                        e(f"v_mfma_f32_16x16x32_bf16 {vr(a,4)}, {vr(FB+16*cb+4*jl,4)}, {vr(FA+16*rb+4*jl,4)}, {vr(a,4) if (q or jl) else 0}")
    if not isA: e("s_nop 7"); e("s_nop 7")
    e("s_lshl_b32 s29, s30, 5"); e("s_add_u32 s28, s28, s29"); e("s_lshl_b32 s29, s31, 5"); e("s_add_u32 s26, s26, s29")
    e("v_add_u32 v6, s28, v16"); e("s_movk_i32 s29, 1792"); e("v_mul_lo_u32 v6, v6, s29"); e("v_lshl_add_u32 v6, v17, 3, v6")
    e("s_lshl_b32 s29, s26, 1"); e(f"s_add_u32 s29, s29, {0 if isA else 896}"); e("v_add_u32 v6, s29, v6"); e(f"v_add_u32 v7, {16*1792}, v6")
    for rb in range(2):
        for cb in range(2):
            a = ACC + 8 * rb + 4 * cb; t = 32 + 4 * rb + 2 * cb
            cvt_pk(t, a, a + 1); cvt_pk(t + 1, a + 2, a + 3)
            e(f"buffer_store_dwordx2 {vr(t,2)}, v{6+rb}, s[16:19], 0 offen offset:{32*cb}")

def gen_k2():
    kernel_header(K2)
    e("s_cmp_ge_u32 s2, 256"); e("s_cbranch_scc1 K2_END")
    e("s_load_dwordx2 s[6:7], s[0:1], 48"); e("s_load_dwordx2 s[8:9], s[0:1], 64")
    e("v_lshrrev_b32 v1, 6, v0"); e("s_nop 0"); e("v_readfirstlane_b32 s27, v1")
    e("v_and_b32 v16, 15, v0"); e("v_bfe_u32 v17, v0, 4, 2")
    e("s_cmp_lt_u32 s2, 224"); e("s_cbranch_scc1 K2_GEMM")
    e("s_sub_u32 s3, s2, 224"); e("s_lshr_b32 s24, s3, 1"); e("s_and_b32 s25, s3, 1")
    e("v_lshlrev_b32 v2, 4, v0"); e("s_lshl_b32 s26, s24, 12"); e("v_add_u32 v2, s26, v2")
    e("v_lshlrev_b32 v3, 2, v0"); e("s_lshl_b32 s26, s24, 7"); e("v_add_u32 v3, s26, v3")
    e("v_cmp_gt_u32 vcc, 32, v0"); e(f"v_mov_b32 v4, {OOB}"); e("s_nop 1"); e("v_cndmask_b32 v3, v4, v3, vcc")
    e("s_mul_i32 s26, s25, 14"); e("s_add_u32 s26, s26, s27"); e("s_lshl_b32 s26, s26, 4")
    e("v_add_u32 v5, s26, v16"); e("s_movk_i32 s29, 896"); e("v_mul_lo_u32 v6, v5, s29"); e("v_lshl_add_u32 v6, v17, 4, v6")
    e("s_mul_i32 s29, s24, 56"); e("v_add_u32 v6, s29, v6")
    e("v_lshlrev_b32 v7, 10, v5"); e("v_lshl_add_u32 v7, v17, 3, v7"); e("s_lshl_b32 s29, s24, 6"); e("v_add_u32 v7, s29, v7")
    e("s_waitcnt lgkmcnt(0)")
    srd(16, 6, 2048 * 1792); srd(20, 8, WS_END)
    e(f"s_mov_b32 s35, {WS_KVP}"); e(f"s_mov_b32 s36, {WS_ZP}"); e(f"s_mov_b32 s37, {WS_WOT}")
    for rt in range(16):
        e(f"v_add_u32 v8, {65536*rt}, v2"); e(f"buffer_load_dwordx4 {vr(32+4*rt,4)}, v8, s[20:23], s35 offen")
    for i in range(4):
        e(f"v_add_u32 v8, {64*896*i}, v6")
        if i == 3:
            e("s_cmp_lt_u32 s27, 2"); e("s_cbranch_scc1 K2_I3"); e(f"v_mov_b32 v8, {OOB}"); lab("K2_I3")
        e(f"buffer_load_dwordx4 {vr(112+4*i,4)}, v8, s[20:23], s37 offen")
    for rt in range(16):
        e(f"v_add_u32 v8, {2048*rt}, v3"); e(f"buffer_load_dword v{96+rt}, v8, s[20:23], s36 offen")
    for rt in range(1, 16):
        e(f"s_waitcnt vmcnt({20+15-rt})")
        for i in range(4): e(f"v_add_f32 v{32+i}, v{32+i}, v{32+4*rt+i}")
    e("v_and_b32 v8, 7, v0"); e("v_cmp_eq_u32 s[40:41], 7, v8"); e("v_cmp_lt_u32 vcc, 223, v0"); e("s_or_b64 vcc, vcc, s[40:41]")
    e("v_mov_b32 v9, 0"); cvt_pk(36, 32, 33); cvt_pk(37, 34, 35)
    e("v_cndmask_b32 v36, v36, v9, vcc"); e("v_cndmask_b32 v37, v37, v9, vcc")
    e("v_lshrrev_b32 v10, 3, v0"); e("v_mul_u32_u24 v10, 80, v10"); e("v_lshl_add_u32 v10, v8, 3, v10")
    e("ds_write_b64 v10, v[36:37]")
    e("v_mul_u32_u24 v11, 80, v16"); e("v_lshl_add_u32 v11, v17, 4, v11")
    e("s_waitcnt lgkmcnt(0)"); e("s_barrier")
    e("ds_read_b128 v[40:43], v11"); e(f"ds_read_b128 v[44:47], v11 offset:{16*80}")
    e("v_cmp_eq_u32 vcc, 3, v17")
    e("s_waitcnt lgkmcnt(0) vmcnt(16)")
    for i in range(4):
        e(f"v_cndmask_b32 v{114+4*i}, v{114+4*i}, v9, vcc"); e(f"v_cndmask_b32 v{115+4*i}, v{115+4*i}, v9, vcc")
    e("s_nop 1")
    for i in range(4):
        for db in range(2):
            e(f"v_mfma_f32_16x16x32_bf16 {vr(48+8*i+4*db,4)}, {vr(40+4*db,4)}, {vr(112+4*i,4)}, 0")
    e("s_waitcnt vmcnt(0)")
    for rt in range(1, 16): e(f"v_add_f32 v96, v96, v{96+rt}")
    e("v_cmp_lt_u32 vcc, 27, v0"); e("s_nop 1"); e("v_cndmask_b32 v96, v96, v9, vcc"); e("s_nop 0"); cvt_pk(96, 96, 96)
    e("v_lshlrev_b32 v12, 1, v0"); e("s_lshl_b32 s29, s24, 6"); e("v_add_u32 v12, s29, v12")
    e("v_cmp_gt_u32 vcc, 32, v0"); e("s_cmp_eq_u32 s25, 0"); e("s_cselect_b64 s[40:41], -1, 0"); e("s_and_b64 vcc, vcc, s[40:41]")
    e(f"v_cndmask_b32 v12, v4, v12, vcc"); e(f"s_mov_b32 s38, {WS_ZC}")
    e("buffer_store_short v96, v12, s[20:23], s38 offen")
    e(f"s_mov_b32 s38, {WS_MT}")
    for i in range(4):
        e(f"v_add_u32 v8, {64*1024*i}, v7")
        if i == 3:
            e("s_cmp_lt_u32 s27, 2"); e("s_cbranch_scc1 K2_I3S"); e(f"v_mov_b32 v8, {OOB}"); lab("K2_I3S")
        for db in range(2):
            a = 48 + 8 * i + 4 * db
            cvt_pk(80 + 2 * db, a, a + 1); cvt_pk(81 + 2 * db, a + 2, a + 3)
            e(f"buffer_store_dwordx2 {vr(80+2*db,2)}, v8, s[20:23], s38 offen offset:{32*db}")
    e("s_branch K2_END")
    lab("K2_GEMM")
    outproj("K2", False)
    lab("K2_END")
    e("s_endpgm")

def gen_k3():
    kernel_header(K3)
    e("s_cmp_ge_u32 s2, 224"); e("s_cbranch_scc1 K3_END")
    e("s_load_dwordx2 s[6:7], s[0:1], 48"); e("s_load_dwordx2 s[8:9], s[0:1], 64")
    e("v_lshrrev_b32 v1, 6, v0"); e("s_nop 0"); e("v_readfirstlane_b32 s27, v1")
    e("v_and_b32 v16, 15, v0"); e("v_bfe_u32 v17, v0, 4, 2")
    outproj("K3", True)
    lab("K3_END")
    e("s_endpgm")

def main():
    hdr = open(f"cdna_kernels/{NAME}.s.ref").read().split("\n")
    top = [l for l in hdr if l.startswith(";") and "@launch" not in l]
    top.append(f"; @launch kernel={K1} grid=(256,1,1) block=(512,1,1) lds={K1_LDS}")
    top.append(f"; @launch kernel={K2} grid=(256,1,1) block=(256,1,1) lds=131072")
    top.append(f"; @launch kernel={K3} grid=(224,1,1) block=(256,1,1) lds=131072")
    L.extend(top)
    L.append('.amdgcn_target "amdgcn-amd-amdhsa--gfx950"'); L.append(".text")
    gen_k1(); gen_k2(); gen_k3()
    L.append('.section .rodata,"a"')
    L.append(kd(K1, 140 + 52, 140)); L.append(kd(K2, 212, 212)); L.append(kd(K3, 212, 212))
    open(OUT, "w").write("\n".join(L) + "\n")
main()
```

```python
import sys, os
VAR = os.environ.get("VAR", "")
NAME = "concat_heads__linear_attn_block__sliding_local_dilated__prompt"
OUT = os.environ.get("OUT", f"cdna_kernels/{NAME}.s")

L = []
def e(s=""):
    L.append("    " + s if s and not s.endswith(":") else s)
def lab(s): L.append(s + ":")

WS_PQA = 0
WS_OB = 0x200000
WS_KVP = 0x400000
WS_ZP = 0x500000
WS_WOT = 0x600000
WS_MT = 0x700000
WS_ZC = 0x780000
WS_END = 0x800000

def vr(a, n=1): return f"v{a}" if n == 1 else f"v[{a}:{a+n-1}]"
def ar(a, n=1): return f"a{a}" if n == 1 else f"a[{a}:{a+n-1}]"

def srd(dst, ptr_lo, nbytes):
    e(f"s_mov_b32 s{dst}, s{ptr_lo}")
    e(f"s_and_b32 s{dst+1}, s{ptr_lo+1}, 0xffff")
    e(f"s_mov_b32 s{dst+2}, {nbytes}")
    e(f"s_mov_b32 s{dst+3}, 0x00020000")

def kernel_header(name):
    L.append(".p2align 8"); L.append(f".globl {name}"); L.append(f".type {name},@function"); lab(name)

def kd(name, nvgpr, accum, nsgpr=100):
    return f""".p2align 6
.amdhsa_kernel {name}
  .amdhsa_next_free_vgpr {nvgpr}
  .amdhsa_next_free_sgpr {nsgpr}
  .amdhsa_accum_offset {accum}
  .amdhsa_group_segment_fixed_size 0
  .amdhsa_kernarg_size 72
  .amdhsa_user_sgpr_count 2
  .amdhsa_user_sgpr_kernarg_segment_ptr 1
  .amdhsa_system_sgpr_workgroup_id_x 1
.end_amdhsa_kernel"""

def cvt_pk(dst, a, b): e(f"v_cvt_pk_bf16_f32 v{dst}, v{a}, v{b}")
def unpk_lo(dst, src): e(f"v_lshlrev_b32 v{dst}, 16, v{src}")
def unpk_hi(dst, src): e(f"v_and_b32 v{dst}, 0xffff0000, v{src}")

K1 = NAME + "_k1_kernel"; K2 = NAME + "_k2_kernel"; K3 = NAME + "_k3_kernel"
OOB = "0x7fff0000"
XREG = 144 * 64
WSr = 352
SLOT = XREG + 32 * WSr + 1024
NSLOT = 7
K1_LDS = NSLOT * SLOT
TS = 352
NCH = 14

def gen_k1():
    kernel_header(K1)
    e("s_cmp_ge_u32 s2, 256"); e("s_cbranch_scc1 K1_END")
    e("s_and_b32 s24, s2, 1"); e("s_bfe_u32 s25, s2, 0x20001"); e("s_lshl_b32 s25, s25, 2")
    e("s_bfe_u32 s26, s2, 0x20003"); e("s_add_u32 s25, s25, s26"); e("s_lshr_b32 s26, s2, 5")
    e("s_mul_i32 s29, s24, 24"); e("s_add_u32 s30, s0, s29"); e("s_addc_u32 s31, s1, 0")
    e("s_load_dwordx4 s[4:7], s[30:31], 0"); e("s_load_dwordx2 s[10:11], s[30:31], 16"); e("s_load_dwordx2 s[8:9], s[0:1], 64")
    e("v_lshrrev_b32 v1, 6, v0"); e("s_nop 0"); e("v_readfirstlane_b32 s27, v1")
    e("s_lshl_b32 s28, s25, 7")
    e("s_lshr_b32 s38, s27, 1"); e("s_and_b32 s39, s27, 1")
    e("v_and_b32 v16, 15, v0"); e("v_bfe_u32 v17, v0, 4, 2"); e("v_and_b32 v5, 63, v0")
    e("s_add_u32 s29, s25, s26"); e("s_lshl_b32 s30, s24, 2"); e("s_add_u32 s29, s29, s30")
    for _ in range(2): e(f"s_cmp_ge_u32 s29, {NCH}"); e(f"s_cselect_b32 s30, {NCH}, 0"); e("s_sub_u32 s29, s29, s30")
    if "nostag" in VAR: e("s_mov_b32 s29, 0")
    for i in range(NCH):
        e(f"s_lshl_b32 s{56+i}, s29, 6"); e(f"s_mul_i32 s{70+i}, s29, {32*2688}")
        e("s_cmp_eq_u32 s27, 0"); e(f"s_cselect_b32 s{84+i}, s{56+i}, s{70+i}")
        e("s_add_u32 s29, s29, 1"); e(f"s_cmp_ge_u32 s29, {NCH}"); e(f"s_cselect_b32 s30, {NCH}, 0"); e("s_sub_u32 s29, s29, s30")
    e("v_lshrrev_b32 v6, 2, v5"); e("v_and_b32 v7, 3, v5"); e("v_xor_b32 v7, v7, v17")
    e("s_sub_u32 s29, s28, 16"); e("s_lshl_b32 s30, s27, 4"); e("s_add_u32 s30, s30, s29")
    e("v_add_u32 v2, s30, v6"); e("s_movk_i32 s31, 896"); e("v_mul_lo_u32 v2, v2, s31"); e("v_lshl_add_u32 v2, v7, 4, v2")
    e("s_add_u32 s30, s29, 128"); e("v_add_u32 v8, s30, v6"); e("v_mul_lo_u32 v8, v8, s31"); e("v_lshl_add_u32 v8, v7, 4, v8")
    def wvoff(dst, sbw):
        e(f"s_lshl_b32 s30, s{sbw}, 6"); e("v_add_u32 v6, s30, v5")
        e("s_mov_b32 s31, 0xba2e8bb"); e("v_mul_hi_u32 v7, v6, s31")
        e("v_mul_u32_u24 v9, 22, v7"); e("v_sub_u32 v9, v6, v9")
        e("s_mov_b32 s31, 0x24924925"); e("v_mul_hi_u32 v10, v9, s31")
        e("v_mul_u32_u24 v11, 7, v10"); e("v_sub_u32 v11, v9, v11")
        e(f"v_mul_u32_u24 v{dst}, 2688, v7"); e("v_mul_u32_u24 v10, 896, v10"); e(f"v_add_u32 v{dst}, v{dst}, v10")
        e(f"v_lshl_add_u32 v{dst}, v11, 4, v{dst}"); e("s_mul_i32 s30, s26, 112"); e(f"v_add_u32 v{dst}, s30, v{dst}")
        e("v_cmp_eq_u32 vcc, 21, v9"); e(f"v_mov_b32 v10, {OOB}"); e("s_nop 1"); e(f"v_cndmask_b32 v{dst}, v{dst}, v10, vcc")
    e("s_sub_u32 s32, s27, 1"); wvoff(3, 32)
    e("s_add_u32 s32, s27, 7"); wvoff(4, 32)
    e("s_cmp_eq_u32 s27, 0"); e("s_cbranch_scc0 K1_NW0"); e("v_mov_b32 v3, v8"); lab("K1_NW0")
    e("s_cmp_lt_u32 s27, 4"); e("s_cbranch_scc1 K1_NW4"); e(f"v_mov_b32 v4, {OOB}"); lab("K1_NW4")
    e("s_lshl_b32 s52, s27, 10")
    e("s_lshl_b32 s53, s27, 10"); e(f"s_add_u32 s53, s53, {XREG-1024}")
    e("s_lshl_b32 s54, s27, 10"); e(f"s_add_u32 s54, s54, {XREG+7*1024}")
    e("s_cmp_lt_u32 s27, 4"); e(f"s_cselect_b32 s54, s54, {XREG+32*WSr}")
    e("v_lshrrev_b32 v6, 2, v16"); e("v_lshrrev_b32 v7, 1, v17"); e("v_xor_b32 v7, v7, v6")
    e("v_lshlrev_b32 v8, 6, v16"); e("v_lshl_add_u32 v8, v7, 4, v8"); e("v_and_b32 v9, 1, v17"); e("v_lshl_add_u32 v8, v9, 3, v8")
    e("s_lshl_b32 s29, s38, 11"); e("s_add_u32 s29, s29, 1024")
    AB, BB = 112, 124
    for g3 in range(3):
        o = g3 * 3 * SLOT
        e(f"v_add_u32 v{AB+4*g3+2}, {o}, v8"); e(f"v_xor_b32 v{AB+4*g3+3}, 32, v{AB+4*g3+2}")
        e(f"v_add_u32 v{AB+4*g3}, s29, v{AB+4*g3+2}"); e(f"v_add_u32 v{AB+4*g3+1}, s29, v{AB+4*g3+3}")
    e("v_lshl_add_u32 v9, v17, 2, v6"); e(f"v_mul_u32_u24 v9, {WSr}, v9"); e("v_and_b32 v10, 3, v16"); e("v_lshl_add_u32 v9, v10, 3, v9")
    e(f"v_add_u32 v9, {XREG}, v9")
    e("s_mul_i32 s29, s39, 192"); e("s_lshl_b32 s30, s27, 5"); e("s_add_u32 s30, s30, 96")
    for g3 in range(3):
        o = g3 * 3 * SLOT
        e(f"v_add_u32 v10, {o}, v9"); e(f"v_add_u32 v{BB+2*g3}, s29, v10"); e(f"v_add_u32 v{BB+2*g3+1}, s30, v10")
    for i in range(52): e(f"v_accvgpr_write_b32 a{i}, 0")
    e("s_waitcnt lgkmcnt(0)")
    srd(12, 4, 1835008); srd(16, 6, 448 * 2688); srd(20, 8, WS_END); srd(48, 10, 448 * 896)
    e("s_cmp_eq_u32 s27, 0")
    for i in range(4): e(f"s_cselect_b32 s{44+i}, s{12+i}, s{16+i}")
    e("s_lshl_b32 s29, s25, 3"); e("s_add_u32 s29, s29, s26"); e("s_mul_i32 s29, s29, 196")
    e("v_add_u32 v6, s29, v0"); e("s_mov_b32 s31, 0x924925"); e("v_mul_hi_u32 v7, v6, s31")
    e("v_mul_u32_u24 v8, 448, v7"); e("v_sub_u32 v8, v6, v8")
    e("v_mul_u32_u24 v9, 7168, v7"); e("v_lshl_add_u32 v9, v8, 1, v9")
    e("v_mul_u32_u24 v138, 896, v8"); e("v_lshl_add_u32 v138, v7, 4, v138")
    e("v_cmp_gt_u32 vcc, 196, v0"); e(f"v_mov_b32 v10, {OOB}"); e("s_nop 1")
    e("v_cndmask_b32 v9, v10, v9, vcc"); e("v_cndmask_b32 v138, v10, v138, vcc")
    e("s_movk_i32 s29, 3584")
    for i in range(4):
        so = "0" if i < 2 else "s29"
        e(f"buffer_load_ushort v{130+i}, v9, s[48:51], {so} offen offset:{1792*(i%2)}")
        e(f"buffer_load_ushort v{134+i}, v9, s[48:51], {so} offen offset:{1792*(i%2)+896}")
    def gload(cn):
        sb = (cn % NSLOT) * SLOT
        for i, (sr, so) in enumerate((("s[12:15]", 56), ("s[44:47]", 84), ("s[16:19]", 70))):
            e(f"s_add_u32 m0, s{52+i}, {sb}"); e("s_nop 0")
            e(f"buffer_load_dwordx4 v{2+i}, {sr}, s{so+cn} offen lds")
    F = [32, 72]
    def fread_list(cn, f):
        sl = cn % NSLOT; g3 = sl // 3; b = (sl % 3) * SLOT; base = F[f]; r = []
        for rb in range(2):
            for h in range(2): r.append(f"ds_read_b64 {vr(base+4*rb+2*h,2)}, v{AB+4*g3+h} offset:{b+1024*rb}")
        for cb in range(6):
            for h in range(2): r.append(f"ds_read_b64_tr_b16 {vr(base+16+4*cb+2*h,2)}, v{BB+2*g3} offset:{b+16*h*WSr+32*cb}")
        for h in range(2): r.append(f"ds_read_b64 {vr(base+8+2*h,2)}, v{AB+4*g3+2+h} offset:{b}")
        for h in range(2): r.append(f"ds_read_b64_tr_b16 {vr(base+12+2*h,2)}, v{BB+2*g3+1} offset:{b+16*h*WSr}")
        return r
    def mfma_list(f):
        base = F[f]; r = []
        for cb in range(6):
            for rb in range(2):
                r.append((4 + 2 * (cb + 1), f"v_mfma_f32_16x16x32_bf16 {ar(4*(rb*6+cb),4)}, {vr(base+16+4*cb,4)}, {vr(base+4*rb,4)}, {ar(4*(rb*6+cb),4)}"))
        r.append((20, f"v_mfma_f32_16x16x32_bf16 a[48:51], {vr(base+12,4)}, {vr(base+8,4)}, a[48:51]"))
        return r
    for cn in range(6): gload(cn)
    e("s_waitcnt vmcnt(15)")
    e(f"s_mov_b32 s29, {WS_WOT}"); e("s_lshl_b32 s30, s24, 19"); e("s_add_u32 s29, s29, s30")
    for i in range(4): e(f"v_lshl_or_b32 v{130+i}, v{134+i}, 16, v{130+i}")
    e("buffer_store_dwordx4 v[130:133], v138, s[20:23], s29 offen")
    e("s_barrier")
    for x in fread_list(0, 0): e(x)
    for cn in range(NCH):
        if cn + 1 < NCH:
            last = min(NCH - 1, cn + 5)
            extra = 0
            e(f"s_waitcnt vmcnt({3*(last-(cn+1)) + extra})"); e("s_barrier")
            if cn + 6 < NCH and "nogl" not in VAR: gload(cn + 6)
            nxt = fread_list(cn + 1, (cn + 1) & 1)
        else:
            nxt = []
        if "nocomp" in VAR: continue
        if "nomfma" in VAR:
            while nxt: e(nxt.pop(0))
            e("s_waitcnt lgkmcnt(0)"); continue
        if "nofr" in VAR: nxt = []
        if "delay" in VAR:
            for _ in range(30): e("s_nop 15")
            continue
        if "valu" in VAR:
            for _ in range(60): e("v_mul_f32 v32, v33, v34"); e("v_mul_f32 v35, v33, v34")
            continue
        issued = 0
        for need, ins in mfma_list(cn & 1):
            e(f"s_waitcnt lgkmcnt({min(15, 20-need+issued)})"); e(ins)
            for _ in range(2):
                if nxt: e(nxt.pop(0)); issued += 1
        while nxt: e(nxt.pop(0))
    e("s_barrier")
    if "noepi" in VAR: e("s_branch K1_END")
    e("s_nop 7"); e("s_nop 7")
    e("s_lshl_b32 s29, s38, 5"); e("s_add_u32 s29, s29, 16")
    e("v_add_u32 v22, s29, v16"); e(f"v_mul_u32_u24 v22, {TS}, v22"); e("v_lshl_add_u32 v22, v17, 3, v22")
    e("s_mul_i32 s29, s39, 192"); e("v_add_u32 v22, s29, v22")
    e(f"v_mul_u32_u24 v23, {TS}, v16"); e("v_lshl_add_u32 v23, v17, 3, v23")
    e("s_lshl_b32 s29, s27, 5"); e("v_add_u32 v23, s29, v23")
    e("s_mov_b32 s33, 0x3fb8aa3b"); e("s_mov_b32 s34, 0x358637bd")
    cnt = [0]
    def store_block(a, vaddr, off, phi):
        B = 24 + 16 * (cnt[0] % 4); cnt[0] += 1
        for i in range(4): e(f"v_accvgpr_read_b32 v{B+i}, a{a+i}")
        e("s_nop 0")
        cvt_pk(B+4, B, B+1); cvt_pk(B+5, B+2, B+3)
        if phi:
            unpk_lo(B, B+4); unpk_hi(B+1, B+4); unpk_lo(B+2, B+5); unpk_hi(B+3, B+5)
            for i in range(4): e(f"v_mul_f32 v{B+6+i}, s33, v{B+i}")
            for i in range(4): e(f"v_exp_f32 v{B+6+i}, v{B+6+i}")
            for i in range(4): e(f"v_cmp_lt_f32 s[{40+2*i}:{41+2*i}], 0, v{B+i}")
            for i in range(4): e(f"v_add_f32 v{B+10+i}, 1.0, v{B+i}")
            for i in range(4): e(f"v_cndmask_b32 v{B+i}, v{B+6+i}, v{B+10+i}, s[{40+2*i}:{41+2*i}]")
            cvt_pk(B+4, B, B+1); cvt_pk(B+5, B+2, B+3)
            unpk_lo(B, B+4); unpk_hi(B+1, B+4); unpk_lo(B+2, B+5); unpk_hi(B+3, B+5)
            for i in range(4): e(f"v_add_f32 v{B+i}, s34, v{B+i}")
            cvt_pk(B+4, B, B+1); cvt_pk(B+5, B+2, B+3)
        e(f"ds_write_b64 v{vaddr}, {vr(B+4,2)} offset:{off}")
    e("s_cmp_eq_u32 s24, 0"); e("s_cbranch_scc0 K1_EPB")
    e("s_cmp_eq_u32 s39, 0"); e("s_cbranch_scc0 K1_EPA1")
    for rb in range(2):
        for cb in range(6): store_block(4 * (rb * 6 + cb), 22, 16 * TS * rb + 32 * cb, True)
    e("s_branch K1_EPD")
    lab("K1_EPA1")
    for rb in range(2):
        for cb in range(5): store_block(4 * (rb * 6 + cb), 22, 16 * TS * rb + 32 * cb, cb == 0)
    e("s_branch K1_EPD")
    lab("K1_EPB")
    for rb in range(2):
        for cb in range(5): store_block(4 * (rb * 6 + cb), 22, 16 * TS * rb + 32 * cb, False)
    store_block(48, 23, 96, False)
    e("s_cmp_eq_u32 s39, 0"); e("s_cbranch_scc0 K1_EPD")
    for rb in range(2): store_block(4 * (rb * 6 + 5), 22, 16 * TS * rb + 32 * 5, False)
    lab("K1_EPD")
    e("s_waitcnt lgkmcnt(0)"); e("s_barrier")
    if "noatt" in VAR: e("s_branch K1_END")
    e("s_cmp_eq_u32 s24, 0"); e("s_cbranch_scc0 K1_ATTB")
    e("v_lshrrev_b32 v24, 2, v0"); e("v_bfe_u32 v25, v0, 1, 1"); e("v_and_b32 v23, 1, v0")
    e("v_add_u32 v26, 16, v24"); e(f"v_mul_u32_u24 v26, {TS}, v26"); e("v_mul_u32_u24 v27, 56, v25")
    e("v_add_u32 v26, v26, v27"); e("v_lshl_add_u32 v26, v23, 5, v26")
    for i in range(4): e(f"ds_read_b64 {vr(80+2*i,2)}, v26 offset:{8*i}")
    e("v_add_u32 v27, s28, v24"); e("v_lshlrev_b32 v27, 10, v27"); e("v_and_b32 v28, 3, v0"); e("v_lshl_add_u32 v27, v28, 5, v27")
    e("s_lshl_b32 s29, s26, 7"); e("v_add_u32 v27, s29, v27")
    e("v_cmp_eq_u32 vcc, 1, v23"); e("v_mov_b32 v28, 0")
    e("s_waitcnt lgkmcnt(0)")
    e("v_cndmask_b32 v86, v86, v28, vcc"); e("v_cndmask_b32 v87, v87, v28, vcc")
    e("buffer_store_dwordx4 v[80:83], v27, s[20:23], 0 offen"); e("buffer_store_dwordx4 v[84:87], v27, s[20:23], 0 offen offset:16")
    e("s_cmp_ge_u32 s27, 4"); e("s_cbranch_scc1 K1_END")
    e("v_lshrrev_b32 v24, 2, v16"); e("v_lshl_add_u32 v24, v17, 2, v24"); e("v_add_u32 v24, 16, v24")
    e(f"v_mul_u32_u24 v24, {TS}, v24"); e("v_and_b32 v25, 3, v16"); e("v_lshl_add_u32 v24, v25, 3, v24")
    e("s_lshr_b32 s29, s27, 1"); e("s_and_b32 s30, s27, 1"); e("s_mul_i32 s31, s29, 56")
    e("s_lshl_b32 s32, s30, 5"); e("s_add_u32 s32, s32, s31"); e("s_add_u32 s32, s32, 112"); e("s_add_u32 s31, s31, 224")
    e("v_add_u32 v25, s32, v24"); e("v_add_u32 v26, s31, v24")
    for i in range(12): e(f"v_accvgpr_write_b32 a{i}, 0")
    for i in range(4): e(f"v_mov_b32 v{76+i}, 0x3f803f80")
    for ks in range(4):
        o = 28 + 12 * ks
        for h in range(2): e(f"ds_read_b64_tr_b16 {vr(o+2*h,2)}, v25 offset:{(32*ks+16*h)*TS}")
        for nb in range(2):
            for h in range(2): e(f"ds_read_b64_tr_b16 {vr(o+4+4*nb+2*h,2)}, v26 offset:{(32*ks+16*h)*TS+32*nb}")
    for ks in range(4):
        o = 28 + 12 * ks
        e(f"s_waitcnt lgkmcnt({min(15,6*(3-ks))})")
        e(f"v_mfma_f32_16x16x32_bf16 a[0:3], {vr(o,4)}, {vr(o+4,4)}, a[0:3]")
        e(f"v_mfma_f32_16x16x32_bf16 a[4:7], {vr(o,4)}, {vr(o+8,4)}, a[4:7]")
        e(f"v_mfma_f32_16x16x32_bf16 a[8:11], {vr(o,4)}, v[76:79], a[8:11]")
    e("s_lshl_b32 s31, s26, 1"); e("s_add_u32 s31, s31, s29"); e("s_lshl_b32 s32, s25, 4"); e("s_add_u32 s31, s31, s32")
    e("s_lshl_b32 s32, s31, 12"); e("s_lshl_b32 s33, s31, 7"); e("s_lshl_b32 s34, s30, 4")
    e("v_lshl_add_u32 v24, v17, 2, s34"); e("v_lshlrev_b32 v25, 7, v24"); e("v_lshl_add_u32 v25, v16, 2, v25")
    e("v_add_u32 v25, s32, v25"); e("v_lshlrev_b32 v26, 2, v24"); e("v_add_u32 v26, s33, v26")
    e(f"s_mov_b32 s35, {WS_KVP}"); e(f"s_mov_b32 s36, {WS_ZP}")
    e("s_nop 7")
    for i in range(12): e(f"v_accvgpr_read_b32 v{28+i}, a{i}")
    e("s_nop 0")
    for nb in range(2):
        for i in range(4): e(f"buffer_store_dword v{28+4*nb+i}, v25, s[20:23], s35 offen offset:{128*i + 64*nb}")
    for i in range(4): e(f"buffer_store_dword v{36+i}, v26, s[20:23], s36 offen offset:{4*i}")
    e("s_branch K1_END")
    lab("K1_ATTB")
    e("v_lshrrev_b32 v24, 2, v0"); e("v_bfe_u32 v25, v0, 1, 1"); e("v_and_b32 v23, 1, v0")
    e("v_add_u32 v26, 2, v24"); e(f"v_mul_u32_u24 v26, {TS}, v26"); e("v_mul_u32_u24 v27, 56, v25")
    e("v_add_u32 v26, v26, v27"); e("v_lshl_add_u32 v26, v23, 5, v26")
    Q, KV, LG, O = 28, 36, 100, 108
    for i in range(4): e(f"ds_read_b64 {vr(Q+2*i,2)}, v26 offset:{14*TS+8*i}")
    for w in range(8):
        for i in range(4): e(f"ds_read_b64 {vr(KV+8*w+2*i,2)}, v26 offset:{(14-2*w)*TS+112+8*i}")
    e("v_add_u32 v27, s28, v24")
    e("s_mov_b32 s33, 0x3e4184d8"); e("s_mov_b32 s34, 0xce6e6b28"); e("s_mov_b32 s35, 0x3fb8aa3b")
    e("v_cmp_eq_u32 vcc, 1, v23"); e("v_mov_b32 v124, 0")
    e("s_waitcnt lgkmcnt(15)")
    e(f"v_cndmask_b32 v{Q+6}, v{Q+6}, v124, vcc"); e(f"v_cndmask_b32 v{Q+7}, v{Q+7}, v124, vcc")
    for w in range(8):
        e(f"s_waitcnt lgkmcnt({min(15,4*(7-w))})")
        e(f"v_dot2_f32_bf16 v{LG+w}, v{Q}, v{KV+8*w}, 0")
        for i in range(1, 8): e(f"v_dot2_f32_bf16 v{LG+w}, v{Q+i}, v{KV+8*w+i}, v{LG+w}")
    for w in range(8):
        for i in range(4): e(f"ds_read_b64 {vr(KV+8*w+2*i,2)}, v26 offset:{(14-2*w)*TS+224+8*i}")
    e("s_nop 1")
    for w in range(8):
        e(f"v_add_f32_dpp v{O+w}, v{LG+w}, v{LG+w} quad_perm:[1,0,3,2] row_mask:0xf bank_mask:0xf")
    for w in range(0, 8, 2):
        cvt_pk(124, O + w, O + w + 1); unpk_lo(LG + w, 124); unpk_hi(LG + w + 1, 124)
        e(f"v_mul_f32 v{LG+w}, s33, v{LG+w}"); e(f"v_mul_f32 v{LG+w+1}, s33, v{LG+w+1}")
        cvt_pk(124, LG + w, LG + w + 1); unpk_lo(LG + w, 124); unpk_hi(LG + w + 1, 124)
    e("v_mov_b32 v125, s34")
    for w in range(1, 8): e(f"v_cmp_gt_u32 s[{40+2*w}:{41+2*w}], {2*w}, v27")
    e("s_nop 1")
    for w in range(1, 8): e(f"v_cndmask_b32 v{LG+w}, v{LG+w}, v125, s[{40+2*w}:{41+2*w}]")
    e(f"v_max3_f32 v124, v{LG}, v{LG+1}, v{LG+2}"); e(f"v_max3_f32 v125, v{LG+3}, v{LG+4}, v{LG+5}")
    e(f"v_max3_f32 v124, v124, v{LG+6}, v{LG+7}"); e("v_max_f32 v124, v124, v125")
    for w in range(8): e(f"v_sub_f32 v{LG+w}, v{LG+w}, v124")
    for w in range(8): e(f"v_mul_f32 v{LG+w}, s35, v{LG+w}")
    for w in range(8): e(f"v_exp_f32 v{LG+w}, v{LG+w}")
    e("s_nop 0")
    e(f"v_add_f32 v124, v{LG}, v{LG+1}"); e(f"v_add_f32 v125, v{LG+2}, v{LG+3}")
    e(f"v_add_f32 v126, v{LG+4}, v{LG+5}"); e(f"v_add_f32 v127, v{LG+6}, v{LG+7}")
    e("v_add_f32 v124, v124, v125"); e("v_add_f32 v126, v126, v127"); e("v_add_f32 v124, v124, v126")
    e("v_rcp_f32 v124, v124"); e("s_nop 0")
    for w in range(8): e(f"v_mul_f32 v{LG+w}, v124, v{LG+w}")
    for w in range(0, 8, 2):
        cvt_pk(124, LG + w, LG + w + 1); unpk_lo(LG + w, 124); unpk_hi(LG + w + 1, 124)
    for w in range(8):
        e(f"s_waitcnt lgkmcnt({min(15,4*(7-w))})")
        for i in range(8):
            unpk_lo(124, KV + 8 * w + i); unpk_hi(125, KV + 8 * w + i)
            if w == 0:
                e(f"v_mul_f32 v{O+2*i}, v124, v{LG}"); e(f"v_mul_f32 v{O+2*i+1}, v125, v{LG}")
            else:
                e(f"v_fma_f32 v{O+2*i}, v124, v{LG+w}, v{O+2*i}"); e(f"v_fma_f32 v{O+2*i+1}, v125, v{LG+w}, v{O+2*i+1}")
    for i in range(8): cvt_pk(Q + i, O + 2 * i, O + 2 * i + 1)
    e("s_movk_i32 s30, 896"); e("v_mul_lo_u32 v27, v27, s30"); e("v_mul_u32_u24 v124, 56, v25")
    e("v_add_u32 v27, v27, v124"); e("v_lshl_add_u32 v27, v23, 5, v27")
    e("s_mul_i32 s29, s26, 112"); e("v_add_u32 v27, s29, v27")
    e(f"v_mov_b32 v124, {OOB}"); e("v_cndmask_b32 v124, v27, v124, vcc")
    e(f"s_mov_b32 s36, {WS_OB}")
    for i in range(4):
        e(f"buffer_store_dwordx2 {vr(Q+2*i,2)}, v{27 if i < 3 else 124}, s[20:23], s36 offen offset:{8*i}")
    lab("K1_END")
    e("s_endpgm")

def outproj(P_, isA):
    rowbytes = 1024 if isA else 896
    e("s_mul_hi_u32 s24, s2, 0x24924925"); e("s_mul_i32 s25, s24, 7"); e("s_sub_u32 s25, s2, s25")
    e("s_lshr_b32 s30, s27, 1"); e("s_and_b32 s31, s27, 1")
    e("s_lshl_b32 s28, s24, 6"); e("s_lshl_b32 s26, s25, 6")
    e(f"s_movk_i32 s29, {rowbytes}")
    e("s_lshl_b32 s32, s27, 3"); e("s_add_u32 s33, s32, s28"); e("s_add_u32 s32, s32, s26")
    e("s_and_b32 s35, s27, 1"); e("s_lshl_b32 s35, s35, 3")
    for ii in range(2):
        e(f"v_add_u32 v22, {4*ii}, v17"); e("v_add_u32 v23, s35, v22"); e("v_xor_b32 v23, v23, v16")
        e("v_add_u32 v24, s33, v22"); e(f"v_mul_lo_u32 v{2+ii}, v24, s29"); e(f"v_lshl_add_u32 v{2+ii}, v23, 4, v{2+ii}")
        e("v_add_u32 v24, s32, v22"); e(f"v_mul_lo_u32 v{6+ii}, v24, s29"); e(f"v_lshl_add_u32 v{6+ii}, v23, 4, v{6+ii}")
        if not isA:
            e("v_cmp_lt_u32 vcc, 7, v23"); e(f"v_mov_b32 v24, {OOB}"); e("s_nop 0")
            e(f"v_cndmask_b32 v{10+ii}, v{2+ii}, v24, vcc"); e(f"v_cndmask_b32 v{18+ii}, v{6+ii}, v24, vcc")
    e("s_lshl_b32 s34, s27, 11")
    e("s_waitcnt lgkmcnt(0)")
    srd(16, 6, 2048 * 1792); srd(20, 8, WS_END)
    sa, sb = (WS_PQA, WS_MT) if isA else (WS_OB, WS_WOT + 0x80000)
    Z, ZF, DEN, RD, PP, ACC = 80, 84, 100, 104, 108, 140
    if isA:
        e("v_lshlrev_b32 v22, 6, v16"); e("v_lshl_add_u32 v22, v17, 4, v22"); e(f"s_mov_b32 s38, {WS_ZC}")
        e(f"buffer_load_dwordx4 {vr(Z,4)}, v22, s[20:23], s38 offen")
    for q in range(4):
        e(f"s_mov_b32 s36, {sa+256*q}"); e(f"s_mov_b32 s37, {sb+256*q}")
        for ii in range(2):
            va = (2 if (isA or q < 3) else 10) + ii; vb = (6 if (isA or q < 3) else 18) + ii
            e(f"s_add_u32 m0, s34, {q*16384+ii*1024}"); e("s_nop 0"); e(f"buffer_load_dwordx4 v{va}, s[20:23], s36 offen lds")
            e(f"s_add_u32 m0, s34, {65536+q*16384+ii*1024}"); e("s_nop 0"); e(f"buffer_load_dwordx4 v{vb}, s[20:23], s37 offen lds")
    e("v_lshrrev_b32 v22, 2, v16"); e("v_and_b32 v23, 3, v16"); e("v_xor_b32 v23, v23, v17")
    e("v_lshlrev_b32 v1, 8, v16"); e("v_lshl_add_u32 v1, v23, 4, v1")
    e("s_lshl_b32 s35, s30, 12"); e("s_lshl_b32 s39, s31, 13"); e("s_add_u32 s39, s39, 65536")
    for jl in range(4):
        e(f"v_xor_b32 v23, {jl}, v22"); e("v_lshl_add_u32 v23, v23, 6, v1")
        e(f"v_add_u32 v{24+jl}, s35, v23"); e(f"v_add_u32 v{28+jl}, s39, v23")
    if isA:
        e("v_mov_b32 v15, 0"); e("s_mov_b32 s34, 0x358637bd")
    FA, FB = 32, 48
    for q in range(4):
        nst = 4 if (isA or q < 3) else 2
        e(f"s_waitcnt vmcnt({4*(3-q)})"); e("s_barrier")
        if "opdma" in VAR: continue
        for jl in range(nst): e(f"ds_read_b128 {vr(FA+4*jl,4)}, v{24+jl} offset:{q*16384}")
        for jl in range(nst):
            for cb in range(2): e(f"ds_read_b128 {vr(FB+16*cb+4*jl,4)}, v{28+jl} offset:{q*16384+cb*4096}")
        if isA:
            e(f"v_lshlrev_b32 v14, 2, v16"); e(f"v_add_u32 v14, {64*q}, v14")
            for jl in range(4):
                j = 4 * q + jl
                e(f"v_cmp_eq_u32 vcc, {j}, v16"); e("s_nop 0")
                for i in range(4): e(f"v_cndmask_b32 v{ZF+4*jl+i}, v15, v{Z+i}, vcc")
            for jl in range(4):
                e(f"s_waitcnt lgkmcnt({8+(3-jl)})")
                e(f"v_mfma_f32_16x16x32_bf16 {vr(DEN,4)}, {vr(ZF+4*jl,4)}, {vr(FA+4*jl,4)}, {vr(DEN,4) if (q or jl) else 0}")
            for jl in range(4):
                e(f"s_waitcnt lgkmcnt({2*(3-jl)})")
                for cb in range(2):
                    e(f"v_mfma_f32_16x16x32_bf16 {vr(PP+8*jl+4*cb,4)}, {vr(FB+16*cb+4*jl,4)}, {vr(FA+4*jl,4)}, 0")
            T = 10; d = DEN; t = 2
            cvt_pk(T, d, d + 1); cvt_pk(T + 1, d + 2, d + 3)
            unpk_lo(t, T); unpk_hi(t + 1, T); unpk_lo(t + 2, T + 1); unpk_hi(t + 3, T + 1)
            for i in range(4): e(f"v_add_f32 v{t+i}, s34, v{t+i}")
            cvt_pk(T, t, t + 1); cvt_pk(T + 1, t + 2, t + 3)
            unpk_lo(t, T); unpk_hi(t + 1, T); unpk_lo(t + 2, T + 1); unpk_hi(t + 3, T + 1)
            for i in range(4): e(f"v_rcp_f32 v{t+i}, v{t+i}")
            e("s_nop 0")
            for i in range(4): e(f"ds_bpermute_b32 v{RD+i}, v14, v{2+i}")
            e("s_nop 4")
            e("s_waitcnt lgkmcnt(0)")
            for jl in range(4):
                for k in range(8):
                    a = ACC + k
                    if q == 0 and jl == 0: e(f"v_mul_f32 v{a}, v{PP+8*jl+k}, v{RD+jl}")
                    else: e(f"v_fmac_f32 v{a}, v{PP+8*jl+k}, v{RD+jl}")
        else:
            for jl in range(nst):
                e(f"s_waitcnt lgkmcnt({2*(nst-1-jl)})")
                for cb in range(2):
                    a = ACC + 4 * cb
                    e(f"v_mfma_f32_16x16x32_bf16 {vr(a,4)}, {vr(FB+16*cb+4*jl,4)}, {vr(FA+4*jl,4)}, {vr(a,4) if (q or jl) else 0}")
    if not isA: e("s_nop 7"); e("s_nop 7")
    e("s_lshl_b32 s29, s30, 4"); e("s_add_u32 s28, s28, s29"); e("s_lshl_b32 s29, s31, 5"); e("s_add_u32 s26, s26, s29")
    e("v_add_u32 v6, s28, v16"); e("s_movk_i32 s29, 1792"); e("v_mul_lo_u32 v6, v6, s29"); e("v_lshl_add_u32 v6, v17, 3, v6")
    e("s_lshl_b32 s29, s26, 1"); e(f"s_add_u32 s29, s29, {0 if isA else 896}"); e("v_add_u32 v6, s29, v6")
    for cb in range(2):
        a = ACC + 4 * cb; t = 32 + 2 * cb
        cvt_pk(t, a, a + 1); cvt_pk(t + 1, a + 2, a + 3)
        e(f"buffer_store_dwordx2 {vr(t,2)}, v6, s[16:19], 0 offen offset:{32*cb}")

def gen_k2():
    kernel_header(K2)
    e("s_cmp_ge_u32 s2, 256"); e("s_cbranch_scc1 K2_END")
    e("s_load_dwordx2 s[6:7], s[0:1], 48"); e("s_load_dwordx2 s[8:9], s[0:1], 64")
    e("v_lshrrev_b32 v1, 6, v0"); e("s_nop 0"); e("v_readfirstlane_b32 s27, v1")
    e("v_and_b32 v16, 15, v0"); e("v_bfe_u32 v17, v0, 4, 2")
    e("s_cmp_lt_u32 s2, 224"); e("s_cbranch_scc1 K2_GEMM")
    if "k2noa" in VAR: e("s_branch K2_END")
    e("s_cmp_lt_u32 s27, 4"); e("s_cbranch_scc1 K2_AW"); e("s_barrier"); e("s_branch K2_END"); lab("K2_AW")
    e("s_sub_u32 s3, s2, 224"); e("s_lshr_b32 s24, s3, 1"); e("s_and_b32 s25, s3, 1")
    e("v_lshlrev_b32 v2, 4, v0"); e("s_lshl_b32 s26, s24, 12"); e("v_add_u32 v2, s26, v2")
    e("v_lshlrev_b32 v3, 2, v0"); e("s_lshl_b32 s26, s24, 7"); e("v_add_u32 v3, s26, v3")
    e("v_cmp_gt_u32 vcc, 32, v0"); e(f"v_mov_b32 v4, {OOB}"); e("s_nop 1"); e("v_cndmask_b32 v3, v4, v3, vcc")
    e("s_mul_i32 s26, s25, 14"); e("s_add_u32 s26, s26, s27"); e("s_lshl_b32 s26, s26, 4")
    e("v_add_u32 v5, s26, v16"); e("s_movk_i32 s29, 896"); e("v_mul_lo_u32 v6, v5, s29"); e("v_lshl_add_u32 v6, v17, 4, v6")
    e("s_mul_i32 s29, s24, 56"); e("v_add_u32 v6, s29, v6")
    e("v_lshlrev_b32 v7, 10, v5"); e("v_lshl_add_u32 v7, v17, 3, v7"); e("s_lshl_b32 s29, s24, 6"); e("v_add_u32 v7, s29, v7")
    e("s_waitcnt lgkmcnt(0)")
    srd(16, 6, 2048 * 1792); srd(20, 8, WS_END)
    e(f"s_mov_b32 s35, {WS_KVP}"); e(f"s_mov_b32 s36, {WS_ZP}"); e(f"s_mov_b32 s37, {WS_WOT}")
    for rt in range(16):
        e(f"v_add_u32 v8, {65536*rt}, v2"); e(f"buffer_load_dwordx4 {vr(32+4*rt,4)}, v8, s[20:23], s35 offen")
    for i in range(4):
        e(f"v_add_u32 v8, {64*896*i}, v6")
        if i == 3:
            e("s_cmp_lt_u32 s27, 2"); e("s_cbranch_scc1 K2_I3"); e(f"v_mov_b32 v8, {OOB}"); lab("K2_I3")
        e(f"buffer_load_dwordx4 {vr(112+4*i,4)}, v8, s[20:23], s37 offen")
    for rt in range(16):
        e(f"v_add_u32 v8, {2048*rt}, v3"); e(f"buffer_load_dword v{96+rt}, v8, s[20:23], s36 offen")
    for rt in range(1, 16):
        e(f"s_waitcnt vmcnt({20+15-rt})")
        for i in range(4): e(f"v_add_f32 v{32+i}, v{32+i}, v{32+4*rt+i}")
    e("v_and_b32 v8, 7, v0"); e("v_cmp_eq_u32 s[40:41], 7, v8"); e("v_cmp_lt_u32 vcc, 223, v0"); e("s_or_b64 vcc, vcc, s[40:41]")
    e("v_mov_b32 v9, 0"); cvt_pk(36, 32, 33); cvt_pk(37, 34, 35)
    e("v_cndmask_b32 v36, v36, v9, vcc"); e("v_cndmask_b32 v37, v37, v9, vcc")
    e("v_lshrrev_b32 v10, 3, v0"); e("v_mul_u32_u24 v10, 80, v10"); e("v_lshl_add_u32 v10, v8, 3, v10")
    e("ds_write_b64 v10, v[36:37]")
    e("v_mul_u32_u24 v11, 80, v16"); e("v_lshl_add_u32 v11, v17, 4, v11")
    e("s_waitcnt lgkmcnt(0)"); e("s_barrier")
    e("ds_read_b128 v[40:43], v11"); e(f"ds_read_b128 v[44:47], v11 offset:{16*80}")
    e("v_cmp_eq_u32 vcc, 3, v17")
    e("s_waitcnt lgkmcnt(0) vmcnt(16)")
    for i in range(4):
        e(f"v_cndmask_b32 v{114+4*i}, v{114+4*i}, v9, vcc"); e(f"v_cndmask_b32 v{115+4*i}, v{115+4*i}, v9, vcc")
    e("s_nop 1")
    for i in range(4):
        for db in range(2):
            e(f"v_mfma_f32_16x16x32_bf16 {vr(48+8*i+4*db,4)}, {vr(40+4*db,4)}, {vr(112+4*i,4)}, 0")
    e("s_waitcnt vmcnt(0)")
    for rt in range(1, 16): e(f"v_add_f32 v96, v96, v{96+rt}")
    e("v_cmp_lt_u32 vcc, 27, v0"); e("s_nop 1"); e("v_cndmask_b32 v96, v96, v9, vcc"); e("s_nop 0"); cvt_pk(96, 96, 96)
    e("v_lshlrev_b32 v12, 1, v0"); e("s_lshl_b32 s29, s24, 6"); e("v_add_u32 v12, s29, v12")
    e("v_cmp_gt_u32 vcc, 32, v0"); e("s_cmp_eq_u32 s25, 0"); e("s_cselect_b64 s[40:41], -1, 0"); e("s_and_b64 vcc, vcc, s[40:41]")
    e(f"v_cndmask_b32 v12, v4, v12, vcc"); e(f"s_mov_b32 s38, {WS_ZC}")
    e("buffer_store_short v96, v12, s[20:23], s38 offen")
    e(f"s_mov_b32 s38, {WS_MT}")
    for i in range(4):
        e(f"v_add_u32 v8, {64*1024*i}, v7")
        if i == 3:
            e("s_cmp_lt_u32 s27, 2"); e("s_cbranch_scc1 K2_I3S"); e(f"v_mov_b32 v8, {OOB}"); lab("K2_I3S")
        for db in range(2):
            a = 48 + 8 * i + 4 * db
            cvt_pk(80 + 2 * db, a, a + 1); cvt_pk(81 + 2 * db, a + 2, a + 3)
            e(f"buffer_store_dwordx2 {vr(80+2*db,2)}, v8, s[20:23], s38 offen offset:{32*db}")
    e("s_branch K2_END")
    lab("K2_GEMM")
    if "k2nob" in VAR: e("s_branch K2_END")
    outproj("K2", False)
    lab("K2_END")
    e("s_endpgm")

def gen_k3():
    kernel_header(K3)
    e("s_cmp_ge_u32 s2, 224"); e("s_cbranch_scc1 K3_END")
    e("s_load_dwordx2 s[6:7], s[0:1], 48"); e("s_load_dwordx2 s[8:9], s[0:1], 64")
    e("v_lshrrev_b32 v1, 6, v0"); e("s_nop 0"); e("v_readfirstlane_b32 s27, v1")
    e("v_and_b32 v16, 15, v0"); e("v_bfe_u32 v17, v0, 4, 2")
    outproj("K3", True)
    lab("K3_END")
    e("s_endpgm")

def main():
    hdr = open(f"cdna_kernels/{NAME}.s.ref").read().split("\n")
    top = [l for l in hdr if l.startswith(";") and "@launch" not in l]
    top.append(f"; @launch kernel={K1} grid=(256,1,1) block=(512,1,1) lds={K1_LDS}")
    top.append(f"; @launch kernel={K2} grid=(256,1,1) block=(512,1,1) lds=131072")
    top.append(f"; @launch kernel={K3} grid=(224,1,1) block=(512,1,1) lds=131072")
    L.extend(top)
    L.append('.amdgcn_target "amdgcn-amd-amdhsa--gfx950"'); L.append(".text")
    gen_k1(); gen_k2(); gen_k3()
    L.append('.section .rodata,"a"')
    L.append(kd(K1, 140 + 52, 140)); L.append(kd(K2, 148, 148)); L.append(kd(K3, 148, 148))
    open(OUT, "w").write("\n".join(L) + "\n")
main()
```

```python
XS = 144 * 128
WSr = 352
WH = 32 * WSr
STG = XS + 2 * WH
K1_LDS = 4 * STG
TS = 352
NST = 7

def gen_k1(G):
    e, lab, vr, srd, cvt_pk, unpk_lo, unpk_hi = G.e, G.lab, G.vr, G.srd, G.cvt_pk, G.unpk_lo, G.unpk_hi
    OOB, VAR = G.OOB, G.VAR
    ts = G.ts
    G.kernel_header(G.K1)
    e("s_cmp_ge_u32 s2, 256"); e("s_cbranch_scc1 K1_END")
    ts(0)
    e("s_and_b32 s24, s2, 1"); e("s_mul_i32 s29, s24, 24"); e("s_add_u32 s30, s0, s29"); e("s_addc_u32 s31, s1, 0")
    e("s_load_dwordx4 s[4:7], s[30:31], 0"); e("s_load_dwordx2 s[10:11], s[30:31], 16"); e("s_load_dwordx2 s[8:9], s[0:1], 64")
    e("v_lshrrev_b32 v1, 6, v0"); e("s_bfe_u32 s25, s2, 0x20001"); e("v_readfirstlane_b32 s27, v1")
    e("s_lshl_b32 s25, s25, 2"); e("s_bfe_u32 s26, s2, 0x20003"); e("s_add_u32 s25, s25, s26"); e("s_lshr_b32 s26, s2, 5")
    e("s_lshl_b32 s28, s25, 7")
    e("v_and_b32 v16, 15, v0"); e("v_bfe_u32 v17, v0, 4, 2"); e("v_and_b32 v5, 63, v0")
    e("s_cmp_lt_u32 s27, 4"); e("s_cbranch_scc1 K1_COMP")
    e("s_sub_u32 s38, s27, 4")
    e("v_lshrrev_b32 v6, 3, v5"); e("v_and_b32 v7, 7, v5"); e("v_xor_b32 v7, v7, v17")
    e("s_lshl_b32 s29, s38, 5"); e("s_add_u32 s29, s29, s28"); e("s_sub_u32 s29, s29, 16")
    e("v_add_u32 v6, s29, v6"); e("s_movk_i32 s31, 896"); e("v_mul_lo_u32 v6, v6, s31")
    e("v_lshl_add_u32 v20, v7, 4, v6"); e("v_xor_b32 v7, 4, v7"); e("v_lshl_add_u32 v21, v7, 4, v6"); e("v_add_u32 v21, 7168, v21")
    e("v_add_u32 v22, 14336, v20"); e("v_add_u32 v23, 14336, v21")
    def wvoff(dst, add):
        e(f"s_add_u32 s30, s38, {add}"); e("s_lshl_b32 s30, s30, 6"); e("v_add_u32 v6, s30, v5")
        e("s_mov_b32 s31, 0xba2e8bb"); e("v_mul_hi_u32 v7, v6, s31")
        e("v_mul_u32_u24 v9, 22, v7"); e("v_sub_u32 v9, v6, v9")
        e("s_mov_b32 s31, 0x24924925"); e("v_mul_hi_u32 v10, v9, s31")
        e("v_mul_u32_u24 v11, 7, v10"); e("v_sub_u32 v11, v9, v11")
        e("v_bfe_u32 v12, v7, 2, 2"); e("v_lshrrev_b32 v13, 4, v7"); e("v_and_b32 v7, 3, v7")
        e("v_lshl_add_u32 v7, v12, 3, v7"); e("v_lshl_add_u32 v7, v13, 2, v7")
        e(f"v_mul_u32_u24 v{dst}, 2688, v7"); e("v_mul_u32_u24 v10, 896, v10"); e(f"v_add_u32 v{dst}, v{dst}, v10")
        e(f"v_lshl_add_u32 v{dst}, v11, 4, v{dst}"); e(f"v_add_u32 v{dst}, s33, v{dst}")
        e("v_cmp_eq_u32 vcc, 21, v9"); e(f"v_mov_b32 v10, {OOB}"); e(f"v_add_u32 v{dst+1}, {32*2688}, v{dst}")
        e(f"v_cndmask_b32 v{dst}, v{dst}, v10, vcc"); e(f"v_cndmask_b32 v{dst+1}, v{dst+1}, v10, vcc")
    e("s_mul_i32 s33, s26, 112")
    wvoff(26, 0); wvoff(28, 4)
    e("s_cmp_eq_u32 s38, 3"); e("s_cbranch_scc1 K1_H3")
    wvoff(24, 8)
    e("s_branch K1_H3D")
    lab("K1_H3")
    e("v_add_u32 v24, 28672, v20"); e("v_add_u32 v25, 28672, v21")
    lab("K1_H3D")
    e("s_lshl_b32 s52, s38, 12")
    for i in range(1, 4): e(f"s_add_u32 s{52+i}, s52, {1024*i}")
    e("s_lshl_b32 s58, s38, 10"); e(f"s_add_u32 s58, s58, {XS}"); e(f"s_add_u32 s59, s58, {WH}")
    e("s_add_u32 s60, s58, 4096"); e("s_add_u32 s61, s59, 4096")
    e("s_add_u32 s56, s58, 8192"); e("s_add_u32 s57, s59, 8192")
    e("s_cmp_eq_u32 s38, 3"); e("s_cselect_b32 s56, 16384, s56"); e("s_cselect_b32 s57, 17408, s57")
    e("s_add_u32 s34, s25, s26"); e("s_lshl_b32 s30, s24, 2"); e("s_add_u32 s34, s34, s30")
    e("s_mul_i32 s30, s34, 37"); e("s_lshr_b32 s30, s30, 8"); e("s_mul_i32 s30, s30, 7"); e("s_sub_u32 s34, s34, s30")
    if "nostag" in VAR: e("s_mov_b32 s34, 0")
    e("s_waitcnt lgkmcnt(0)")
    srd(12, 4, 1835008); srd(16, 6, 448 * 2688)
    e("s_cmp_eq_u32 s38, 3")
    for i in range(4): e(f"s_cselect_b32 s{44+i}, s{12+i}, s{16+i}")
    def gload(st):
        sb = (st % 4) * STG
        e("s_lshl_b32 s35, s34, 7"); e(f"s_mul_i32 s36, s34, {64*2688}")
        e("s_cmp_eq_u32 s38, 3"); e("s_cselect_b32 s37, s35, s36")
        for i in (0, 1, 2, 3, 6, 7, 8, 9, 4, 5):
            sr, so = ("s[12:15]", 35) if i < 4 else (("s[44:47]", 37) if i < 6 else ("s[16:19]", 36))
            e(f"s_add_u32 m0, s{52+i}, {sb}"); e("s_nop 0")
            e(f"buffer_load_dwordx4 v{20+i}, {sr}, s{so} offen lds")
        e("s_add_u32 s34, s34, 1"); e("s_cmp_eq_u32 s34, 7"); e("s_cselect_b32 s34, 0, s34")
    ts(1)
    for st in range(4): gload(st)
    ts(2)
    srd(20, 8, G.WS_END)
    e("s_waitcnt vmcnt(30)"); e("s_barrier")
    for s in range(NST):
        e(f"s_waitcnt vmcnt({(20, 20, 20, 20, 10, 0, 0)[s]})"); e("s_barrier")
        if s + 4 < NST: gload(s + 4)
    e("s_branch K1_EPI")
    lab("K1_COMP")
    e("s_lshl_b32 s29, s25, 3"); e("s_add_u32 s29, s29, s26"); e("s_mul_i32 s29, s29, 196")
    e("v_add_u32 v6, s29, v0"); e("s_mov_b32 s31, 0x924925"); e("v_mul_hi_u32 v7, v6, s31")
    e("v_mul_u32_u24 v8, 448, v7"); e("v_sub_u32 v8, v6, v8")
    e("v_mul_u32_u24 v9, 7168, v7"); e("v_lshl_add_u32 v9, v8, 1, v9")
    e("v_mul_u32_u24 v18, 896, v8"); e("v_lshl_add_u32 v18, v7, 4, v18")
    e("v_cmp_gt_u32 vcc, 196, v0"); e(f"v_mov_b32 v10, {OOB}"); e("s_nop 1")
    e("v_cndmask_b32 v9, v10, v9, vcc"); e("v_cndmask_b32 v18, v10, v18, vcc")
    e("v_lshrrev_b32 v6, 1, v16"); e("v_xor_b32 v6, v6, v17"); e("v_lshlrev_b32 v24, 7, v16"); e("v_lshl_add_u32 v24, v6, 4, v24")
    e("v_xor_b32 v25, 64, v24"); e(f"v_add_u32 v26, {2*STG}, v24"); e(f"v_add_u32 v27, {2*STG}, v25")
    e("v_lshrrev_b32 v6, 2, v16"); e("v_lshl_add_u32 v6, v17, 2, v6"); e(f"v_mul_u32_u24 v28, {WSr}, v6"); e("v_and_b32 v7, 3, v16")
    e("v_lshl_add_u32 v28, v7, 3, v28"); e(f"v_add_u32 v28, {XS}, v28"); e(f"v_add_u32 v29, {2*STG}, v28")
    e(f"v_mul_u32_u24 v30, {TS}, v16"); e("v_lshl_add_u32 v30, v17, 3, v30")
    e("s_waitcnt lgkmcnt(0)")
    srd(20, 8, G.WS_END); srd(48, 10, 448 * 896)
    e("s_movk_i32 s29, 3584")
    for i in range(4):
        so = "0" if i < 2 else "s29"
        e(f"buffer_load_ushort v{32+i}, v9, s[48:51], {so} offen offset:{1792*(i%2)}")
        e(f"buffer_load_ushort v{36+i}, v9, s[48:51], {so} offen offset:{1792*(i%2)+896}")
    e(f"s_mov_b32 s29, {G.WS_WOT}"); e("s_lshl_b32 s30, s24, 19"); e("s_add_u32 s29, s29, s30")
    e("s_waitcnt vmcnt(0)")
    for i in range(4): e(f"v_lshl_or_b32 v{32+i}, v{36+i}, 16, v{32+i}")
    e("buffer_store_dwordx4 v[32:35], v18, s[20:23], s29 offen")
    e("s_cmp_eq_u32 s27, 1"); e("s_cbranch_scc1 K1_R1"); e("s_cmp_eq_u32 s27, 2"); e("s_cbranch_scc1 K1_R2")
    e("s_cmp_eq_u32 s27, 3"); e("s_cbranch_scc1 K1_R3")
    F = [32, 84]; ACC = 136
    for role in range(4):
        if role: lab(f"K1_R{role}")
        wm2, wn = role >> 1, role & 1
        if role in (0, 2): wm2, wn = role >> 1, 0
        wm2, wn = role >> 1, role & 1
        if wn == 0:
            cols = [32 * c for c in range(6)]; nmain = 6; halo = []
        elif wm2 == 0:
            cols = [192 + 32 * c for c in range(5)]; nmain = 5; halo = [0, 1, 2, 3]
        else:
            cols = [192 + 32 * c for c in range(5)] + [96, 128, 160]; nmain = 5; halo = [4, 5, 6, 7]
        def freads(cn, f):
            s = cn >> 1; sub = cn & 1; slot = s % 4; st_ = slot >> 1; so = (slot & 1) * STG; b = F[f]; r = []
            for rb in range(4): r.append(f"ds_read_b128 {vr(b+4*rb,4)}, v{24+2*st_+sub} offset:{so+(16+64*wm2+16*rb)*128}")
            for c, cb in enumerate(cols):
                for h in range(2): r.append(f"ds_read_b64_tr_b16 {vr(b+20+4*c+2*h,2)}, v{28+st_} offset:{so+sub*WH+h*16*WSr+cb}")
            if halo: r.append(f"ds_read_b128 {vr(b+16,4)}, v{24+2*st_+sub} offset:{so}")
            return r
        def mfmas(f, first):
            b = F[f]; r = []
            for c in range(nmain):
                for rb in range(4):
                    a = ACC + 4 * (c * 4 + rb)
                    r.append(f"v_mfma_f32_16x16x32_bf16 {vr(a,4)}, {vr(b+20+4*c,4)}, {vr(b+4*rb,4)}, {0 if first else vr(a,4)}")
            for i, c in enumerate(halo):
                a = ACC + 4 * (20 + i)
                r.append(f"v_mfma_f32_16x16x32_bf16 {vr(a,4)}, {vr(b+20+4*c,4)}, {vr(b+16,4)}, {0 if first else vr(a,4)}")
            return r
        e("s_barrier")
        if role == 0: ts(3)
        for x in freads(0, 0): e(x)
        e("s_waitcnt lgkmcnt(0)")
        for cn in range(2 * NST):
            nxt = freads(cn + 1, (cn + 1) & 1) if cn + 1 < 2 * NST else []
            for mi, ins in enumerate(mfmas(cn & 1, cn == 0)):
                e(ins)
                for _ in range(2 if mi < 5 else 1):
                    if nxt: e(nxt.pop(0))
            assert not nxt
            if cn + 1 < 2 * NST: e("s_waitcnt lgkmcnt(0)")
            if cn % 2 == 0: e("s_barrier")
        if role == 0: ts(4)
        e("s_nop 7"); e("s_nop 7")
        k = 0
        for c in range(nmain):
            for rb in range(4):
                a = ACC + 4 * (c * 4 + rb); t = 32 + 2 * (k % 8); k += 1
                cvt_pk(t, a, a + 1); cvt_pk(t + 1, a + 2, a + 3)
                e(f"ds_write_b64 v30, {vr(t,2)} offset:{(16+64*wm2+16*rb)*TS+cols[c]}")
        for i, c in enumerate(halo):
            a = ACC + 4 * (20 + i); t = 32 + 2 * (k % 8); k += 1
            cvt_pk(t, a, a + 1); cvt_pk(t + 1, a + 2, a + 3)
            e(f"ds_write_b64 v30, {vr(t,2)} offset:{cols[c]}")
        if role < 3: e("s_branch K1_EPI")
    lab("K1_EPI")
    e("s_waitcnt lgkmcnt(0)"); e("s_barrier")
    ts(5)
    if "noepi" in VAR: G.ts_flush(6); e("s_branch K1_END")
    e("s_cmp_eq_u32 s24, 0"); e("s_cbranch_scc0 K1_ATTB")
    ONEL, ONEH, EPS = 120, 121, 122
    e(f"v_mov_b32 v{ONEL}, 0x3f80"); e(f"v_mov_b32 v{ONEH}, 0x3f800000"); e(f"v_mov_b32 v{EPS}, 0x358637bd")
    e("s_mov_b32 s32, 0x3fb8aa3b"); e("s_mov_b32 s33, 0x3fb8aa3b")
    def phi(regs, T0):
        for i0 in range(0, len(regs), 4):
            grp = regs[i0:i0 + 4]
            for i, w in enumerate(grp): unpk_lo(T0 + 2 * i, w); unpk_hi(T0 + 2 * i + 1, w)
            for i, w in enumerate(grp): e(f"v_pk_mul_f32 {vr(T0+2*i,2)}, {vr(T0+2*i,2)}, s[32:33]")
            for i, w in enumerate(grp): e(f"v_pk_max_i16 v{w}, v{w}, 0")
            for i, w in enumerate(grp):
                e(f"v_exp_f32 v{T0+2*i}, v{T0+2*i} clamp"); e(f"v_exp_f32 v{T0+2*i+1}, v{T0+2*i+1} clamp")
            for i, w in enumerate(grp):
                e(f"v_dot2_f32_bf16 v{T0+2*i}, v{w}, v{ONEL}, v{T0+2*i}"); e(f"v_dot2_f32_bf16 v{T0+2*i+1}, v{w}, v{ONEH}, v{T0+2*i+1}")
            if len(grp) < 4: e("s_nop 2")
            for i, w in enumerate(grp): cvt_pk(w, T0 + 2 * i, T0 + 2 * i + 1)
            for i, w in enumerate(grp):
                e(f"v_dot2_f32_bf16 v{T0+2*i}, v{w}, v{ONEL}, v{EPS}"); e(f"v_dot2_f32_bf16 v{T0+2*i+1}, v{w}, v{ONEH}, v{EPS}")
            if len(grp) < 4: e("s_nop 2")
            for i, w in enumerate(grp): cvt_pk(w, T0 + 2 * i, T0 + 2 * i + 1)
    e("s_cmp_lt_u32 s27, 4"); e("s_cbranch_scc1 K1_AKV")
    e("v_bfe_u32 v24, v0, 1, 7"); e("v_and_b32 v25, 1, v0")
    e("v_add_u32 v26, 16, v24"); e(f"v_mul_u32_u24 v26, {TS}, v26"); e("v_mul_u32_u24 v27, 56, v25"); e("v_add_u32 v26, v26, v27")
    for i in range(7): e(f"ds_read_b64 {vr(32+2*i,2)}, v26 offset:{8*i}")
    e("v_add_u32 v27, s28, v24"); e("v_lshlrev_b32 v27, 10, v27"); e("v_lshl_add_u32 v27, v25, 6, v27")
    e("s_lshl_b32 s29, s26, 7"); e("v_add_u32 v27, s29, v27")
    e("v_mov_b32 v46, 0"); e("v_mov_b32 v47, 0")
    e("s_waitcnt lgkmcnt(0)")
    phi(list(range(32, 46)), 64)
    for i in range(4): e(f"buffer_store_dwordx4 {vr(32+4*i,4)}, v27, s[20:23], 0 offen offset:{16*i}")
    G.ts_end(6)
    e("s_branch K1_END")
    lab("K1_AKV")
    e("v_lshrrev_b32 v24, 2, v16"); e("v_lshl_add_u32 v24, v17, 2, v24"); e("v_add_u32 v24, 16, v24")
    e(f"v_mul_u32_u24 v24, {TS}, v24"); e("v_and_b32 v25, 3, v16"); e("v_lshl_add_u32 v24, v25, 3, v24")
    e("s_lshr_b32 s29, s27, 1"); e("s_and_b32 s30, s27, 1"); e("s_mul_i32 s31, s29, 56")
    e("s_lshl_b32 s34, s30, 5"); e("s_add_u32 s34, s34, s31"); e("s_add_u32 s34, s34, 112"); e("s_add_u32 s31, s31, 224")
    e("v_add_u32 v25, s34, v24"); e("v_add_u32 v26, s31, v24")
    for i in range(4): e(f"v_mov_b32 v{116+i}, 0x3f803f80")
    PK, VV, KA = 32, 48, 100
    for ks in range(4):
        for h in range(2): e(f"ds_read_b64_tr_b16 {vr(PK+4*ks+2*h,2)}, v25 offset:{(32*ks+16*h)*TS}")
    for ks in range(4):
        for nb in range(2):
            for h in range(2): e(f"ds_read_b64_tr_b16 {vr(VV+8*ks+4*nb+2*h,2)}, v26 offset:{(32*ks+16*h)*TS+32*nb}")
    e("s_waitcnt lgkmcnt(15)")
    phi(list(range(PK, PK + 16)), 80)
    e("s_waitcnt lgkmcnt(0)"); e("s_nop 1")
    for ks in range(4):
        c = (lambda a: "0" if ks == 0 else vr(a, 4))
        e(f"v_mfma_f32_16x16x32_bf16 {vr(KA,4)}, {vr(PK+4*ks,4)}, {vr(VV+8*ks,4)}, {c(KA)}")
        e(f"v_mfma_f32_16x16x32_bf16 {vr(KA+4,4)}, {vr(PK+4*ks,4)}, {vr(VV+8*ks+4,4)}, {c(KA+4)}")
        e(f"v_mfma_f32_16x16x32_bf16 {vr(KA+8,4)}, {vr(PK+4*ks,4)}, v[116:119], {c(KA+8)}")
    e("s_lshl_b32 s31, s26, 1"); e("s_add_u32 s31, s31, s29"); e("s_lshl_b32 s34, s25, 4"); e("s_add_u32 s31, s31, s34")
    e("s_lshl_b32 s34, s31, 12"); e("s_lshl_b32 s35, s31, 7"); e("s_lshl_b32 s36, s30, 4")
    e("v_lshl_add_u32 v24, v17, 2, s36"); e("v_lshlrev_b32 v25, 7, v24"); e("v_lshl_add_u32 v25, v16, 2, v25")
    e("v_add_u32 v25, s34, v25"); e("v_lshlrev_b32 v26, 2, v24"); e("v_add_u32 v26, s35, v26")
    e(f"s_mov_b32 s35, {G.WS_KVP}"); e(f"s_mov_b32 s36, {G.WS_ZP}")
    e("s_nop 7"); e("s_nop 3")
    for nb in range(2):
        for i in range(4): e(f"buffer_store_dword v{KA+4*nb+i}, v25, s[20:23], s35 offen offset:{128*i + 64*nb}")
    for i in range(4): e(f"buffer_store_dword v{KA+8+i}, v26, s[20:23], s36 offen offset:{4*i}")
    G.ts_end(6)
    e("s_branch K1_END")
    lab("K1_ATTB")
    e("s_lshl_b32 s29, s27, 4"); e("s_add_u32 s30, s29, 16")
    e("v_add_u32 v24, s30, v16"); e(f"v_mul_u32_u24 v24, {TS}, v24"); e("v_lshl_add_u32 v24, v17, 4, v24")
    e(f"v_subrev_u32 v25, {16*TS}, v24")
    e("v_lshrrev_b32 v26, 2, v16"); e("v_lshl_add_u32 v26, v17, 2, v26"); e("v_add_u32 v26, s29, v26")
    e(f"v_mul_u32_u24 v26, {TS}, v26"); e("v_and_b32 v27, 3, v16"); e("v_lshl_add_u32 v26, v27, 3, v26")
    R = [32, 64]
    for hh in range(2):
        b = R[hh]
        e(f"ds_read2_b64 {vr(b,4)}, v24 offset0:{7*hh} offset1:{7*hh+1}")
        e(f"ds_read2_b64 {vr(b+4,4)}, v25 offset0:{14+7*hh} offset1:{15+7*hh}")
        e(f"ds_read2_b64 {vr(b+8,4)}, v24 offset0:{14+7*hh} offset1:{15+7*hh}")
    for hh in range(2):
        b = R[hh]
        for db in range(2):
            for kb in range(2): e(f"ds_read_b64_tr_b16 {vr(b+12+4*db+2*kb,2)}, v26 offset:{224+56*hh+32*db+16*TS*kb}")
    e("v_lshlrev_b32 v27, 2, v17"); e("v_sub_u32 v27, v16, v27"); e("v_add_u32 v27, 16, v27")
    for sl in range(8):
        kb, i = sl >> 2, sl & 3
        e(f"v_subrev_u32 v{100+sl}, {16*kb+i}, v27"); e(f"v_alignbit_b32 v{100+sl}, v{100+sl}, v{100+sl}, 1")
    for sl in range(8): e(f"v_cmp_ge_u32 s[{40+2*sl}:{41+2*sl}], 7, v{100+sl}")
    e("s_add_u32 s30, s25, s27"); e("s_cmp_eq_u32 s30, 0"); e("s_cbranch_scc0 K1_NM")
    for sl in range(4): e(f"s_mov_b64 s[{40+2*sl}:{41+2*sl}], 0")
    lab("K1_NM")
    e("v_cmp_eq_u32 vcc, 3, v17"); e("v_mov_b32 v28, 0"); e("v_mov_b32 v29, 0xce6e6b28")
    e("s_mov_b32 s32, 0x3e4184d8"); e("s_mov_b32 s33, 0x3e4184d8"); e("s_mov_b32 s35, 0x3fb8aa3b")
    e("s_add_u32 s30, s28, s29"); e("v_add_u32 v30, s30, v16"); e("s_movk_i32 s30, 896"); e("v_mul_lo_u32 v30, v30, s30")
    e("v_lshl_add_u32 v30, v17, 3, v30"); e("s_mul_i32 s30, s26, 112"); e("v_add_u32 v30, s30, v30")
    e(f"v_mov_b32 v31, {OOB}"); e("v_cndmask_b32 v31, v30, v31, vcc")
    e(f"s_mov_b32 s36, {G.WS_OB}")
    e("s_waitcnt lgkmcnt(11)")
    for hh in range(2):
        b = R[hh]
        if hh: e("s_waitcnt lgkmcnt(8)")
        e(f"v_cndmask_b32 v{b+2}, v{b+2}, v28, vcc"); e(f"v_cndmask_b32 v{b+3}, v{b+3}, v28, vcc"); e("s_nop 1")
        e(f"v_mfma_f32_16x16x32_bf16 {vr(b+20,4)}, {vr(b+4,4)}, {vr(b,4)}, 0")
        e(f"v_mfma_f32_16x16x32_bf16 {vr(b+24,4)}, {vr(b+8,4)}, {vr(b,4)}, 0")
    e("s_nop 7")
    def xred(op, x, y):
        e(f"v_mov_b32 v{y}, v{x}"); e("s_nop 1"); e(f"v_permlane32_swap_b32 v{x}, v{y}"); e("s_nop 1"); e(f"{op} v{x}, v{x}, v{y}")
        e(f"v_mov_b32 v{y}, v{x}"); e("s_nop 1"); e(f"v_permlane16_swap_b32 v{x}, v{y}"); e("s_nop 1"); e(f"{op} v{x}, v{x}, v{y}")
    for hh in range(2):
        b = R[hh]; S = b + 20; T = b
        if hh: pass
        for i in range(4): cvt_pk(T + i, S + 2 * i, S + 2 * i + 1)
        for i in range(4): unpk_lo(S + 2 * i, T + i); unpk_hi(S + 2 * i + 1, T + i)
        for i in range(4): e(f"v_pk_mul_f32 {vr(S+2*i,2)}, {vr(S+2*i,2)}, s[32:33]")
        for i in range(4): cvt_pk(T + i, S + 2 * i, S + 2 * i + 1)
        for i in range(4): unpk_lo(S + 2 * i, T + i); unpk_hi(S + 2 * i + 1, T + i)
        for i in range(8): e(f"v_cndmask_b32 v{S+i}, v29, v{S+i}, s[{40+2*i}:{41+2*i}]")
        e(f"v_max3_f32 v{T}, v{S}, v{S+1}, v{S+2}"); e(f"v_max3_f32 v{T+1}, v{S+3}, v{S+4}, v{S+5}")
        e(f"v_max3_f32 v{T}, v{T}, v{S+6}, v{S+7}"); e(f"v_max_f32 v{T}, v{T}, v{T+1}")
        xred("v_max_f32", T, T + 1)
        for i in range(8): e(f"v_sub_f32 v{S+i}, v{S+i}, v{T}")
        for i in range(8): e(f"v_mul_f32 v{S+i}, s35, v{S+i}")
        for i in range(8): e(f"v_exp_f32 v{S+i}, v{S+i}")
        e("s_nop 0")
        e(f"v_add_f32 v{T}, v{S}, v{S+1}"); e(f"v_add_f32 v{T+1}, v{S+2}, v{S+3}")
        e(f"v_add_f32 v{T+2}, v{S+4}, v{S+5}"); e(f"v_add_f32 v{T+3}, v{S+6}, v{S+7}")
        e(f"v_add_f32 v{T}, v{T}, v{T+1}"); e(f"v_add_f32 v{T+2}, v{T+2}, v{T+3}"); e(f"v_add_f32 v{T}, v{T}, v{T+2}")
        xred("v_add_f32", T, T + 1)
        e(f"v_rcp_f32 v{T}, v{T}"); e("s_nop 0")
        for i in range(8): e(f"v_mul_f32 v{S+i}, v{T}, v{S+i}")
        for i in range(4): cvt_pk(T + 4 + i, S + 2 * i, S + 2 * i + 1)
        e(f"s_waitcnt lgkmcnt({4 if hh == 0 else 0})"); e("s_nop 1")
        for db in range(2):
            e(f"v_mfma_f32_16x16x32_bf16 {vr(S+4*db,4)}, {vr(b+12+4*db,4)}, {vr(T+4,4)}, 0")
    for hh in range(2):
        b = R[hh]; S = b + 20
        if hh: e("s_nop 7"); e("s_nop 7")
        for db in range(2):
            cvt_pk(b + 2 * db, S + 4 * db, S + 4 * db + 1); cvt_pk(b + 2 * db + 1, S + 4 * db + 2, S + 4 * db + 3)
            e(f"buffer_store_dwordx2 {vr(b+2*db,2)}, v{30+db}, s[20:23], s36 offen offset:{56*hh+32*db}")
    G.ts_end(6)
    lab("K1_END")
    e("s_endpgm")
```

```python
import sys, os
VAR = os.environ.get("VAR", "")
NAME = "concat_heads__linear_attn_block__sliding_local_dilated__prompt"
OUT = os.environ.get("OUT", f"cdna_kernels/{NAME}.s")

L = []
def e(s=""):
    L.append("    " + s if s and not s.endswith(":") else s)
def lab(s): L.append(s + ":")

WS_PQA = 0
WS_OB = 0x200000
WS_KVP = 0x400000
WS_ZP = 0x500000
WS_WOT = 0x600000
WS_MT = 0x700000
WS_ZC = 0x780000
WS_END = 0x800000

def vr(a, n=1): return f"v{a}" if n == 1 else f"v[{a}:{a+n-1}]"
def ar(a, n=1): return f"a{a}" if n == 1 else f"a[{a}:{a+n-1}]"

def srd(dst, ptr_lo, nbytes):
    e(f"s_mov_b32 s{dst}, s{ptr_lo}")
    e(f"s_and_b32 s{dst+1}, s{ptr_lo+1}, 0xffff")
    e(f"s_mov_b32 s{dst+2}, {nbytes}")
    e(f"s_mov_b32 s{dst+3}, 0x00020000")

def kernel_header(name):
    L.append(".p2align 8"); L.append(f".globl {name}"); L.append(f".type {name},@function"); lab(name)

def kd(name, nvgpr, accum, nsgpr=100):
    return f""".p2align 6
.amdhsa_kernel {name}
  .amdhsa_next_free_vgpr {nvgpr}
  .amdhsa_next_free_sgpr {nsgpr}
  .amdhsa_accum_offset {accum}
  .amdhsa_group_segment_fixed_size 0
  .amdhsa_kernarg_size 72
  .amdhsa_user_sgpr_count 2
  .amdhsa_user_sgpr_kernarg_segment_ptr 1
  .amdhsa_system_sgpr_workgroup_id_x 1
.end_amdhsa_kernel"""

def cvt_pk(dst, a, b): e(f"v_cvt_pk_bf16_f32 v{dst}, v{a}, v{b}")
def unpk_lo(dst, src): e(f"v_lshlrev_b32 v{dst}, 16, v{src}")
def unpk_hi(dst, src): e(f"v_and_b32 v{dst}, 0xffff0000, v{src}")

K1 = NAME + "_k1_kernel"; K2 = NAME + "_k2_kernel"; K3 = NAME + "_k3_kernel"
OOB = "0x7fff0000"
XREG = 144 * 64
WSr = 352
SLOT = XREG + 32 * WSr + 1024
NSLOT = 7
K1_LDS = NSLOT * SLOT
TS = 352
NCH = 14


sys.path.insert(0, "gen")
import k1new
def ts(n):
    if "ts" not in VAR.split("_"): return
    e("s_memtime s[98:99]"); e("s_waitcnt lgkmcnt(0)"); e(f"v_writelane_b32 v239, s98, {n}")
def ts_flush(n):
    if "ts" not in VAR.split("_"): return
    e("v_and_b32 v238, 63, v0"); e("v_lshlrev_b32 v238, 2, v238"); e("s_lshl_b32 s98, s2, 11"); e("s_lshl_b32 s99, s27, 8"); e("s_add_u32 s98, s98, s99"); e("s_add_u32 s98, s98, 0x7e0000")
    e("buffer_store_dword v239, v238, s[20:23], s98 offen")
def ts_end(n):
    if "ts" not in VAR.split("_"): return
    ts(n); e("s_waitcnt vmcnt(0)"); ts(n + 1); ts_flush(n + 2)
def gen_k1():
    k1new.gen_k1(sys.modules[__name__])

def outproj(P_, isA):
    rowbytes = 1024 if isA else 896
    e("s_mul_hi_u32 s24, s2, 0x24924925"); e("s_mul_i32 s25, s24, 7"); e("s_sub_u32 s25, s2, s25")
    e("s_lshr_b32 s30, s27, 1"); e("s_and_b32 s31, s27, 1")
    e("s_lshl_b32 s28, s24, 6"); e("s_lshl_b32 s26, s25, 6")
    e(f"s_movk_i32 s29, {rowbytes}")
    e("s_lshl_b32 s32, s27, 3"); e("s_add_u32 s33, s32, s28"); e("s_add_u32 s32, s32, s26")
    e("s_and_b32 s35, s27, 1"); e("s_lshl_b32 s35, s35, 3")
    for ii in range(2):
        e(f"v_add_u32 v22, {4*ii}, v17"); e("v_add_u32 v23, s35, v22"); e("v_xor_b32 v23, v23, v16")
        e("v_add_u32 v24, s33, v22"); e(f"v_mul_lo_u32 v{2+ii}, v24, s29"); e(f"v_lshl_add_u32 v{2+ii}, v23, 4, v{2+ii}")
        e("v_add_u32 v24, s32, v22"); e(f"v_mul_lo_u32 v{6+ii}, v24, s29"); e(f"v_lshl_add_u32 v{6+ii}, v23, 4, v{6+ii}")
        if not isA:
            e("v_cmp_lt_u32 vcc, 7, v23"); e(f"v_mov_b32 v24, {OOB}"); e("s_nop 0")
            e(f"v_cndmask_b32 v{10+ii}, v{2+ii}, v24, vcc"); e(f"v_cndmask_b32 v{18+ii}, v{6+ii}, v24, vcc")
    e("s_lshl_b32 s34, s27, 11")
    e("s_waitcnt lgkmcnt(0)")
    srd(16, 6, 2048 * 1792); srd(20, 8, WS_END)
    sa, sb = (WS_PQA, WS_MT) if isA else (WS_OB, WS_WOT + 0x80000)
    Z, ZF, DEN, RD, PP, ACC = 80, 84, 100, 104, 108, 140
    if isA:
        e("v_lshlrev_b32 v22, 6, v16"); e("v_lshl_add_u32 v22, v17, 4, v22"); e(f"s_mov_b32 s38, {WS_ZC}")
        e(f"buffer_load_dwordx4 {vr(Z,4)}, v22, s[20:23], s38 offen")
    for q in range(4):
        e(f"s_mov_b32 s36, {sa+256*q}"); e(f"s_mov_b32 s37, {sb+256*q}")
        for ii in range(2):
            va = (2 if (isA or q < 3) else 10) + ii; vb = (6 if (isA or q < 3) else 18) + ii
            e(f"s_add_u32 m0, s34, {q*16384+ii*1024}"); e("s_nop 0"); e(f"buffer_load_dwordx4 v{va}, s[20:23], s36 offen lds")
            e(f"s_add_u32 m0, s34, {65536+q*16384+ii*1024}"); e("s_nop 0"); e(f"buffer_load_dwordx4 v{vb}, s[20:23], s37 offen lds")
    e("v_lshrrev_b32 v22, 2, v16"); e("v_and_b32 v23, 3, v16"); e("v_xor_b32 v23, v23, v17")
    e("v_lshlrev_b32 v1, 8, v16"); e("v_lshl_add_u32 v1, v23, 4, v1")
    e("s_lshl_b32 s35, s30, 12"); e("s_lshl_b32 s39, s31, 13"); e("s_add_u32 s39, s39, 65536")
    for jl in range(4):
        e(f"v_xor_b32 v23, {jl}, v22"); e("v_lshl_add_u32 v23, v23, 6, v1")
        e(f"v_add_u32 v{24+jl}, s35, v23"); e(f"v_add_u32 v{28+jl}, s39, v23")
    if isA:
        e("v_mov_b32 v15, 0"); e("s_mov_b32 s34, 0x358637bd")
    FA, FB = 32, 48
    for q in range(4):
        nst = 4 if (isA or q < 3) else 2
        e(f"s_waitcnt vmcnt({4*(3-q)})"); e("s_barrier")
        if "opdma" in VAR: continue
        for jl in range(nst): e(f"ds_read_b128 {vr(FA+4*jl,4)}, v{24+jl} offset:{q*16384}")
        for jl in range(nst):
            for cb in range(2): e(f"ds_read_b128 {vr(FB+16*cb+4*jl,4)}, v{28+jl} offset:{q*16384+cb*4096}")
        if isA:
            e(f"v_lshlrev_b32 v14, 2, v16"); e(f"v_add_u32 v14, {64*q}, v14")
            for jl in range(4):
                j = 4 * q + jl
                e(f"v_cmp_eq_u32 vcc, {j}, v16"); e("s_nop 0")
                for i in range(4): e(f"v_cndmask_b32 v{ZF+4*jl+i}, v15, v{Z+i}, vcc")
            for jl in range(4):
                e(f"s_waitcnt lgkmcnt({8+(3-jl)})")
                e(f"v_mfma_f32_16x16x32_bf16 {vr(DEN,4)}, {vr(ZF+4*jl,4)}, {vr(FA+4*jl,4)}, {vr(DEN,4) if (q or jl) else 0}")
            for jl in range(4):
                e(f"s_waitcnt lgkmcnt({2*(3-jl)})")
                for cb in range(2):
                    e(f"v_mfma_f32_16x16x32_bf16 {vr(PP+8*jl+4*cb,4)}, {vr(FB+16*cb+4*jl,4)}, {vr(FA+4*jl,4)}, 0")
            T = 10; d = DEN; t = 2
            cvt_pk(T, d, d + 1); cvt_pk(T + 1, d + 2, d + 3)
            unpk_lo(t, T); unpk_hi(t + 1, T); unpk_lo(t + 2, T + 1); unpk_hi(t + 3, T + 1)
            for i in range(4): e(f"v_add_f32 v{t+i}, s34, v{t+i}")
            cvt_pk(T, t, t + 1); cvt_pk(T + 1, t + 2, t + 3)
            unpk_lo(t, T); unpk_hi(t + 1, T); unpk_lo(t + 2, T + 1); unpk_hi(t + 3, T + 1)
            for i in range(4): e(f"v_rcp_f32 v{t+i}, v{t+i}")
            e("s_nop 0")
            for i in range(4): e(f"ds_bpermute_b32 v{RD+i}, v14, v{2+i}")
            e("s_nop 4")
            e("s_waitcnt lgkmcnt(0)")
            for jl in range(4):
                for k in range(8):
                    a = ACC + k
                    if q == 0 and jl == 0: e(f"v_mul_f32 v{a}, v{PP+8*jl+k}, v{RD+jl}")
                    else: e(f"v_fmac_f32 v{a}, v{PP+8*jl+k}, v{RD+jl}")
        else:
            for jl in range(nst):
                e(f"s_waitcnt lgkmcnt({2*(nst-1-jl)})")
                for cb in range(2):
                    a = ACC + 4 * cb
                    e(f"v_mfma_f32_16x16x32_bf16 {vr(a,4)}, {vr(FB+16*cb+4*jl,4)}, {vr(FA+4*jl,4)}, {vr(a,4) if (q or jl) else 0}")
    if not isA: e("s_nop 7"); e("s_nop 7")
    e("s_lshl_b32 s29, s30, 4"); e("s_add_u32 s28, s28, s29"); e("s_lshl_b32 s29, s31, 5"); e("s_add_u32 s26, s26, s29")
    e("v_add_u32 v6, s28, v16"); e("s_movk_i32 s29, 1792"); e("v_mul_lo_u32 v6, v6, s29"); e("v_lshl_add_u32 v6, v17, 3, v6")
    e("s_lshl_b32 s29, s26, 1"); e(f"s_add_u32 s29, s29, {0 if isA else 896}"); e("v_add_u32 v6, s29, v6")
    for cb in range(2):
        a = ACC + 4 * cb; t = 32 + 2 * cb
        cvt_pk(t, a, a + 1); cvt_pk(t + 1, a + 2, a + 3)
        e(f"buffer_store_dwordx2 {vr(t,2)}, v6, s[16:19], 0 offen offset:{32*cb}")

def gen_k2():
    kernel_header(K2)
    e("s_cmp_ge_u32 s2, 256"); e("s_cbranch_scc1 K2_END")
    e("s_load_dwordx2 s[6:7], s[0:1], 48"); e("s_load_dwordx2 s[8:9], s[0:1], 64")
    e("v_lshrrev_b32 v1, 6, v0"); e("s_nop 0"); e("v_readfirstlane_b32 s27, v1")
    e("v_and_b32 v16, 15, v0"); e("v_bfe_u32 v17, v0, 4, 2")
    e("s_cmp_lt_u32 s2, 224"); e("s_cbranch_scc1 K2_GEMM")
    if "k2noa" in VAR: e("s_branch K2_END")
    e("s_cmp_lt_u32 s27, 4"); e("s_cbranch_scc1 K2_AW"); e("s_barrier"); e("s_branch K2_END"); lab("K2_AW")
    e("s_sub_u32 s3, s2, 224"); e("s_lshr_b32 s24, s3, 1"); e("s_and_b32 s25, s3, 1")
    e("v_lshlrev_b32 v2, 4, v0"); e("s_lshl_b32 s26, s24, 12"); e("v_add_u32 v2, s26, v2")
    e("v_lshlrev_b32 v3, 2, v0"); e("s_lshl_b32 s26, s24, 7"); e("v_add_u32 v3, s26, v3")
    e("v_cmp_gt_u32 vcc, 32, v0"); e(f"v_mov_b32 v4, {OOB}"); e("s_nop 1"); e("v_cndmask_b32 v3, v4, v3, vcc")
    e("s_mul_i32 s26, s25, 14"); e("s_add_u32 s26, s26, s27"); e("s_lshl_b32 s26, s26, 4")
    e("v_add_u32 v5, s26, v16"); e("s_movk_i32 s29, 896"); e("v_mul_lo_u32 v6, v5, s29"); e("v_lshl_add_u32 v6, v17, 4, v6")
    e("s_mul_i32 s29, s24, 56"); e("v_add_u32 v6, s29, v6")
    e("v_lshlrev_b32 v7, 10, v5"); e("v_lshl_add_u32 v7, v17, 3, v7"); e("s_lshl_b32 s29, s24, 6"); e("v_add_u32 v7, s29, v7")
    e("s_waitcnt lgkmcnt(0)")
    srd(16, 6, 2048 * 1792); srd(20, 8, WS_END)
    e(f"s_mov_b32 s35, {WS_KVP}"); e(f"s_mov_b32 s36, {WS_ZP}"); e(f"s_mov_b32 s37, {WS_WOT}")
    for rt in range(16):
        e(f"v_add_u32 v8, {65536*rt}, v2"); e(f"buffer_load_dwordx4 {vr(32+4*rt,4)}, v8, s[20:23], s35 offen")
    for i in range(4):
        e(f"v_add_u32 v8, {64*896*i}, v6")
        if i == 3:
            e("s_cmp_lt_u32 s27, 2"); e("s_cbranch_scc1 K2_I3"); e(f"v_mov_b32 v8, {OOB}"); lab("K2_I3")
        e(f"buffer_load_dwordx4 {vr(112+4*i,4)}, v8, s[20:23], s37 offen")
    for rt in range(16):
        e(f"v_add_u32 v8, {2048*rt}, v3"); e(f"buffer_load_dword v{96+rt}, v8, s[20:23], s36 offen")
    for rt in range(1, 16):
        e(f"s_waitcnt vmcnt({20+15-rt})")
        for i in range(4): e(f"v_add_f32 v{32+i}, v{32+i}, v{32+4*rt+i}")
    e("v_and_b32 v8, 7, v0"); e("v_cmp_eq_u32 s[40:41], 7, v8"); e("v_cmp_lt_u32 vcc, 223, v0"); e("s_or_b64 vcc, vcc, s[40:41]")
    e("v_mov_b32 v9, 0"); cvt_pk(36, 32, 33); cvt_pk(37, 34, 35)
    e("v_cndmask_b32 v36, v36, v9, vcc"); e("v_cndmask_b32 v37, v37, v9, vcc")
    e("v_lshrrev_b32 v10, 3, v0"); e("v_mul_u32_u24 v10, 80, v10"); e("v_lshl_add_u32 v10, v8, 3, v10")
    e("ds_write_b64 v10, v[36:37]")
    e("v_mul_u32_u24 v11, 80, v16"); e("v_lshl_add_u32 v11, v17, 4, v11")
    e("s_waitcnt lgkmcnt(0)"); e("s_barrier")
    e("ds_read_b128 v[40:43], v11"); e(f"ds_read_b128 v[44:47], v11 offset:{16*80}")
    e("v_cmp_eq_u32 vcc, 3, v17")
    e("s_waitcnt lgkmcnt(0) vmcnt(16)")
    for i in range(4):
        e(f"v_cndmask_b32 v{114+4*i}, v{114+4*i}, v9, vcc"); e(f"v_cndmask_b32 v{115+4*i}, v{115+4*i}, v9, vcc")
    e("s_nop 1")
    for i in range(4):
        for db in range(2):
            e(f"v_mfma_f32_16x16x32_bf16 {vr(48+8*i+4*db,4)}, {vr(40+4*db,4)}, {vr(112+4*i,4)}, 0")
    e("s_waitcnt vmcnt(0)")
    for rt in range(1, 16): e(f"v_add_f32 v96, v96, v{96+rt}")
    e("v_cmp_lt_u32 vcc, 27, v0"); e("s_nop 1"); e("v_cndmask_b32 v96, v96, v9, vcc"); e("s_nop 0"); cvt_pk(96, 96, 96)
    e("v_lshlrev_b32 v12, 1, v0"); e("s_lshl_b32 s29, s24, 6"); e("v_add_u32 v12, s29, v12")
    e("v_cmp_gt_u32 vcc, 32, v0"); e("s_cmp_eq_u32 s25, 0"); e("s_cselect_b64 s[40:41], -1, 0"); e("s_and_b64 vcc, vcc, s[40:41]")
    e(f"v_cndmask_b32 v12, v4, v12, vcc"); e(f"s_mov_b32 s38, {WS_ZC}")
    e("buffer_store_short v96, v12, s[20:23], s38 offen")
    e(f"s_mov_b32 s38, {WS_MT}")
    for i in range(4):
        e(f"v_add_u32 v8, {64*1024*i}, v7")
        if i == 3:
            e("s_cmp_lt_u32 s27, 2"); e("s_cbranch_scc1 K2_I3S"); e(f"v_mov_b32 v8, {OOB}"); lab("K2_I3S")
        for db in range(2):
            a = 48 + 8 * i + 4 * db
            cvt_pk(80 + 2 * db, a, a + 1); cvt_pk(81 + 2 * db, a + 2, a + 3)
            e(f"buffer_store_dwordx2 {vr(80+2*db,2)}, v8, s[20:23], s38 offen offset:{32*db}")
    e("s_branch K2_END")
    lab("K2_GEMM")
    if "k2nob" in VAR: e("s_branch K2_END")
    outproj("K2", False)
    lab("K2_END")
    e("s_endpgm")

def gen_k3():
    kernel_header(K3)
    e("s_cmp_ge_u32 s2, 224"); e("s_cbranch_scc1 K3_END")
    e("s_load_dwordx2 s[6:7], s[0:1], 48"); e("s_load_dwordx2 s[8:9], s[0:1], 64")
    e("v_lshrrev_b32 v1, 6, v0"); e("s_nop 0"); e("v_readfirstlane_b32 s27, v1")
    e("v_and_b32 v16, 15, v0"); e("v_bfe_u32 v17, v0, 4, 2")
    outproj("K3", True)
    lab("K3_END")
    e("s_endpgm")

def main():
    hdr = open(f"cdna_kernels/{NAME}.s.ref").read().split("\n")
    top = [l for l in hdr if l.startswith(";") and "@launch" not in l]
    top.append(f"; @launch kernel={K1} grid=(256,1,1) block=(512,1,1) lds={k1new.K1_LDS}")
    top.append(f"; @launch kernel={K2} grid=(256,1,1) block=(512,1,1) lds=131072")
    top.append(f"; @launch kernel={K3} grid=(224,1,1) block=(512,1,1) lds=131072")
    L.extend(top)
    L.append('.amdgcn_target "amdgcn-amd-amdhsa--gfx950"'); L.append(".text")
    gen_k1(); gen_k2(); gen_k3()
    L.append('.section .rodata,"a"')
    L.append(kd(K1, 240, 240)); L.append(kd(K2, 148, 148)); L.append(kd(K3, 148, 148))
    open(OUT, "w").write("\n".join(L) + "\n")
main()
```

```python
XS = 144 * 128
WSr = 352
WH = 32 * WSr
STG = XS + 2 * WH
K1_LDS = 4 * STG
TS = 352
NST = 7

def gen_k1(G):
    e, lab, vr, srd, cvt_pk, unpk_lo, unpk_hi = G.e, G.lab, G.vr, G.srd, G.cvt_pk, G.unpk_lo, G.unpk_hi
    OOB, VAR = G.OOB, G.VAR
    ts = G.ts
    G.kernel_header(G.K1)
    e("s_cmp_ge_u32 s2, 256"); e("s_cbranch_scc1 K1_END")
    ts(0)
    e("s_and_b32 s24, s2, 1"); e("s_mul_i32 s29, s24, 24"); e("s_add_u32 s30, s0, s29"); e("s_addc_u32 s31, s1, 0")
    e("s_load_dwordx4 s[4:7], s[30:31], 0"); e("s_load_dwordx2 s[10:11], s[30:31], 16"); e("s_load_dwordx2 s[8:9], s[0:1], 64")
    e("v_lshrrev_b32 v1, 6, v0"); e("s_bfe_u32 s25, s2, 0x20001"); e("v_readfirstlane_b32 s27, v1")
    e("s_lshl_b32 s25, s25, 2"); e("s_bfe_u32 s26, s2, 0x20003"); e("s_add_u32 s25, s25, s26"); e("s_lshr_b32 s26, s2, 5")
    e("s_lshl_b32 s28, s25, 7")
    e("v_and_b32 v16, 15, v0"); e("v_bfe_u32 v17, v0, 4, 2"); e("v_and_b32 v5, 63, v0")
    e("s_cmp_lt_u32 s27, 4"); e("s_cbranch_scc1 K1_COMP")
    BIGN = "0xcfb2d05e"
    CM = 244
    def epi_pre(kind):
        sfx = kind
        e("s_cmp_eq_u32 s24, 0"); e(f"s_cbranch_scc1 K1_PA{sfx}")
        e("s_lshl_b32 s29, s27, 4"); e("s_add_u32 s30, s29, 16")
        e("v_add_u32 v2, s30, v16"); e(f"v_mul_u32_u24 v2, {TS}, v2"); e("v_lshl_add_u32 v2, v17, 4, v2")
        e(f"v_subrev_u32 v3, {16*TS}, v2")
        e("v_lshrrev_b32 v4, 2, v16"); e("v_lshl_add_u32 v4, v17, 2, v4"); e("v_add_u32 v4, s29, v4")
        e(f"v_mul_u32_u24 v4, {TS}, v4"); e("v_and_b32 v8, 3, v16"); e("v_lshl_add_u32 v4, v8, 3, v4")
        e("v_lshlrev_b32 v8, 2, v17"); e("v_sub_u32 v8, v16, v8"); e("v_add_u32 v8, 16, v8")
        e(f"v_mov_b32 v9, {BIGN}")
        for sl in range(8):
            kb, i = sl >> 2, sl & 3
            e(f"v_subrev_u32 v{CM+sl}, {16*kb+i}, v8"); e(f"v_alignbit_b32 v{CM+sl}, v{CM+sl}, v{CM+sl}, 1")
        for sl in range(8):
            e(f"v_cmp_ge_u32 vcc, 7, v{CM+sl}"); e("s_nop 1"); e(f"v_cndmask_b32 v{CM+sl}, v9, 0, vcc")
        e("s_add_u32 s30, s25, s27"); e("s_cmp_eq_u32 s30, 0"); e(f"s_cbranch_scc0 K1_NM{sfx}")
        for sl in range(4): e(f"v_mov_b32 v{CM+sl}, v9")
        lab(f"K1_NM{sfx}")
        e("v_and_b32 v8, 1, v16"); e("v_cmp_eq_u32 s[64:65], 1, v8"); e("v_cmp_eq_u32 s[66:67], 3, v17")
        e("v_mov_b32 v8, 0xffff"); e("v_mov_b32 v9, 0xffff0000"); e("v_cndmask_b32 v8, v8, v9, s[64:65]")
        e("s_add_u32 s30, s28, s29"); e("v_add_u32 v6, s30, v16"); e("s_movk_i32 s30, 896"); e("v_mul_lo_u32 v6, v6, s30")
        e("v_lshl_add_u32 v6, v17, 3, v6"); e("s_mul_i32 s30, s26, 112"); e("v_add_u32 v6, s30, v6")
        e(f"v_mov_b32 v7, {OOB}"); e("v_cndmask_b32 v7, v6, v7, s[66:67]")
        for i in range(4): e(f"v_mov_b32 v{12+i}, 0x3f803f80")
        e("s_mov_b32 s68, 0x3e8b97f6"); e("s_mov_b32 s69, 0x3e8b97f6"); e(f"s_mov_b32 s70, {G.WS_OB}")
        e(f"s_branch K1_PD{sfx}")
        lab(f"K1_PA{sfx}")
        e("v_mov_b32 v8, 0x3f80"); e("v_mov_b32 v9, 0x3f800000")
        e("s_mov_b32 s68, 0x3fb8aa3b"); e("s_mov_b32 s69, 0x3fb8aa3b"); e("s_mov_b32 s72, 0x358637bd"); e("s_mov_b32 s73, 0x358637bd")
        if kind == "c":
            e("v_lshrrev_b32 v4, 2, v16"); e("v_lshl_add_u32 v4, v17, 2, v4"); e("v_add_u32 v4, 16, v4")
            e(f"v_mul_u32_u24 v4, {TS}, v4"); e("v_and_b32 v3, 3, v16"); e("v_lshl_add_u32 v4, v3, 3, v4")
            e("s_lshr_b32 s29, s27, 1"); e("s_and_b32 s30, s27, 1"); e("s_mul_i32 s31, s29, 56")
            e("s_lshl_b32 s34, s30, 5"); e("s_add_u32 s34, s34, s31"); e("s_add_u32 s34, s34, 112"); e("s_add_u32 s31, s31, 224")
            e("v_add_u32 v2, s34, v4"); e("v_add_u32 v3, s31, v4")
            for i in range(4): e(f"v_mov_b32 v{12+i}, 0x3f803f80")
            e("s_lshl_b32 s31, s26, 1"); e("s_add_u32 s31, s31, s29"); e("s_lshl_b32 s34, s25, 4"); e("s_add_u32 s31, s31, s34")
            e("s_lshl_b32 s34, s31, 12"); e("s_lshl_b32 s35, s31, 7"); e("s_lshl_b32 s36, s30, 4")
            e("v_add_u32 v4, s36, v16"); e("v_lshlrev_b32 v6, 7, v4"); e("v_lshl_add_u32 v6, v17, 4, v6"); e("v_add_u32 v6, s34, v6")
            e("v_lshlrev_b32 v7, 2, v4"); e("v_add_u32 v7, s35, v7")
            e("v_cmp_eq_u32 vcc, 0, v17"); e(f"v_mov_b32 v4, {OOB}"); e("s_nop 0"); e("v_cndmask_b32 v7, v4, v7, vcc")
            e(f"s_mov_b32 s70, {G.WS_KVP}"); e(f"s_mov_b32 s71, {G.WS_ZP}")
        else:
            e("v_bfe_u32 v3, v0, 3, 5"); e("v_and_b32 v4, 3, v0"); e("v_bfe_u32 v7, v0, 2, 1")
            e("v_add_u32 v2, 16, v3"); e(f"v_mul_u32_u24 v2, {TS}, v2"); e("v_mul_u32_u24 v7, 56, v7"); e("v_add_u32 v2, v2, v7")
            e("v_lshl_add_u32 v2, v4, 4, v2"); e("v_cmp_eq_u32 s[66:67], 3, v4")
            e("v_add_u32 v6, s28, v3"); e("v_lshlrev_b32 v6, 10, v6"); e("v_and_b32 v4, 7, v0"); e("v_lshl_add_u32 v6, v4, 4, v6")
            e("s_lshl_b32 s29, s26, 7"); e("v_add_u32 v6, s29, v6")
            for i in range(1, 4): e(f"s_mov_b32 s{74+i}, {32768*i}")
        lab(f"K1_PD{sfx}")
    e("s_sub_u32 s38, s27, 4")
    e("v_lshrrev_b32 v6, 3, v5"); e("v_and_b32 v7, 7, v5"); e("v_xor_b32 v7, v7, v17")
    e("s_lshl_b32 s29, s38, 5"); e("s_add_u32 s29, s29, s28"); e("s_sub_u32 s29, s29, 16")
    e("v_add_u32 v6, s29, v6"); e("s_movk_i32 s31, 896"); e("v_mul_lo_u32 v6, v6, s31")
    e("v_lshl_add_u32 v20, v7, 4, v6"); e("v_xor_b32 v7, 4, v7"); e("v_lshl_add_u32 v21, v7, 4, v6"); e("v_add_u32 v21, 7168, v21")
    e("v_add_u32 v22, 14336, v20"); e("v_add_u32 v23, 14336, v21")
    def wvoff(dst, add):
        e(f"s_add_u32 s30, s38, {add}"); e("s_lshl_b32 s30, s30, 6"); e("v_add_u32 v6, s30, v5")
        e("s_mov_b32 s31, 0xba2e8bb"); e("v_mul_hi_u32 v7, v6, s31")
        e("v_mul_u32_u24 v9, 22, v7"); e("v_sub_u32 v9, v6, v9")
        e("s_mov_b32 s31, 0x24924925"); e("v_mul_hi_u32 v10, v9, s31")
        e("v_mul_u32_u24 v11, 7, v10"); e("v_sub_u32 v11, v9, v11")
        e("v_bfe_u32 v12, v7, 2, 2"); e("v_lshrrev_b32 v13, 4, v7"); e("v_and_b32 v7, 3, v7")
        e("v_lshl_add_u32 v7, v12, 3, v7"); e("v_lshl_add_u32 v7, v13, 2, v7")
        e(f"v_mul_u32_u24 v{dst}, 2688, v7"); e("v_mul_u32_u24 v10, 896, v10"); e(f"v_add_u32 v{dst}, v{dst}, v10")
        e(f"v_lshl_add_u32 v{dst}, v11, 4, v{dst}"); e(f"v_add_u32 v{dst}, s33, v{dst}")
        e("v_cmp_eq_u32 vcc, 21, v9"); e(f"v_mov_b32 v10, {OOB}"); e(f"v_add_u32 v{dst+1}, {32*2688}, v{dst}")
        e(f"v_cndmask_b32 v{dst}, v{dst}, v10, vcc"); e(f"v_cndmask_b32 v{dst+1}, v{dst+1}, v10, vcc")
    e("s_mul_i32 s33, s26, 112")
    wvoff(26, 0); wvoff(28, 4)
    e("s_cmp_eq_u32 s38, 3"); e("s_cbranch_scc1 K1_H3")
    wvoff(24, 8)
    e("s_branch K1_H3D")
    lab("K1_H3")
    e("v_add_u32 v24, 28672, v20"); e("v_add_u32 v25, 28672, v21")
    lab("K1_H3D")
    e("s_lshl_b32 s52, s38, 12")
    for i in range(1, 4): e(f"s_add_u32 s{52+i}, s52, {1024*i}")
    e("s_lshl_b32 s58, s38, 10"); e(f"s_add_u32 s58, s58, {XS}"); e(f"s_add_u32 s59, s58, {WH}")
    e("s_add_u32 s60, s58, 4096"); e("s_add_u32 s61, s59, 4096")
    e("s_add_u32 s56, s58, 8192"); e("s_add_u32 s57, s59, 8192")
    e("s_cmp_eq_u32 s38, 3"); e("s_cselect_b32 s56, 16384, s56"); e("s_cselect_b32 s57, 17408, s57")
    e("s_add_u32 s34, s25, s26"); e("s_lshl_b32 s30, s24, 2"); e("s_add_u32 s34, s34, s30")
    e("s_mul_i32 s30, s34, 37"); e("s_lshr_b32 s30, s30, 8"); e("s_mul_i32 s30, s30, 7"); e("s_sub_u32 s34, s34, s30")
    if "nostag" in VAR: e("s_mov_b32 s34, 0")
    e("s_waitcnt lgkmcnt(0)")
    srd(12, 4, 1835008); srd(16, 6, 448 * 2688)
    e("s_cmp_eq_u32 s38, 3")
    for i in range(4): e(f"s_cselect_b32 s{44+i}, s{12+i}, s{16+i}")
    def gload(st):
        sb = (st % 4) * STG
        e("s_lshl_b32 s35, s34, 7"); e(f"s_mul_i32 s36, s34, {64*2688}")
        e("s_cmp_eq_u32 s38, 3"); e("s_cselect_b32 s37, s35, s36")
        for i in (0, 1, 2, 3, 6, 7, 8, 9, 4, 5):
            sr, so = ("s[12:15]", 35) if i < 4 else (("s[44:47]", 37) if i < 6 else ("s[16:19]", 36))
            e(f"s_add_u32 m0, s{52+i}, {sb}"); e("s_nop 0")
            e(f"buffer_load_dwordx4 v{20+i}, {sr}, s{so} offen lds")
        e("s_add_u32 s34, s34, 1"); e("s_cmp_eq_u32 s34, 7"); e("s_cselect_b32 s34, 0, s34")
    ts(1)
    deep = "deep" in VAR
    gload(0); gload(1)
    ts(2)
    e("s_waitcnt vmcnt(10)"); e("s_barrier")
    srd(20, 8, G.WS_END)
    if deep:
        gload(2); gload(3)
        for s in range(NST):
            if s == 3: epi_pre('h')
            e(f"s_waitcnt vmcnt({(20, 20, 20, 20, 10, 0, 0)[s]})"); e("s_barrier")
            if s + 4 < NST: gload(s + 4)
    else:
        for s in range(NST):
            if s + 2 < NST: gload(s + 2)
            if s == 5: epi_pre('h')
            e(f"s_waitcnt vmcnt({(10, 10, 10, 10, 10, 0, 0)[s]})"); e("s_barrier")
    e("s_branch K1_EPI")
    lab("K1_COMP")
    e("s_lshl_b32 s29, s25, 3"); e("s_add_u32 s29, s29, s26"); e("s_mul_i32 s29, s29, 196")
    e("v_add_u32 v6, s29, v0"); e("s_mov_b32 s31, 0x924925"); e("v_mul_hi_u32 v7, v6, s31")
    e("v_mul_u32_u24 v8, 448, v7"); e("v_sub_u32 v8, v6, v8")
    e("v_mul_u32_u24 v9, 7168, v7"); e("v_lshl_add_u32 v9, v8, 1, v9")
    e("v_mul_u32_u24 v240, 896, v8"); e("v_lshl_add_u32 v240, v7, 4, v240")
    e("v_cmp_gt_u32 vcc, 196, v0"); e(f"v_mov_b32 v10, {OOB}"); e("s_nop 1")
    e("v_cndmask_b32 v9, v10, v9, vcc"); e("v_cndmask_b32 v240, v10, v240, vcc")
    e("v_lshrrev_b32 v6, 1, v16"); e("v_xor_b32 v6, v6, v17"); e("v_lshlrev_b32 v24, 7, v16"); e("v_lshl_add_u32 v24, v6, 4, v24")
    e("v_xor_b32 v25, 64, v24"); e(f"v_add_u32 v26, {2*STG}, v24"); e(f"v_add_u32 v27, {2*STG}, v25")
    e("v_lshrrev_b32 v6, 2, v16"); e("v_lshl_add_u32 v6, v17, 2, v6"); e(f"v_mul_u32_u24 v28, {WSr}, v6"); e("v_and_b32 v7, 3, v16")
    e("v_lshl_add_u32 v28, v7, 3, v28"); e(f"v_add_u32 v28, {XS}, v28"); e(f"v_add_u32 v29, {2*STG}, v28")
    e(f"v_mul_u32_u24 v30, {TS}, v16"); e("v_lshl_add_u32 v30, v17, 3, v30")
    e("s_waitcnt lgkmcnt(0)")
    srd(20, 8, G.WS_END); srd(48, 10, 448 * 896)
    e("s_movk_i32 s29, 3584")
    for i in range(4):
        so = "0" if i < 2 else "s29"
        e(f"buffer_load_ushort v{232+i}, v9, s[48:51], {so} offen offset:{1792*(i%2)}")
        e(f"buffer_load_ushort v{236+i}, v9, s[48:51], {so} offen offset:{1792*(i%2)+896}")
    e(f"s_mov_b32 s62, {G.WS_WOT}"); e("s_lshl_b32 s30, s24, 19"); e("s_add_u32 s62, s62, s30")
    epi_pre("c")
    e("s_cmp_eq_u32 s27, 1"); e("s_cbranch_scc1 K1_R1"); e("s_cmp_eq_u32 s27, 2"); e("s_cbranch_scc1 K1_R2")
    e("s_cmp_eq_u32 s27, 3"); e("s_cbranch_scc1 K1_R3")
    F = [32, 84]; ACC = 136
    for role in range(4):
        if role: lab(f"K1_R{role}")
        wm2, wn = role >> 1, role & 1
        if role in (0, 2): wm2, wn = role >> 1, 0
        wm2, wn = role >> 1, role & 1
        if wn == 0:
            cols = [32 * c for c in range(6)]; nmain = 6; halo = []
        elif wm2 == 0:
            cols = [192 + 32 * c for c in range(5)]; nmain = 5; halo = [0, 1, 2, 3]
        else:
            cols = [192 + 32 * c for c in range(5)] + [96, 128, 160]; nmain = 5; halo = [4, 5, 6, 7]
        def freads(cn, f):
            s = cn >> 1; sub = cn & 1; slot = s % 4; st_ = slot >> 1; so = (slot & 1) * STG; b = F[f]; r = []
            for rb in range(4): r.append(f"ds_read_b128 {vr(b+4*rb,4)}, v{24+2*st_+sub} offset:{so+(16+64*wm2+16*rb)*128}")
            for c, cb in enumerate(cols):
                for h in range(2): r.append(f"ds_read_b64_tr_b16 {vr(b+20+4*c+2*h,2)}, v{28+st_} offset:{so+sub*WH+h*16*WSr+cb}")
            if halo: r.append(f"ds_read_b128 {vr(b+16,4)}, v{24+2*st_+sub} offset:{so}")
            return r
        def mfmas(f, first):
            b = F[f]; r = []
            for c in range(nmain):
                for rb in range(4):
                    a = ACC + 4 * (c * 4 + rb)
                    r.append(f"v_mfma_f32_16x16x32_bf16 {vr(a,4)}, {vr(b+20+4*c,4)}, {vr(b+4*rb,4)}, {0 if first else vr(a,4)}")
            for i, c in enumerate(halo):
                a = ACC + 4 * (20 + i)
                r.append(f"v_mfma_f32_16x16x32_bf16 {vr(a,4)}, {vr(b+20+4*c,4)}, {vr(b+16,4)}, {0 if first else vr(a,4)}")
            return r
        e("s_barrier")
        if role == 0: ts(3)
        for x in freads(0, 0): e(x)
        e("s_waitcnt lgkmcnt(0)")
        tw = []
        k = 0
        for c in range(nmain):
            for rb in range(4):
                a = ACC + 4 * (c * 4 + rb); t = 32 + 2 * (k % 8); k += 1
                tw.append([f"v_cvt_pk_bf16_f32 v{t}, v{a}, v{a+1}", f"v_cvt_pk_bf16_f32 v{t+1}, v{a+2}, v{a+3}",
                           f"ds_write_b64 v30, {vr(t,2)} offset:{(16+64*wm2+16*rb)*TS+cols[c]}"])
        for i, c in enumerate(halo):
            a = ACC + 4 * (20 + i); t = 32 + 2 * (k % 8); k += 1
            tw.append([f"v_cvt_pk_bf16_f32 v{t}, v{a}, v{a+1}", f"v_cvt_pk_bf16_f32 v{t+1}, v{a+2}, v{a+3}",
                       f"ds_write_b64 v30, {vr(t,2)} offset:{cols[c]}"])
        DIST = 4
        for cn in range(2 * NST):
            nxt = freads(cn + 1, (cn + 1) & 1) if cn + 1 < 2 * NST else []
            for mi, ins in enumerate(mfmas(cn & 1, cn == 0)):
                e(ins)
                for _ in range(2 if mi < 5 else 1):
                    if nxt: e(nxt.pop(0))
                if cn == 2 * NST - 1 and mi >= DIST:
                    for x in tw.pop(0): e(x)
                if cn == 7 and mi == 20:
                    e("s_waitcnt vmcnt(0)")
                    for i in range(4): e(f"v_lshl_or_b32 v{232+i}, v{236+i}, 16, v{232+i}")
                    e("buffer_store_dwordx4 v[232:235], v240, s[20:23], s62 offen")
            assert not nxt
            if cn + 1 < 2 * NST: e("s_waitcnt lgkmcnt(0)")
            if cn % 2 == 0: e("s_barrier")
        if role == 0: ts(4)
        e("s_nop 7"); e("s_nop 3")
        for x in tw:
            for y in x: e(y)
        if role < 3: e("s_branch K1_EPI")
    lab("K1_EPI")
    e("s_waitcnt lgkmcnt(0)"); e("s_barrier")
    ts(5)
    if "noepi" in VAR: G.ts_flush(6); e("s_branch K1_END")
    e("s_cmp_eq_u32 s24, 0"); e("s_cbranch_scc0 K1_ATTB")
    ONEL, ONEH = 8, 9
    def phi(regs, T0):
        for i0 in range(0, len(regs), 4):
            grp = regs[i0:i0 + 4]
            assert len(grp) == 4
            for i, w in enumerate(grp): unpk_lo(T0 + 2 * i, w); unpk_hi(T0 + 2 * i + 1, w)
            for i, w in enumerate(grp): e(f"v_pk_mul_f32 {vr(T0+2*i,2)}, {vr(T0+2*i,2)}, s[68:69]")
            for i, w in enumerate(grp): e(f"v_pk_max_i16 v{w}, v{w}, 0")
            for i, w in enumerate(grp):
                e(f"v_exp_f32 v{T0+2*i}, v{T0+2*i} clamp"); e(f"v_exp_f32 v{T0+2*i+1}, v{T0+2*i+1} clamp")
            for i, w in enumerate(grp):
                e(f"v_dot2_f32_bf16 v{T0+2*i}, v{w}, v{ONEL}, v{T0+2*i}"); e(f"v_dot2_f32_bf16 v{T0+2*i+1}, v{w}, v{ONEH}, v{T0+2*i+1}")
            for i, w in enumerate(grp): e(f"v_pk_add_f32 {vr(T0+2*i,2)}, {vr(T0+2*i,2)}, s[72:73]")
            for i, w in enumerate(grp): cvt_pk(w, T0 + 2 * i, T0 + 2 * i + 1)
    e("s_cmp_lt_u32 s27, 4"); e("s_cbranch_scc1 K1_AKV")
    for it in range(4):
        for h in range(2): e(f"ds_read_b64 {vr(32+4*it+2*h,2)}, v2 offset:{it*32*TS+8*h}")
    for it in range(4):
        e(f"s_waitcnt lgkmcnt({6-2*it})")
        phi(list(range(32 + 4 * it, 36 + 4 * it)), 64 + 8 * (it & 1))
        e(f"v_cndmask_b32 v{34+4*it}, v{34+4*it}, 0, s[66:67]"); e(f"v_cndmask_b32 v{35+4*it}, v{35+4*it}, 0, s[66:67]")
        e(f"buffer_store_dwordx4 {vr(32+4*it,4)}, v6, s[20:23], {'s%d' % (74+it) if it else 0} offen")
    G.ts_end(6)
    e("s_branch K1_END")
    lab("K1_AKV")
    PK, VV, KA = 32, 48, 100
    for ks in range(4):
        for h in range(2): e(f"ds_read_b64_tr_b16 {vr(PK+4*ks+2*h,2)}, v2 offset:{(32*ks+16*h)*TS}")
    for ks in range(4):
        for nb in range(2):
            for h in range(2): e(f"ds_read_b64_tr_b16 {vr(VV+8*ks+4*nb+2*h,2)}, v3 offset:{(32*ks+16*h)*TS+32*nb}")
    for ks in range(4):
        e(f"s_waitcnt lgkmcnt({min(15, 22-2*ks) if ks < 3 else 0})")
        phi(list(range(PK + 4 * ks, PK + 4 * ks + 4)), 80 + 8 * (ks & 1))
        if ks == 3: e("s_nop 1")
        for kk in ([ks - 1] if ks in (1, 2) else ([2, 3] if ks == 3 else [])):
            if kk < 2: e(f"s_waitcnt lgkmcnt({12-4*kk})")
            c = (lambda a: "0" if kk == 0 else vr(a, 4))
            e(f"v_mfma_f32_16x16x32_bf16 {vr(KA,4)}, {vr(VV+8*kk,4)}, {vr(PK+4*kk,4)}, {c(KA)}")
            e(f"v_mfma_f32_16x16x32_bf16 {vr(KA+4,4)}, {vr(VV+8*kk+4,4)}, {vr(PK+4*kk,4)}, {c(KA+4)}")
            e(f"v_mfma_f32_16x16x32_bf16 {vr(KA+8,4)}, v[12:15], {vr(PK+4*kk,4)}, {c(KA+8)}")
    e("s_nop 7"); e("s_nop 5")
    for nb in range(2): e(f"buffer_store_dwordx4 {vr(KA+4*nb,4)}, v6, s[20:23], s70 offen offset:{64*nb}")
    e(f"buffer_store_dword v{KA+8}, v7, s[20:23], s71 offen")
    G.ts_end(6)
    e("s_branch K1_END")
    lab("K1_ATTB")
    R = [32, 72]
    for hh in range(2):
        b = R[hh]
        e(f"ds_read2_b64 {vr(b,4)}, v2 offset0:{7*hh} offset1:{7*hh+1}")
        e(f"ds_read2_b64 {vr(b+4,4)}, v3 offset0:{14+7*hh} offset1:{15+7*hh}")
        e(f"ds_read2_b64 {vr(b+8,4)}, v2 offset0:{14+7*hh} offset1:{15+7*hh}")
    for hh in range(2):
        b = R[hh]
        for db in range(2):
            for kb in range(2): e(f"ds_read_b64_tr_b16 {vr(b+12+4*db+2*kb,2)}, v4 offset:{224+56*hh+32*db+16*TS*kb}")
    for hh in range(2):
        b = R[hh]
        e(f"s_waitcnt lgkmcnt({11-3*hh})")
        e(f"v_cndmask_b32 v{b+2}, v{b+2}, 0, s[66:67]"); e(f"v_cndmask_b32 v{b+3}, v{b+3}, 0, s[66:67]"); e("s_nop 1")
        e(f"v_mfma_f32_16x16x32_bf16 {vr(b+20,4)}, {vr(b+4,4)}, {vr(b,4)}, {vr(CM,4)}")
        e(f"v_mfma_f32_16x16x32_bf16 {vr(b+24,4)}, {vr(b+8,4)}, {vr(b,4)}, {vr(CM+4,4)}")
    e("s_nop 7"); e("s_nop 1")
    def both(f):
        for hh in range(2): f(R[hh])
    for hh in range(2):
        b = R[hh]
        for i in range(4): e(f"v_cndmask_b32 v{b+28+i}, v{b+20+2*i}, v{b+21+2*i}, s[64:65]")
    both(lambda b: e(f"v_max3_f32 v{b+32}, v{b+28}, v{b+29}, v{b+30}"))
    both(lambda b: e(f"v_max_f32 v{b+32}, v{b+32}, v{b+31}"))
    for pl in ("v_permlane32_swap_b32", "v_permlane16_swap_b32"):
        both(lambda b: e(f"v_mov_b32 v{b+33}, v{b+32}")); e("s_nop 0")
        both(lambda b: e(f"{pl} v{b+32}, v{b+33}")); e("s_nop 0")
        both(lambda b: e(f"v_max_f32 v{b+32}, v{b+32}, v{b+33}"))
    both(lambda b: e(f"v_mul_f32 v{b+32}, s68, v{b+32}"))
    for u in range(2):
        both(lambda b: e(f"v_pk_fma_f32 {vr(b+28+2*u,2)}, {vr(b+28+2*u,2)}, s[68:69], {vr(b+32,2)} op_sel_hi:[1,1,0] neg_lo:[0,0,1] neg_hi:[0,0,1]"))
    for hh in range(2):
        b = R[hh]
        for i in range(4): e(f"v_exp_f32 v{b+28+i}, v{b+28+i}")
    for hh in range(2):
        b = R[hh]
        for i in range(4): cvt_pk(b + 28 + i, b + 28 + i, b + 28 + i)
        for i in range(4): e(f"v_and_b32 v{b+28+i}, v8, v{b+28+i}")
        e(f"s_waitcnt lgkmcnt({4 if hh == 0 else 0})"); e("s_nop 1")
        e(f"v_mfma_f32_16x16x32_bf16 {vr(b+36,4)}, v[12:15], {vr(b+28,4)}, 0")
        for db in range(2):
            e(f"v_mfma_f32_16x16x32_bf16 {vr(b+20+4*db,4)}, {vr(b+12+4*db,4)}, {vr(b+28,4)}, 0")
    e("s_nop 3")
    e(f"v_rcp_f32 v{R[0]+36}, v{R[0]+36}")
    e("s_nop 7")
    e(f"v_rcp_f32 v{R[1]+36}, v{R[1]+36}")
    for hh in range(2):
        b = R[hh]
        if hh: e("s_nop 1")
        for i in range(4): e(f"v_pk_mul_f32 {vr(b+20+2*i,2)}, {vr(b+20+2*i,2)}, {vr(b+36,2)} op_sel_hi:[1,0]")
        for db in range(2):
            cvt_pk(b + 2 * db, b + 20 + 4 * db, b + 21 + 4 * db); cvt_pk(b + 2 * db + 1, b + 22 + 4 * db, b + 23 + 4 * db)
            e(f"buffer_store_dwordx2 {vr(b+2*db,2)}, v{6+db}, s[20:23], s70 offen offset:{56*hh+32*db}")
    G.ts_end(6)
    lab("K1_END")
    e("s_endpgm")
```

```python
import sys, os
VAR = os.environ.get("VAR", "")
NAME = "concat_heads__linear_attn_block__sliding_local_dilated__prompt"
OUT = os.environ.get("OUT", f"cdna_kernels/{NAME}.s")

L = []
def e(s=""):
    L.append("    " + s if s and not s.endswith(":") else s)
def lab(s): L.append(s + ":")

WS_PQA = 0
WS_OB = 0x200000
WS_KVP = 0x400000
WS_ZP = 0x500000
WS_WOT = 0x600000
WS_MT = 0x700000
WS_ZC = 0x780000
WS_END = 0x1000000 if "ts" in VAR.split("_") else 0x800000

def vr(a, n=1): return f"v{a}" if n == 1 else f"v[{a}:{a+n-1}]"
def ar(a, n=1): return f"a{a}" if n == 1 else f"a[{a}:{a+n-1}]"

def srd(dst, ptr_lo, nbytes):
    e(f"s_mov_b32 s{dst}, s{ptr_lo}")
    e(f"s_and_b32 s{dst+1}, s{ptr_lo+1}, 0xffff")
    e(f"s_mov_b32 s{dst+2}, {nbytes}")
    e(f"s_mov_b32 s{dst+3}, 0x00020000")

def kernel_header(name):
    L.append(".p2align 8"); L.append(f".globl {name}"); L.append(f".type {name},@function"); lab(name)

def kd(name, nvgpr, accum, nsgpr=100):
    return f""".p2align 6
.amdhsa_kernel {name}
  .amdhsa_next_free_vgpr {nvgpr}
  .amdhsa_next_free_sgpr {nsgpr}
  .amdhsa_accum_offset {accum}
  .amdhsa_group_segment_fixed_size 0
  .amdhsa_kernarg_size 72
  .amdhsa_user_sgpr_count 2
  .amdhsa_user_sgpr_kernarg_segment_ptr 1
  .amdhsa_system_sgpr_workgroup_id_x 1
.end_amdhsa_kernel"""

def cvt_pk(dst, a, b): e(f"v_cvt_pk_bf16_f32 v{dst}, v{a}, v{b}")
def unpk_lo(dst, src): e(f"v_lshlrev_b32 v{dst}, 16, v{src}")
def unpk_hi(dst, src): e(f"v_and_b32 v{dst}, 0xffff0000, v{src}")

K1 = NAME + "_k1_kernel"; K2 = NAME + "_k2_kernel"; K3 = NAME + "_k3_kernel"
OOB = "0x7fff0000"
XREG = 144 * 64
WSr = 352
SLOT = XREG + 32 * WSr + 1024
NSLOT = 7
K1_LDS = NSLOT * SLOT
TS = 352
NCH = 14


sys.path.insert(0, "gen")
import k1new
def ts(n):
    if "ts" not in VAR.split("_"): return
    e("s_memtime s[98:99]"); e("s_waitcnt lgkmcnt(0)"); e(f"v_writelane_b32 v255, s98, {n}")
    if n == 0:
        e("s_memrealtime s[98:99]"); e("s_waitcnt lgkmcnt(0)"); e(f"v_writelane_b32 v255, s98, 62")
def ts_flush(n):
    if "ts" not in VAR.split("_"): return
    e("v_and_b32 v254, 63, v0"); e("v_lshlrev_b32 v254, 2, v254"); e("s_lshl_b32 s98, s2, 11"); e("s_lshl_b32 s99, s27, 8"); e("s_add_u32 s98, s98, s99"); e("s_add_u32 s98, s98, 0x800000")
    e("buffer_store_dword v255, v254, s[20:23], s98 offen")
def ts_end(n):
    if "ts" not in VAR.split("_"): return
    ts(n); e("s_waitcnt vmcnt(0)"); ts(n + 1)
    e("s_memrealtime s[98:99]"); e("s_waitcnt lgkmcnt(0)"); e(f"v_writelane_b32 v255, s98, 63")
    ts_flush(n + 2)
def gen_k1():
    k1new.gen_k1(sys.modules[__name__])

def outproj(P_, isA):
    rowbytes = 1024 if isA else 896
    e("s_mul_hi_u32 s24, s2, 0x24924925"); e("s_mul_i32 s25, s24, 7"); e("s_sub_u32 s25, s2, s25")
    e("s_lshr_b32 s30, s27, 1"); e("s_and_b32 s31, s27, 1")
    e("s_lshl_b32 s28, s24, 6"); e("s_lshl_b32 s26, s25, 6")
    e(f"s_movk_i32 s29, {rowbytes}")
    e("s_lshl_b32 s32, s27, 3"); e("s_add_u32 s33, s32, s28"); e("s_add_u32 s32, s32, s26")
    e("s_and_b32 s35, s27, 1"); e("s_lshl_b32 s35, s35, 3")
    for ii in range(2):
        e(f"v_add_u32 v22, {4*ii}, v17"); e("v_add_u32 v23, s35, v22"); e("v_xor_b32 v23, v23, v16")
        e("v_add_u32 v24, s33, v22"); e(f"v_mul_lo_u32 v{2+ii}, v24, s29"); e(f"v_lshl_add_u32 v{2+ii}, v23, 4, v{2+ii}")
        e("v_add_u32 v24, s32, v22"); e(f"v_mul_lo_u32 v{6+ii}, v24, s29"); e(f"v_lshl_add_u32 v{6+ii}, v23, 4, v{6+ii}")
        if not isA:
            e("v_cmp_lt_u32 vcc, 7, v23"); e(f"v_mov_b32 v24, {OOB}"); e("s_nop 0")
            e(f"v_cndmask_b32 v{10+ii}, v{2+ii}, v24, vcc"); e(f"v_cndmask_b32 v{18+ii}, v{6+ii}, v24, vcc")
    e("s_lshl_b32 s34, s27, 11")
    e("s_waitcnt lgkmcnt(0)")
    srd(16, 6, 2048 * 1792); srd(20, 8, WS_END)
    sa, sb = (WS_PQA, WS_MT) if isA else (WS_OB, WS_WOT + 0x80000)
    Z, ZF, DEN, RD, PP, ACC = 80, 84, 100, 104, 108, 140
    if isA:
        e("v_lshlrev_b32 v22, 6, v16"); e("v_lshl_add_u32 v22, v17, 4, v22"); e(f"s_mov_b32 s38, {WS_ZC}")
        e(f"buffer_load_dwordx4 {vr(Z,4)}, v22, s[20:23], s38 offen")
    for q in range(4):
        e(f"s_mov_b32 s36, {sa+256*q}"); e(f"s_mov_b32 s37, {sb+256*q}")
        for ii in range(2):
            va = (2 if (isA or q < 3) else 10) + ii; vb = (6 if (isA or q < 3) else 18) + ii
            e(f"s_add_u32 m0, s34, {q*16384+ii*1024}"); e("s_nop 0"); e(f"buffer_load_dwordx4 v{va}, s[20:23], s36 offen lds")
            e(f"s_add_u32 m0, s34, {65536+q*16384+ii*1024}"); e("s_nop 0"); e(f"buffer_load_dwordx4 v{vb}, s[20:23], s37 offen lds")
    e("v_lshrrev_b32 v22, 2, v16"); e("v_and_b32 v23, 3, v16"); e("v_xor_b32 v23, v23, v17")
    e("v_lshlrev_b32 v1, 8, v16"); e("v_lshl_add_u32 v1, v23, 4, v1")
    e("s_lshl_b32 s35, s30, 12"); e("s_lshl_b32 s39, s31, 13"); e("s_add_u32 s39, s39, 65536")
    for jl in range(4):
        e(f"v_xor_b32 v23, {jl}, v22"); e("v_lshl_add_u32 v23, v23, 6, v1")
        e(f"v_add_u32 v{24+jl}, s35, v23"); e(f"v_add_u32 v{28+jl}, s39, v23")
    if isA:
        e("v_mov_b32 v15, 0"); e("s_mov_b32 s34, 0x358637bd")
    FA, FB = 32, 48
    for q in range(4):
        nst = 4 if (isA or q < 3) else 2
        e(f"s_waitcnt vmcnt({4*(3-q)})"); e("s_barrier")
        if "opdma" in VAR: continue
        for jl in range(nst): e(f"ds_read_b128 {vr(FA+4*jl,4)}, v{24+jl} offset:{q*16384}")
        for jl in range(nst):
            for cb in range(2): e(f"ds_read_b128 {vr(FB+16*cb+4*jl,4)}, v{28+jl} offset:{q*16384+cb*4096}")
        if isA:
            e(f"v_lshlrev_b32 v14, 2, v16"); e(f"v_add_u32 v14, {64*q}, v14")
            for jl in range(4):
                j = 4 * q + jl
                e(f"v_cmp_eq_u32 vcc, {j}, v16"); e("s_nop 1")
                for i in range(4): e(f"v_cndmask_b32 v{ZF+4*jl+i}, v15, v{Z+i}, vcc")
            for jl in range(4):
                e(f"s_waitcnt lgkmcnt({8+(3-jl)})")
                e(f"v_mfma_f32_16x16x32_bf16 {vr(DEN,4)}, {vr(ZF+4*jl,4)}, {vr(FA+4*jl,4)}, {vr(DEN,4) if (q or jl) else 0}")
            for jl in range(4):
                e(f"s_waitcnt lgkmcnt({2*(3-jl)})")
                for cb in range(2):
                    e(f"v_mfma_f32_16x16x32_bf16 {vr(PP+8*jl+4*cb,4)}, {vr(FB+16*cb+4*jl,4)}, {vr(FA+4*jl,4)}, 0")
            T = 10; d = DEN; t = 2
            cvt_pk(T, d, d + 1); cvt_pk(T + 1, d + 2, d + 3)
            unpk_lo(t, T); unpk_hi(t + 1, T); unpk_lo(t + 2, T + 1); unpk_hi(t + 3, T + 1)
            for i in range(4): e(f"v_add_f32 v{t+i}, s34, v{t+i}")
            cvt_pk(T, t, t + 1); cvt_pk(T + 1, t + 2, t + 3)
            unpk_lo(t, T); unpk_hi(t + 1, T); unpk_lo(t + 2, T + 1); unpk_hi(t + 3, T + 1)
            for i in range(4): e(f"v_rcp_f32 v{t+i}, v{t+i}")
            e("s_nop 0")
            for i in range(4): e(f"ds_bpermute_b32 v{RD+i}, v14, v{2+i}")
            e("s_nop 4")
            e("s_waitcnt lgkmcnt(0)")
            for jl in range(4):
                for k in range(8):
                    a = ACC + k
                    if q == 0 and jl == 0: e(f"v_mul_f32 v{a}, v{PP+8*jl+k}, v{RD+jl}")
                    else: e(f"v_fmac_f32 v{a}, v{PP+8*jl+k}, v{RD+jl}")
        else:
            for jl in range(nst):
                e(f"s_waitcnt lgkmcnt({2*(nst-1-jl)})")
                for cb in range(2):
                    a = ACC + 4 * cb
                    e(f"v_mfma_f32_16x16x32_bf16 {vr(a,4)}, {vr(FB+16*cb+4*jl,4)}, {vr(FA+4*jl,4)}, {vr(a,4) if (q or jl) else 0}")
    if not isA: e("s_nop 7"); e("s_nop 7")
    e("s_lshl_b32 s29, s30, 4"); e("s_add_u32 s28, s28, s29"); e("s_lshl_b32 s29, s31, 5"); e("s_add_u32 s26, s26, s29")
    e("v_add_u32 v6, s28, v16"); e("s_movk_i32 s29, 1792"); e("v_mul_lo_u32 v6, v6, s29"); e("v_lshl_add_u32 v6, v17, 3, v6")
    e("s_lshl_b32 s29, s26, 1"); e(f"s_add_u32 s29, s29, {0 if isA else 896}"); e("v_add_u32 v6, s29, v6")
    for cb in range(2):
        a = ACC + 4 * cb; t = 32 + 2 * cb
        cvt_pk(t, a, a + 1); cvt_pk(t + 1, a + 2, a + 3)
        e(f"buffer_store_dwordx2 {vr(t,2)}, v6, s[16:19], 0 offen offset:{32*cb}")

def gen_k2():
    kernel_header(K2)
    e("s_cmp_ge_u32 s2, 256"); e("s_cbranch_scc1 K2_END")
    e("s_load_dwordx2 s[6:7], s[0:1], 48"); e("s_load_dwordx2 s[8:9], s[0:1], 64")
    e("v_lshrrev_b32 v1, 6, v0"); e("s_nop 0"); e("v_readfirstlane_b32 s27, v1")
    e("v_and_b32 v16, 15, v0"); e("v_bfe_u32 v17, v0, 4, 2")
    e("s_cmp_lt_u32 s2, 224"); e("s_cbranch_scc1 K2_GEMM")
    if "k2noa" in VAR: e("s_branch K2_END")
    e("s_cmp_lt_u32 s27, 4"); e("s_cbranch_scc1 K2_AW"); e("s_barrier"); e("s_branch K2_END"); lab("K2_AW")
    e("s_sub_u32 s3, s2, 224"); e("s_lshr_b32 s24, s3, 1"); e("s_and_b32 s25, s3, 1")
    e("v_lshlrev_b32 v2, 4, v0"); e("s_lshl_b32 s26, s24, 12"); e("v_add_u32 v2, s26, v2")
    e("v_lshlrev_b32 v3, 2, v0"); e("s_lshl_b32 s26, s24, 7"); e("v_add_u32 v3, s26, v3")
    e("v_cmp_gt_u32 vcc, 32, v0"); e(f"v_mov_b32 v4, {OOB}"); e("s_nop 1"); e("v_cndmask_b32 v3, v4, v3, vcc")
    e("s_mul_i32 s26, s25, 14"); e("s_add_u32 s26, s26, s27"); e("s_lshl_b32 s26, s26, 4")
    e("v_add_u32 v5, s26, v16"); e("s_movk_i32 s29, 896"); e("v_mul_lo_u32 v6, v5, s29"); e("v_lshl_add_u32 v6, v17, 4, v6")
    e("s_mul_i32 s29, s24, 56"); e("v_add_u32 v6, s29, v6")
    e("v_lshlrev_b32 v7, 10, v5"); e("v_lshl_add_u32 v7, v17, 3, v7"); e("s_lshl_b32 s29, s24, 6"); e("v_add_u32 v7, s29, v7")
    e("s_waitcnt lgkmcnt(0)")
    srd(16, 6, 2048 * 1792); srd(20, 8, WS_END)
    e(f"s_mov_b32 s35, {WS_KVP}"); e(f"s_mov_b32 s36, {WS_ZP}"); e(f"s_mov_b32 s37, {WS_WOT}")
    for rt in range(16):
        e(f"v_add_u32 v8, {65536*rt}, v2"); e(f"buffer_load_dwordx4 {vr(32+4*rt,4)}, v8, s[20:23], s35 offen")
    for i in range(4):
        e(f"v_add_u32 v8, {64*896*i}, v6")
        if i == 3:
            e("s_cmp_lt_u32 s27, 2"); e("s_cbranch_scc1 K2_I3"); e(f"v_mov_b32 v8, {OOB}"); lab("K2_I3")
        e(f"buffer_load_dwordx4 {vr(112+4*i,4)}, v8, s[20:23], s37 offen")
    for rt in range(16):
        e(f"v_add_u32 v8, {2048*rt}, v3"); e(f"buffer_load_dword v{96+rt}, v8, s[20:23], s36 offen")
    for rt in range(1, 16):
        e(f"s_waitcnt vmcnt({20+15-rt})")
        for i in range(4): e(f"v_add_f32 v{32+i}, v{32+i}, v{32+4*rt+i}")
    e("v_and_b32 v8, 7, v0"); e("v_cmp_eq_u32 s[40:41], 7, v8"); e("v_cmp_lt_u32 vcc, 223, v0"); e("s_or_b64 vcc, vcc, s[40:41]")
    e("v_mov_b32 v9, 0"); cvt_pk(36, 32, 33); cvt_pk(37, 34, 35)
    e("v_cndmask_b32 v36, v36, v9, vcc"); e("v_cndmask_b32 v37, v37, v9, vcc")
    e("v_lshrrev_b32 v10, 3, v0"); e("v_mul_u32_u24 v10, 80, v10"); e("v_lshl_add_u32 v10, v8, 3, v10")
    e("ds_write_b64 v10, v[36:37]")
    e("v_mul_u32_u24 v11, 80, v16"); e("v_lshl_add_u32 v11, v17, 4, v11")
    e("s_waitcnt lgkmcnt(0)"); e("s_barrier")
    e("ds_read_b128 v[40:43], v11"); e(f"ds_read_b128 v[44:47], v11 offset:{16*80}")
    e("v_cmp_eq_u32 vcc, 3, v17")
    e("s_waitcnt lgkmcnt(0) vmcnt(16)")
    for i in range(4):
        e(f"v_cndmask_b32 v{114+4*i}, v{114+4*i}, v9, vcc"); e(f"v_cndmask_b32 v{115+4*i}, v{115+4*i}, v9, vcc")
    e("s_nop 1")
    for i in range(4):
        for db in range(2):
            e(f"v_mfma_f32_16x16x32_bf16 {vr(48+8*i+4*db,4)}, {vr(40+4*db,4)}, {vr(112+4*i,4)}, 0")
    e("s_waitcnt vmcnt(0)")
    for rt in range(1, 16): e(f"v_add_f32 v96, v96, v{96+rt}")
    e("v_cmp_lt_u32 vcc, 27, v0"); e("s_nop 1"); e("v_cndmask_b32 v96, v96, v9, vcc"); e("s_nop 0"); cvt_pk(96, 96, 96)
    e("v_lshlrev_b32 v12, 1, v0"); e("s_lshl_b32 s29, s24, 6"); e("v_add_u32 v12, s29, v12")
    e("v_cmp_gt_u32 vcc, 32, v0"); e("s_cmp_eq_u32 s25, 0"); e("s_cselect_b64 s[40:41], -1, 0"); e("s_and_b64 vcc, vcc, s[40:41]")
    e(f"v_cndmask_b32 v12, v4, v12, vcc"); e(f"s_mov_b32 s38, {WS_ZC}")
    e("buffer_store_short v96, v12, s[20:23], s38 offen")
    e(f"s_mov_b32 s38, {WS_MT}")
    for i in range(4):
        e(f"v_add_u32 v8, {64*1024*i}, v7")
        if i == 3:
            e("s_cmp_lt_u32 s27, 2"); e("s_cbranch_scc1 K2_I3S"); e(f"v_mov_b32 v8, {OOB}"); lab("K2_I3S")
        for db in range(2):
            a = 48 + 8 * i + 4 * db
            cvt_pk(80 + 2 * db, a, a + 1); cvt_pk(81 + 2 * db, a + 2, a + 3)
            e(f"buffer_store_dwordx2 {vr(80+2*db,2)}, v8, s[20:23], s38 offen offset:{32*db}")
    e("s_branch K2_END")
    lab("K2_GEMM")
    if "k2nob" in VAR: e("s_branch K2_END")
    outproj("K2", False)
    lab("K2_END")
    e("s_endpgm")

def gen_k3():
    kernel_header(K3)
    e("s_cmp_ge_u32 s2, 224"); e("s_cbranch_scc1 K3_END")
    e("s_load_dwordx2 s[6:7], s[0:1], 48"); e("s_load_dwordx2 s[8:9], s[0:1], 64")
    e("v_lshrrev_b32 v1, 6, v0"); e("s_nop 0"); e("v_readfirstlane_b32 s27, v1")
    e("v_and_b32 v16, 15, v0"); e("v_bfe_u32 v17, v0, 4, 2")
    outproj("K3", True)
    lab("K3_END")
    e("s_endpgm")

def main():
    hdr = open(f"cdna_kernels/{NAME}.s.ref").read().split("\n")
    top = [l for l in hdr if l.startswith(";") and "@launch" not in l]
    top.append(f"; @launch kernel={K1} grid=(256,1,1) block=(512,1,1) lds={k1new.K1_LDS}")
    top.append(f"; @launch kernel={K2} grid=(256,1,1) block=(512,1,1) lds=131072")
    top.append(f"; @launch kernel={K3} grid=(224,1,1) block=(512,1,1) lds=131072")
    L.extend(top)
    L.append('.amdgcn_target "amdgcn-amd-amdhsa--gfx950"'); L.append(".text")
    gen_k1(); gen_k2(); gen_k3()
    L.append('.section .rodata,"a"')
    L.append(kd(K1, 256, 256)); L.append(kd(K2, 148, 148)); L.append(kd(K3, 148, 148))
    open(OUT, "w").write("\n".join(L) + "\n")
main()
```

```python
import sys, os
VAR = os.environ.get("VAR", "")
NAME = "concat_heads__linear_attn_block__sliding_local_dilated__prompt"
OUT = os.environ.get("OUT", f"cdna_kernels/{NAME}.s")

L = []
def e(s=""):
    L.append("    " + s if s and not s.endswith(":") else s)
def lab(s): L.append(s + ":")

WS_PQA = 0
WS_OB = 0x200000
WS_KVP = 0x400000
WS_ZP = 0x500000
WS_WOT = 0x600000
WS_MT = 0x700000
WS_ZC = 0x780000
WS_END = 0x1000000 if "ts" in VAR.split("_") else 0x800000

def vr(a, n=1): return f"v{a}" if n == 1 else f"v[{a}:{a+n-1}]"
def ar(a, n=1): return f"a{a}" if n == 1 else f"a[{a}:{a+n-1}]"

def srd(dst, ptr_lo, nbytes):
    e(f"s_mov_b32 s{dst}, s{ptr_lo}")
    e(f"s_and_b32 s{dst+1}, s{ptr_lo+1}, 0xffff")
    e(f"s_mov_b32 s{dst+2}, {nbytes}")
    e(f"s_mov_b32 s{dst+3}, 0x00020000")

def kernel_header(name):
    L.append(".p2align 8"); L.append(f".globl {name}"); L.append(f".type {name},@function"); lab(name)

def kd(name, nvgpr, accum, nsgpr=100):
    return f""".p2align 6
.amdhsa_kernel {name}
  .amdhsa_next_free_vgpr {nvgpr}
  .amdhsa_next_free_sgpr {nsgpr}
  .amdhsa_accum_offset {accum}
  .amdhsa_group_segment_fixed_size 0
  .amdhsa_kernarg_size 72
  .amdhsa_user_sgpr_count 2
  .amdhsa_user_sgpr_kernarg_segment_ptr 1
  .amdhsa_system_sgpr_workgroup_id_x 1
.end_amdhsa_kernel"""

def cvt_pk(dst, a, b): e(f"v_cvt_pk_bf16_f32 v{dst}, v{a}, v{b}")
def unpk_lo(dst, src): e(f"v_lshlrev_b32 v{dst}, 16, v{src}")
def unpk_hi(dst, src): e(f"v_and_b32 v{dst}, 0xffff0000, v{src}")

K1 = NAME + "_k1_kernel"; K2 = NAME + "_k2_kernel"; K3 = NAME + "_k3_kernel"
OOB = "0x7fff0000"
XREG = 144 * 64
WSr = 352
SLOT = XREG + 32 * WSr + 1024
NSLOT = 7
K1_LDS = NSLOT * SLOT
TS = 352
NCH = 14


sys.path.insert(0, "gen")
import k1new
def ts(n):
    if "ts" not in VAR.split("_"): return
    e("s_memtime s[98:99]"); e("s_waitcnt lgkmcnt(0)"); e(f"v_writelane_b32 v255, s98, {n}")
    if n == 0:
        e("s_memrealtime s[98:99]"); e("s_waitcnt lgkmcnt(0)"); e(f"v_writelane_b32 v255, s98, 62")
def ts_flush(n):
    if "ts" not in VAR.split("_"): return
    e("v_and_b32 v254, 63, v0"); e("v_lshlrev_b32 v254, 2, v254"); e("s_lshl_b32 s98, s2, 11"); e("s_lshl_b32 s99, s27, 8"); e("s_add_u32 s98, s98, s99"); e("s_add_u32 s98, s98, 0x800000")
    e("buffer_store_dword v255, v254, s[20:23], s98 offen")
def ts_end(n):
    if "ts" not in VAR.split("_"): return
    ts(n); e("s_waitcnt vmcnt(0)"); ts(n + 1)
    e("s_memrealtime s[98:99]"); e("s_waitcnt lgkmcnt(0)"); e(f"v_writelane_b32 v255, s98, 63")
    ts_flush(n + 2)
TSON = "ts" in VAR.split("_")
def ts2(n):
    if not TSON: return
    e("s_memtime s[98:99]"); e("s_waitcnt lgkmcnt(0)"); e(f"v_writelane_b32 v159, s98, {n}")
    if n == 0:
        e("s_memrealtime s[98:99]"); e("s_waitcnt lgkmcnt(0)"); e(f"v_writelane_b32 v159, s98, 62")
def ts2_end(n, area):
    if not TSON: return
    ts2(n); e("s_waitcnt vmcnt(0)"); ts2(n + 1)
    e("s_memrealtime s[98:99]"); e("s_waitcnt lgkmcnt(0)"); e(f"v_writelane_b32 v159, s98, 63")
    e("v_and_b32 v158, 63, v0"); e("v_lshlrev_b32 v158, 2, v158"); e("s_lshl_b32 s98, s2, 11"); e("s_lshl_b32 s99, s27, 8"); e("s_add_u32 s98, s98, s99"); e(f"s_add_u32 s98, s98, {area}")
    e("buffer_store_dword v159, v158, s[20:23], s98 offen")
def gen_k1():
    k1new.gen_k1(sys.modules[__name__])

def outproj(P_, isA):
    rowbytes = 1024 if isA else 896
    if "noxcd" in VAR:
        e("s_mul_hi_u32 s24, s2, 0x24924925"); e("s_mul_i32 s25, s24, 7"); e("s_sub_u32 s25, s2, s25")
    else:
        e("s_lshr_b32 s26, s2, 3"); e("s_mul_hi_u32 s24, s26, 0x24924925"); e("s_mul_i32 s25, s24, 7"); e("s_sub_u32 s25, s26, s25")
        e("s_and_b32 s26, s2, 7"); e("s_lshl_b32 s26, s26, 2"); e("s_add_u32 s24, s24, s26")
    e("s_lshr_b32 s30, s27, 1"); e("s_and_b32 s31, s27, 1")
    e("s_lshl_b32 s28, s24, 6"); e("s_lshl_b32 s26, s25, 6")
    e(f"s_movk_i32 s29, {rowbytes}")
    e("s_lshl_b32 s32, s27, 3"); e("s_add_u32 s33, s32, s28"); e("s_add_u32 s32, s32, s26")
    e("s_and_b32 s35, s27, 1"); e("s_lshl_b32 s35, s35, 3")
    e("s_and_b32 s36, s27, 3"); e("s_lshl_b32 s36, s36, 2"); e("v_add_u32 v21, s36, v17"); e("v_xor_b32 v21, v21, v16")
    if not isA: e("v_cmp_lt_u32 s[42:43], 7, v21"); e(f"v_mov_b32 v25, {OOB}")
    for ii in range(2):
        e(f"v_add_u32 v22, {4*ii}, v17"); e("v_add_u32 v23, s35, v22"); e("v_xor_b32 v23, v23, v16")
        e("v_add_u32 v24, s33, v22"); e(f"v_mul_lo_u32 v{2+ii}, v24, s29"); e(f"v_lshl_add_u32 v{2+ii}, v23, 4, v{2+ii}")
        e("v_add_u32 v24, s32, v22"); e(f"v_mul_lo_u32 v{6+ii}, v24, s29"); e(f"v_lshl_add_u32 v{6+ii}, v21, 4, v{6+ii}")
        if not isA:
            e("v_cmp_lt_u32 vcc, 7, v23"); e(f"v_cndmask_b32 v{18+ii}, v{6+ii}, v25, s[42:43]"); e("s_nop 0")
            e(f"v_cndmask_b32 v{10+ii}, v{2+ii}, v25, vcc")
    e("s_lshl_b32 s34, s27, 11")
    if isA: e("v_and_b32 v22, 63, v0"); e("v_lshlrev_b32 v22, 4, v22")
    e("s_waitcnt lgkmcnt(0)")
    srd(20, 8, WS_END)
    sa, sb = (WS_PQA, WS_MT) if isA else (WS_OB, WS_WOT + 0x80000)
    ts2(1)
    if isA:
        e("s_cmp_eq_u32 s27, 0"); e(f"s_cbranch_scc0 {P_}_NZ")
        e(f"s_mov_b32 s38, {WS_ZC}"); e("s_mov_b32 m0, 131072"); e("s_nop 0")
        e("buffer_load_dwordx4 v22, s[20:23], s38 offen lds")
        lab(f"{P_}_NZ")
    def setup():
        srd(16, 6, 2048 * 1792)
        e("v_lshrrev_b32 v22, 2, v16"); e("v_and_b32 v23, 3, v16"); e("v_xor_b32 v23, v23, v17")
        e("v_lshlrev_b32 v1, 8, v16"); e("v_lshl_add_u32 v1, v23, 4, v1")
        e("s_lshl_b32 s35, s30, 12"); e("s_lshl_b32 s39, s31, 13"); e("s_add_u32 s39, s39, 65536")
        for jl in range(4):
            e(f"v_xor_b32 v23, {jl}, v22"); e("v_lshl_add_u32 v23, v23, 6, v1"); e(f"v_add_u32 v{24+jl}, s35, v23")
        e("v_and_b32 v23, 3, v16"); e("v_lshl_add_u32 v1, v22, 3, v23")
        e("v_xor_b32 v23, v23, v17"); e("v_lshlrev_b32 v23, 4, v23")
        e("v_lshl_add_u32 v20, v1, 8, v23"); e("v_add_u32 v20, s39, v20")
        for jl in range(4):
            e(f"v_xor_b32 v21, {jl}, v22"); e(f"v_lshl_add_u32 v{28+jl}, v21, 6, v20")
        if isA:
            e("v_lshlrev_b32 v4, 4, v17"); e("v_add_u32 v4, 131072, v4"); e("s_mov_b32 s40, 0x358637bd")
        e("s_lshl_b32 s29, s30, 4"); e("s_add_u32 s28, s28, s29"); e("s_lshl_b32 s29, s31, 5"); e("s_add_u32 s26, s26, s29")
        e("v_add_u32 v5, s28, v16"); e("s_movk_i32 s29, 1792"); e("v_mul_lo_u32 v5, v5, s29"); e("v_lshl_add_u32 v5, v17, 4, v5")
        e("s_lshl_b32 s29, s26, 1"); e(f"s_add_u32 s29, s29, {0 if isA else 896}"); e("v_add_u32 v5, s29, v5")
    def issue(q):
        e(f"s_mov_b32 s36, {sa+256*q}"); e(f"s_mov_b32 s37, {sb+256*q}")
        for ii in range(2):
            va = (2 if (isA or q < 3) else 10) + ii; vb = (6 if (isA or q < 3) else 18) + ii
            e(f"s_add_u32 m0, s34, {q*16384+ii*1024}"); e("s_nop 0"); e(f"buffer_load_dwordx4 v{va}, s[20:23], s36 offen lds")
            e(f"s_add_u32 m0, s34, {65536+q*16384+ii*1024}"); e("s_nop 0"); e(f"buffer_load_dwordx4 v{vb}, s[20:23], s37 offen lds")
    PRE = 3 if "pre3" in VAR else 2
    for q in range(PRE): issue(q)
    setup()
    FA, FB, FZ, DEN, PP, ACC = 32, 48, 80, 96, 112, 144
    for q in range(4):
        nst = 4 if (isA or q < 3) else 2
        e(f"s_waitcnt vmcnt({4*(min(q+PRE,4)-1-q)})"); e("s_barrier")
        ts2(2 + q)
        for jl in range(nst):
            e(f"ds_read_b128 {vr(FA+4*jl,4)}, v{24+jl} offset:{q*16384}")
            if isA: e(f"ds_read_b128 {vr(FZ+4*jl,4)}, v4 offset:{(4*q+jl)*64}")
            for cb in range(2): e(f"ds_read_b128 {vr(FB+16*cb+4*jl,4)}, v{28+jl} offset:{q*16384+1024*cb}")
        if q + PRE < 4: issue(q + PRE)
        if isA:
            for jl in range(4):
                e(f"s_waitcnt lgkmcnt({4*(3-jl)+2})")
                e(f"v_mfma_f32_16x16x32_bf16 {vr(DEN+4*jl,4)}, {vr(FZ+4*jl,4)}, {vr(FA+4*jl,4)}, 0")
                e(f"s_waitcnt lgkmcnt({4*(3-jl)})")
                for cb in range(2):
                    e(f"v_mfma_f32_16x16x32_bf16 {vr(PP+8*jl+4*cb,4)}, {vr(FB+16*cb+4*jl,4)}, {vr(FA+4*jl,4)}, 0")
                if jl >= 2:
                    d = DEN + 4 * (jl - 2)
                    e(f"v_add_f32 v{d}, s40, v{d}"); e(f"v_rcp_f32 v{d}, v{d}")
            e("s_nop 5")
            def fm(jl):
                d = DEN + 4 * jl
                for k in range(4):
                    a = ACC + 2 * k; pp = PP + 8 * jl + 2 * k
                    if q == 0 and jl == 0: e(f"v_pk_mul_f32 {vr(a,2)}, {vr(pp,2)}, {vr(d,2)} op_sel_hi:[1,0]")
                    else: e(f"v_pk_fma_f32 {vr(a,2)}, {vr(pp,2)}, {vr(d,2)}, {vr(a,2)} op_sel_hi:[1,0,1]")
            d = DEN + 8
            e(f"v_add_f32 v{d}, s40, v{d}"); e(f"v_rcp_f32 v{d}, v{d}")
            fm(0)
            d = DEN + 12
            e(f"v_add_f32 v{d}, s40, v{d}"); e(f"v_rcp_f32 v{d}, v{d}")
            fm(1); fm(2); fm(3)
        else:
            for jl in range(nst):
                e(f"s_waitcnt lgkmcnt({3*(nst-1-jl)})")
                for cb in range(2):
                    a = ACC + 4 * cb
                    e(f"v_mfma_f32_16x16x32_bf16 {vr(a,4)}, {vr(FB+16*cb+4*jl,4)}, {vr(FA+4*jl,4)}, {vr(a,4) if (q or jl) else 0}")
    if not isA: e("s_nop 7"); e("s_nop 7")
    for k in range(4): cvt_pk(32 + k, ACC + 2 * k, ACC + 2 * k + 1)
    e("buffer_store_dwordx4 v[32:35], v5, s[16:19], 0 offen")
    ts2_end(6, 0xa00000 if isA else 0x900000)

def gen_k2():
    kernel_header(K2)
    e("s_cmp_ge_u32 s2, 256"); e("s_cbranch_scc1 K2_END")
    ts2(0)
    e("s_load_dwordx2 s[6:7], s[0:1], 48"); e("s_load_dwordx2 s[8:9], s[0:1], 64")
    e("v_lshrrev_b32 v1, 6, v0"); e("s_nop 0"); e("v_readfirstlane_b32 s27, v1")
    e("v_and_b32 v16, 15, v0"); e("v_bfe_u32 v17, v0, 4, 2")
    e("s_cmp_lt_u32 s2, 224"); e("s_cbranch_scc1 K2_GEMM")
    if "k2noa" in VAR: e("s_branch K2_END")
    e("s_cmp_lt_u32 s27, 4"); e("s_cbranch_scc1 K2_AW"); e("s_barrier"); e("s_branch K2_END"); lab("K2_AW")
    e("s_sub_u32 s3, s2, 224"); e("s_lshr_b32 s24, s3, 1"); e("s_and_b32 s25, s3, 1")
    e("v_lshlrev_b32 v2, 4, v0"); e("s_lshl_b32 s26, s24, 12"); e("v_add_u32 v2, s26, v2")
    e("v_lshlrev_b32 v3, 2, v0"); e("s_lshl_b32 s26, s24, 7"); e("v_add_u32 v3, s26, v3")
    e("v_cmp_gt_u32 vcc, 32, v0"); e(f"v_mov_b32 v4, {OOB}"); e("s_nop 1"); e("v_cndmask_b32 v3, v4, v3, vcc")
    e("s_mul_i32 s26, s25, 14"); e("s_add_u32 s26, s26, s27"); e("s_lshl_b32 s26, s26, 4")
    e("v_add_u32 v5, s26, v16"); e("s_movk_i32 s29, 896"); e("v_mul_lo_u32 v6, v5, s29"); e("v_lshl_add_u32 v6, v17, 4, v6")
    e("s_mul_i32 s29, s24, 56"); e("v_add_u32 v6, s29, v6")
    e("v_lshlrev_b32 v7, 10, v5"); e("v_lshl_add_u32 v7, v17, 3, v7"); e("s_lshl_b32 s29, s24, 6"); e("v_add_u32 v7, s29, v7")
    e("s_waitcnt lgkmcnt(0)")
    srd(16, 6, 2048 * 1792); srd(20, 8, WS_END)
    e(f"s_mov_b32 s35, {WS_KVP}"); e(f"s_mov_b32 s36, {WS_ZP}"); e(f"s_mov_b32 s37, {WS_WOT}")
    for rt in range(16):
        e(f"v_add_u32 v8, {65536*rt}, v2"); e(f"buffer_load_dwordx4 {vr(32+4*rt,4)}, v8, s[20:23], s35 offen")
    for i in range(4):
        e(f"v_add_u32 v8, {64*896*i}, v6")
        if i == 3:
            e("s_cmp_lt_u32 s27, 2"); e("s_cbranch_scc1 K2_I3"); e(f"v_mov_b32 v8, {OOB}"); lab("K2_I3")
        e(f"buffer_load_dwordx4 {vr(112+4*i,4)}, v8, s[20:23], s37 offen")
    for rt in range(16):
        e(f"v_add_u32 v8, {2048*rt}, v3"); e(f"buffer_load_dword v{96+rt}, v8, s[20:23], s36 offen")
    for rt in range(1, 16):
        e(f"s_waitcnt vmcnt({20+15-rt})")
        for i in range(4): e(f"v_add_f32 v{32+i}, v{32+i}, v{32+4*rt+i}")
    e("v_and_b32 v8, 7, v0"); e("v_cmp_eq_u32 s[40:41], 7, v8"); e("v_cmp_lt_u32 vcc, 223, v0"); e("s_or_b64 vcc, vcc, s[40:41]")
    e("v_mov_b32 v9, 0"); cvt_pk(36, 32, 33); cvt_pk(37, 34, 35)
    e("v_cndmask_b32 v36, v36, v9, vcc"); e("v_cndmask_b32 v37, v37, v9, vcc")
    e("v_lshrrev_b32 v10, 3, v0"); e("v_mul_u32_u24 v10, 80, v10"); e("v_lshl_add_u32 v10, v8, 3, v10")
    e("ds_write_b64 v10, v[36:37]")
    e("v_mul_u32_u24 v11, 80, v16"); e("v_lshl_add_u32 v11, v17, 4, v11")
    e("s_waitcnt lgkmcnt(0)"); e("s_barrier")
    e("ds_read_b128 v[40:43], v11"); e(f"ds_read_b128 v[44:47], v11 offset:{16*80}")
    e("v_cmp_eq_u32 vcc, 3, v17")
    e("s_waitcnt lgkmcnt(0) vmcnt(16)")
    for i in range(4):
        e(f"v_cndmask_b32 v{114+4*i}, v{114+4*i}, v9, vcc"); e(f"v_cndmask_b32 v{115+4*i}, v{115+4*i}, v9, vcc")
    e("s_nop 1")
    for i in range(4):
        for db in range(2):
            e(f"v_mfma_f32_16x16x32_bf16 {vr(48+8*i+4*db,4)}, {vr(40+4*db,4)}, {vr(112+4*i,4)}, 0")
    e("s_waitcnt vmcnt(0)")
    for rt in range(1, 16): e(f"v_add_f32 v96, v96, v{96+rt}")
    e("v_cmp_lt_u32 vcc, 27, v0"); e("s_nop 1"); e("v_cndmask_b32 v96, v96, v9, vcc"); e("s_nop 0"); cvt_pk(96, 96, 96)
    e("v_lshlrev_b32 v12, 1, v0"); e("s_lshl_b32 s29, s24, 6"); e("v_add_u32 v12, s29, v12")
    e("v_cmp_gt_u32 vcc, 32, v0"); e("s_cmp_eq_u32 s25, 0"); e("s_cselect_b64 s[40:41], -1, 0"); e("s_and_b64 vcc, vcc, s[40:41]")
    e(f"v_cndmask_b32 v12, v4, v12, vcc"); e(f"s_mov_b32 s38, {WS_ZC}")
    e("buffer_store_short v96, v12, s[20:23], s38 offen")
    e(f"s_mov_b32 s38, {WS_MT}")
    for i in range(4):
        e(f"v_add_u32 v8, {64*1024*i}, v7")
        if i == 3:
            e("s_cmp_lt_u32 s27, 2"); e("s_cbranch_scc1 K2_I3S"); e(f"v_mov_b32 v8, {OOB}"); lab("K2_I3S")
        for db in range(2):
            a = 48 + 8 * i + 4 * db
            cvt_pk(80 + 2 * db, a, a + 1); cvt_pk(81 + 2 * db, a + 2, a + 3)
            e(f"buffer_store_dwordx2 {vr(80+2*db,2)}, v8, s[20:23], s38 offen offset:{32*db}")
    ts2_end(6, 0x900000)
    e("s_branch K2_END")
    lab("K2_GEMM")
    if "k2nob" in VAR: e("s_branch K2_END")
    outproj("K2", False)
    lab("K2_END")
    e("s_endpgm")

def gen_k3():
    kernel_header(K3)
    e("s_cmp_ge_u32 s2, 224"); e("s_cbranch_scc1 K3_END")
    ts2(0)
    e("s_load_dwordx2 s[6:7], s[0:1], 48"); e("s_load_dwordx2 s[8:9], s[0:1], 64")
    e("v_lshrrev_b32 v1, 6, v0"); e("s_nop 0"); e("v_readfirstlane_b32 s27, v1")
    e("v_and_b32 v16, 15, v0"); e("v_bfe_u32 v17, v0, 4, 2")
    outproj("K3", True)
    lab("K3_END")
    e("s_endpgm")

def main():
    hdr = open(f"cdna_kernels/{NAME}.s.ref").read().split("\n")
    top = [l for l in hdr if l.startswith(";") and "@launch" not in l]
    top.append(f"; @launch kernel={K1} grid=(256,1,1) block=(512,1,1) lds={k1new.K1_LDS}")
    top.append(f"; @launch kernel={K2} grid=(256,1,1) block=(512,1,1) lds=131072")
    top.append(f"; @launch kernel={K3} grid=(224,1,1) block=(512,1,1) lds=132096")
    L.extend(top)
    L.append('.amdgcn_target "amdgcn-amd-amdhsa--gfx950"'); L.append(".text")
    gen_k1(); gen_k2(); gen_k3()
    L.append('.section .rodata,"a"')
    L.append(kd(K1, 256, 256)); nv = 160; L.append(kd(K2, nv, nv)); L.append(kd(K3, nv, nv))
    open(OUT, "w").write("\n".join(L) + "\n")
main()
```

```python
import sys, os
VAR = os.environ.get("VAR", "")
NAME = "concat_heads__linear_attn_block__sliding_local_dilated__prompt"
OUT = os.environ.get("OUT", f"cdna_kernels/{NAME}.s")

L = []
STPOL = os.environ.get("STPOL", "")
def e(s=""):
    if STPOL and s.startswith("buffer_store"): s = s + " " + STPOL
    L.append("    " + s if s and not s.endswith(":") else s)
def lab(s): L.append(s + ":")

WS_PQA = 0
WS_OB = 0x200000
WS_KVP = 0x400000
WS_ZP = 0x500000
WS_WOT = 0x600000
WS_MT = 0x700000
WS_ZC = 0x780000
WS_END = 0x1000000 if "ts" in VAR.split("_") else 0x800000

def vr(a, n=1): return f"v{a}" if n == 1 else f"v[{a}:{a+n-1}]"
def ar(a, n=1): return f"a{a}" if n == 1 else f"a[{a}:{a+n-1}]"

def srd(dst, ptr_lo, nbytes):
    e(f"s_mov_b32 s{dst}, s{ptr_lo}")
    e(f"s_and_b32 s{dst+1}, s{ptr_lo+1}, 0xffff")
    e(f"s_mov_b32 s{dst+2}, {nbytes}")
    e(f"s_mov_b32 s{dst+3}, 0x00020000")

def kernel_header(name):
    L.append(".p2align 8"); L.append(f".globl {name}"); L.append(f".type {name},@function"); lab(name)

def kd(name, nvgpr, accum, nsgpr=100):
    return f""".p2align 6
.amdhsa_kernel {name}
  .amdhsa_next_free_vgpr {nvgpr}
  .amdhsa_next_free_sgpr {nsgpr}
  .amdhsa_accum_offset {accum}
  .amdhsa_group_segment_fixed_size 0
  .amdhsa_kernarg_size 72
  .amdhsa_user_sgpr_count 2
  .amdhsa_user_sgpr_kernarg_segment_ptr 1
  .amdhsa_system_sgpr_workgroup_id_x 1
.end_amdhsa_kernel"""

def cvt_pk(dst, a, b): e(f"v_cvt_pk_bf16_f32 v{dst}, v{a}, v{b}")
def unpk_lo(dst, src): e(f"v_lshlrev_b32 v{dst}, 16, v{src}")
def unpk_hi(dst, src): e(f"v_and_b32 v{dst}, 0xffff0000, v{src}")

K1 = NAME + "_k1_kernel"; K2 = NAME + "_k2_kernel"; K3 = NAME + "_k3_kernel"
OOB = "0x7fff0000"
XREG = 144 * 64
WSr = 352
SLOT = XREG + 32 * WSr + 1024
NSLOT = 7
K1_LDS = NSLOT * SLOT
TS = 352
NCH = 14


sys.path.insert(0, "gen")
import k1new
def ts(n):
    if "ts" not in VAR.split("_"): return
    e("s_memtime s[98:99]"); e("s_waitcnt lgkmcnt(0)"); e(f"v_writelane_b32 v255, s98, {n}")
    if n == 0:
        e("s_memrealtime s[98:99]"); e("s_waitcnt lgkmcnt(0)"); e(f"v_writelane_b32 v255, s98, 62")
def ts_flush(n):
    if "ts" not in VAR.split("_"): return
    e("v_and_b32 v254, 63, v0"); e("v_lshlrev_b32 v254, 2, v254"); e("s_lshl_b32 s98, s2, 11"); e("s_lshl_b32 s99, s27, 8"); e("s_add_u32 s98, s98, s99"); e("s_add_u32 s98, s98, 0x800000")
    e("buffer_store_dword v255, v254, s[20:23], s98 offen")
def ts_end(n):
    if "ts" not in VAR.split("_"): return
    ts(n); e("s_waitcnt vmcnt(0)"); ts(n + 1)
    e("s_memrealtime s[98:99]"); e("s_waitcnt lgkmcnt(0)"); e(f"v_writelane_b32 v255, s98, 63")
    ts_flush(n + 2)
TSON = "ts" in VAR.split("_")
def ts2(n):
    if not TSON: return
    e("s_memtime s[98:99]"); e("s_waitcnt lgkmcnt(0)"); e(f"v_writelane_b32 v199, s98, {n}")
    if n == 0:
        e("s_memrealtime s[98:99]"); e("s_waitcnt lgkmcnt(0)"); e(f"v_writelane_b32 v199, s98, 62")
def ts2_end(n, area):
    if not TSON: return
    ts2(n); e("s_waitcnt vmcnt(0)"); ts2(n + 1)
    e("s_memrealtime s[98:99]"); e("s_waitcnt lgkmcnt(0)"); e(f"v_writelane_b32 v199, s98, 63")
    e("v_and_b32 v198, 63, v0"); e("v_lshlrev_b32 v198, 2, v198"); e("s_lshl_b32 s98, s2, 11"); e("s_lshl_b32 s99, s27, 8"); e("s_add_u32 s98, s98, s99"); e(f"s_add_u32 s98, s98, {area}")
    e("buffer_store_dword v199, v198, s[20:23], s98 offen")
def gen_k1():
    k1new.gen_k1(sys.modules[__name__])

def outproj(P_, isA):
    rowbytes = 1024 if isA else 896
    if "noxcd" in VAR:
        e("s_mul_hi_u32 s24, s2, 0x24924925"); e("s_mul_i32 s25, s24, 7"); e("s_sub_u32 s25, s2, s25")
    else:
        e("s_lshr_b32 s26, s2, 3"); e("s_mul_hi_u32 s24, s26, 0x24924925"); e("s_mul_i32 s25, s24, 7"); e("s_sub_u32 s25, s26, s25")
        e("s_and_b32 s26, s2, 7"); e("s_lshl_b32 s26, s26, 2"); e("s_add_u32 s24, s24, s26")
    e("s_lshr_b32 s30, s27, 1"); e("s_and_b32 s31, s27, 1")
    e("s_lshl_b32 s28, s24, 6"); e("s_lshl_b32 s26, s25, 6")
    e(f"s_movk_i32 s29, {rowbytes}")
    e("s_lshl_b32 s32, s27, 3"); e("s_add_u32 s33, s32, s28"); e("s_add_u32 s32, s32, s26")
    e("s_and_b32 s35, s27, 1"); e("s_lshl_b32 s35, s35, 3")
    e("s_and_b32 s36, s27, 3"); e("s_lshl_b32 s36, s36, 2"); e("v_add_u32 v21, s36, v17"); e("v_xor_b32 v21, v21, v16")
    if not isA: e("v_cmp_lt_u32 s[42:43], 7, v21"); e(f"v_mov_b32 v25, {OOB}")
    for ii in range(2):
        e(f"v_add_u32 v22, {4*ii}, v17"); e("v_add_u32 v23, s35, v22"); e("v_xor_b32 v23, v23, v16")
        e("v_add_u32 v24, s33, v22"); e(f"v_mul_lo_u32 v{2+ii}, v24, s29"); e(f"v_lshl_add_u32 v{2+ii}, v23, 4, v{2+ii}")
        e("v_add_u32 v24, s32, v22"); e(f"v_mul_lo_u32 v{6+ii}, v24, s29"); e(f"v_lshl_add_u32 v{6+ii}, v21, 4, v{6+ii}")
        if not isA:
            e("v_cmp_lt_u32 vcc, 7, v23"); e(f"v_cndmask_b32 v{18+ii}, v{6+ii}, v25, s[42:43]"); e("s_nop 0")
            e(f"v_cndmask_b32 v{10+ii}, v{2+ii}, v25, vcc")
    e("s_lshl_b32 s34, s27, 11")
    if isA: e("v_and_b32 v22, 63, v0"); e("v_lshlrev_b32 v22, 4, v22")
    e("s_waitcnt lgkmcnt(0)")
    srd(20, 8, WS_END)
    sa, sb = (WS_PQA, WS_MT) if isA else (WS_OB, WS_WOT + 0x80000)
    ts2(1)
    if isA:
        e("s_cmp_eq_u32 s27, 0"); e(f"s_cbranch_scc0 {P_}_NZ")
        e(f"s_mov_b32 s38, {WS_ZC}"); e("s_mov_b32 m0, 131072"); e("s_nop 0")
        e("buffer_load_dwordx4 v22, s[20:23], s38 offen lds")
        lab(f"{P_}_NZ")
    def setup():
        srd(16, 6, 2048 * 1792)
        e("v_lshrrev_b32 v22, 2, v16"); e("v_and_b32 v23, 3, v16"); e("v_xor_b32 v23, v23, v17")
        e("v_lshlrev_b32 v1, 8, v16"); e("v_lshl_add_u32 v1, v23, 4, v1")
        e("s_lshl_b32 s35, s30, 12"); e("s_lshl_b32 s39, s31, 13"); e("s_add_u32 s39, s39, 65536")
        for jl in range(4):
            e(f"v_xor_b32 v23, {jl}, v22"); e("v_lshl_add_u32 v23, v23, 6, v1"); e(f"v_add_u32 v{24+jl}, s35, v23")
        e("v_and_b32 v23, 3, v16"); e("v_lshl_add_u32 v1, v22, 3, v23")
        e("v_xor_b32 v23, v23, v17"); e("v_lshlrev_b32 v23, 4, v23")
        e("v_lshl_add_u32 v20, v1, 8, v23"); e("v_add_u32 v20, s39, v20")
        for jl in range(4):
            e(f"v_xor_b32 v21, {jl}, v22"); e(f"v_lshl_add_u32 v{28+jl}, v21, 6, v20")
        if isA:
            e("v_lshlrev_b32 v4, 4, v17"); e("v_add_u32 v4, 131072, v4"); e("s_mov_b32 s40, 0x358637bd")
        e("s_lshl_b32 s29, s30, 4"); e("s_add_u32 s28, s28, s29"); e("s_lshl_b32 s29, s31, 5"); e("s_add_u32 s26, s26, s29")
        e("v_add_u32 v5, s28, v16"); e("s_movk_i32 s29, 1792"); e("v_mul_lo_u32 v5, v5, s29"); e("v_lshl_add_u32 v5, v17, 4, v5")
        e("s_lshl_b32 s29, s26, 1"); e(f"s_add_u32 s29, s29, {0 if isA else 896}"); e("v_add_u32 v5, s29, v5")
    def issue(q):
        r = []
        for ii in range(2):
            va = (2 if (isA or q < 3) else 10) + ii; vb = (6 if (isA or q < 3) else 18) + ii
            r.append([f"s_mov_b32 s36, {sa+256*q}", f"s_add_u32 m0, s34, {q*16384+ii*1024}", "s_nop 0", f"buffer_load_dwordx4 v{va}, s[20:23], s36 offen lds"])
            r.append([f"s_mov_b32 s37, {sb+256*q}", f"s_add_u32 m0, s34, {65536+q*16384+ii*1024}", "s_nop 0", f"buffer_load_dwordx4 v{vb}, s[20:23], s37 offen lds"])
        return r
    for q in range(2):
        for g in issue(q):
            for x in g: e(x)
    setup()
    SETS = [32, 96]
    DEN, PP, ACC = 160, 168, 184
    def reads(q):
        b = SETS[q & 1]; r = []
        for jl in range(4 if (isA or q < 3) else 2):
            g = [f"ds_read_b128 {vr(b+4*jl,4)}, v{24+jl} offset:{q*16384}"]
            if isA: g.append(f"ds_read_b128 {vr(b+48+4*jl,4)}, v4 offset:{(4*q+jl)*64}")
            for cb in range(2): g.append(f"ds_read_b128 {vr(b+16+16*cb+4*jl,4)}, v{28+jl} offset:{q*16384+1024*cb}")
            r.append(g)
        return r
    e("s_waitcnt vmcnt(4)"); e("s_barrier")
    ts2(2)
    for g in reads(0):
        for x in g: e(x)
    for g in issue(2):
        for x in g: e(x)
    e("s_waitcnt lgkmcnt(0)")
    for q in range(4):
        b = SETS[q & 1]
        nst = 4 if (isA or q < 3) else 2
        rd = []; ld = []
        if q < 3:
            e(f"s_waitcnt vmcnt({(4, 4, 0)[q]})"); e("s_barrier")
            ts2(3 + q)
            rd = reads(q + 1)
            if q == 0: ld = issue(3)
        def valu(jl):
            d = DEN + 4 * (jl & 1)
            e(f"v_add_f32 v{d}, s40, v{d}"); e(f"v_rcp_f32 v{d}, v{d}"); e("s_nop 0")
            for k in range(4):
                a = ACC + 2 * k; pp = PP + 8 * (jl & 1) + 2 * k
                if q == 0 and jl == 0: e(f"v_pk_mul_f32 {vr(a,2)}, {vr(pp,2)}, {vr(d,2)} op_sel_hi:[1,0]")
                else: e(f"v_pk_fma_f32 {vr(a,2)}, {vr(pp,2)}, {vr(d,2)}, {vr(a,2)} op_sel_hi:[1,0,1]")
        for jl in range(nst):
            g = rd.pop(0) if rd else []
            ms = []
            if isA:
                ms.append(f"v_mfma_f32_16x16x32_bf16 {vr(DEN+4*(jl&1),4)}, {vr(b+48+4*jl,4)}, {vr(b+4*jl,4)}, 0")
                for cb in range(2):
                    ms.append(f"v_mfma_f32_16x16x32_bf16 {vr(PP+8*(jl&1)+4*cb,4)}, {vr(b+16+16*cb+4*jl,4)}, {vr(b+4*jl,4)}, 0")
            else:
                for cb in range(2):
                    a = ACC + 4 * cb
                    ms.append(f"v_mfma_f32_16x16x32_bf16 {vr(a,4)}, {vr(b+16+16*cb+4*jl,4)}, {vr(b+4*jl,4)}, {vr(a,4) if (q or jl) else 0}")
            for m in ms:
                e(m)
                for _ in range(2):
                    if g: e(g.pop(0))
            assert not g
            if ld:
                for x in ld.pop(0): e(x)
            if isA and jl:
                if not (q < 3): e("s_nop 3")
                valu(jl - 1)
        assert not rd and not ld
        if isA:
            e("s_nop 7"); e("s_nop 1")
            valu(3)
        if q < 3: e("s_waitcnt lgkmcnt(0)")
    if not isA: e("s_nop 7"); e("s_nop 7")
    for k in range(4): cvt_pk(32 + k, ACC + 2 * k, ACC + 2 * k + 1)
    e("buffer_store_dwordx4 v[32:35], v5, s[16:19], 0 offen")
    ts2_end(6, 0xa00000 if isA else 0x900000)

def gen_k2():
    kernel_header(K2)
    e("s_cmp_ge_u32 s2, 256"); e("s_cbranch_scc1 K2_END")
    ts2(0)
    e("s_load_dwordx2 s[6:7], s[0:1], 48"); e("s_load_dwordx2 s[8:9], s[0:1], 64")
    e("v_lshrrev_b32 v1, 6, v0"); e("s_nop 0"); e("v_readfirstlane_b32 s27, v1")
    e("v_and_b32 v16, 15, v0"); e("v_bfe_u32 v17, v0, 4, 2")
    e("s_cmp_lt_u32 s2, 224"); e("s_cbranch_scc1 K2_GEMM")
    if "k2noa" in VAR: e("s_branch K2_END")
    e("s_sub_u32 s3, s2, 224"); e("s_lshr_b32 s24, s3, 1"); e("s_and_b32 s25, s3, 1")
    e(f"v_mov_b32 v4, {OOB}"); e("v_mov_b32 v9, 0")
    e("s_cmp_lt_u32 s27, 4"); e("s_cbranch_scc1 K2_AW")
    e("s_cmp_eq_u32 s27, 4"); e("s_cselect_b32 s29, s25, 1"); e("s_cmp_eq_u32 s29, 0"); e("s_cbranch_scc1 K2_Z")
    e("s_barrier"); e("s_branch K2_END")
    lab("K2_Z")
    e("v_and_b32 v5, 63, v0"); e("v_lshlrev_b32 v3, 2, v5"); e("s_lshl_b32 s26, s24, 7"); e("v_add_u32 v3, s26, v3")
    e("v_cmp_gt_u32 vcc, 32, v5"); e("v_lshlrev_b32 v12, 1, v5"); e("s_lshl_b32 s29, s24, 6"); e("v_add_u32 v12, s29, v12")
    e("v_cndmask_b32 v3, v4, v3, vcc"); e("v_cndmask_b32 v12, v4, v12, vcc")
    e("s_waitcnt lgkmcnt(0)")
    srd(20, 8, WS_END)
    e(f"s_mov_b32 s36, {WS_ZP}"); e(f"s_mov_b32 s38, {WS_ZC}")
    for rt in range(16):
        if rt % 2 == 0: e(f"v_add_u32 v8, {2048*rt}, v3")
        e(f"buffer_load_dword v{96+rt}, v8, s[20:23], s36 offen offset:{2048*(rt%2)}")
    e("s_barrier")
    e("v_cmp_lt_u32 vcc, 27, v5")
    e("s_waitcnt vmcnt(0)")
    for st in (8, 4, 2, 1):
        for i in range(st): e(f"v_add_f32 v{96+i}, v{96+i}, v{96+st+i}")
    e("v_cndmask_b32 v96, v96, v9, vcc"); e("s_nop 0"); cvt_pk(96, 96, 96)
    e("buffer_store_short v96, v12, s[20:23], s38 offen")
    e("s_branch K2_END")
    lab("K2_AW")
    e("v_lshlrev_b32 v2, 4, v0"); e("s_lshl_b32 s26, s24, 12"); e("v_add_u32 v2, s26, v2")
    e("s_mul_i32 s26, s25, 14"); e("s_add_u32 s26, s26, s27"); e("s_lshl_b32 s26, s26, 4")
    e("v_add_u32 v5, s26, v16"); e("s_movk_i32 s29, 896"); e("v_mul_lo_u32 v6, v5, s29"); e("v_lshl_add_u32 v6, v17, 4, v6")
    e("s_mul_i32 s29, s24, 56"); e("v_add_u32 v6, s29, v6")
    e("s_waitcnt lgkmcnt(0)")
    srd(20, 8, WS_END)
    e(f"s_mov_b32 s35, {WS_KVP}"); e(f"s_mov_b32 s37, {WS_WOT}")
    ts2(1)
    for rt in range(16):
        e(f"v_add_u32 v8, {65536*rt}, v2"); e(f"buffer_load_dwordx4 {vr(32+4*rt,4)}, v8, s[20:23], s35 offen")
    for i in range(4):
        e(f"v_add_u32 v8, {64*896*i}, v6")
        if i == 3:
            e("s_cmp_lt_u32 s27, 2"); e("s_cbranch_scc1 K2_I3"); e(f"v_mov_b32 v8, {OOB}"); lab("K2_I3")
        e(f"buffer_load_dwordx4 {vr(112+4*i,4)}, v8, s[20:23], s37 offen")
    ts2(2)
    e("v_lshlrev_b32 v7, 10, v5"); e("v_lshl_add_u32 v7, v17, 4, v7"); e("s_lshl_b32 s29, s24, 6"); e("v_add_u32 v7, s29, v7")
    for i in range(1, 4): e(f"v_add_u32 v{12+i}, {64*1024*i}, v7")
    e("s_cmp_lt_u32 s27, 2"); e("s_cbranch_scc1 K2_I3S"); e(f"v_mov_b32 v15, {OOB}"); lab("K2_I3S")
    e("v_and_b32 v8, 7, v0"); e("v_cmp_eq_u32 s[40:41], 7, v8"); e("v_cmp_lt_u32 vcc, 223, v0"); e("s_or_b64 s[40:41], vcc, s[40:41]")
    e("v_lshrrev_b32 v10, 3, v0"); e("v_mul_u32_u24 v10, 80, v10"); e("v_lshl_add_u32 v10, v8, 3, v10")
    e("v_lshrrev_b32 v11, 2, v16"); e("v_and_b32 v3, 3, v16"); e("v_lshl_add_u32 v11, v11, 3, v3")
    e("v_mul_u32_u24 v11, 80, v11"); e("v_lshl_add_u32 v11, v17, 4, v11")
    e("v_cmp_eq_u32 vcc, 3, v17")
    e(f"s_mov_b32 s38, {WS_MT}")
    for rt in range(1, 16):
        e(f"s_waitcnt vmcnt({4+15-rt})")
        for i in range(2): e(f"v_pk_add_f32 {vr(32+2*i,2)}, {vr(32+2*i,2)}, {vr(32+4*rt+2*i,2)}")
    ts2(3)
    cvt_pk(36, 32, 33); cvt_pk(37, 34, 35)
    e("v_cndmask_b32 v36, v36, v9, s[40:41]"); e("v_cndmask_b32 v37, v37, v9, s[40:41]")
    e("ds_write_b64 v10, v[36:37]")
    e("s_waitcnt lgkmcnt(0)"); e("s_barrier")
    e("ds_read_b128 v[40:43], v11"); e(f"ds_read_b128 v[44:47], v11 offset:{4*80}")
    e("s_waitcnt vmcnt(0)")
    for i in range(4):
        e(f"v_cndmask_b32 v{114+4*i}, v{114+4*i}, v9, vcc"); e(f"v_cndmask_b32 v{115+4*i}, v{115+4*i}, v9, vcc")
    e("s_waitcnt lgkmcnt(0)")
    ts2(4)
    for i in range(4):
        for db in range(2):
            e(f"v_mfma_f32_16x16x32_bf16 {vr(48+8*i+4*db,4)}, {vr(40+4*db,4)}, {vr(112+4*i,4)}, 0")
    e("s_nop 4")
    ts2(5)
    for i in range(4):
        if i == 3: e("s_nop 4")
        for k in range(4): cvt_pk(80 + 4 * i + k, 48 + 8 * i + 2 * k, 49 + 8 * i + 2 * k)
        e(f"buffer_store_dwordx4 {vr(80+4*i,4)}, v{7 if i == 0 else 12+i}, s[20:23], s38 offen")
    ts2_end(6, 0x900000)
    e("s_branch K2_END")
    lab("K2_GEMM")
    if "k2nob" in VAR: e("s_branch K2_END")
    outproj("K2", False)
    lab("K2_END")
    e("s_endpgm")

def gen_k3():
    kernel_header(K3)
    e("s_cmp_ge_u32 s2, 224"); e("s_cbranch_scc1 K3_END")
    ts2(0)
    e("s_load_dwordx2 s[6:7], s[0:1], 48"); e("s_load_dwordx2 s[8:9], s[0:1], 64")
    e("v_lshrrev_b32 v1, 6, v0"); e("s_nop 0"); e("v_readfirstlane_b32 s27, v1")
    e("v_and_b32 v16, 15, v0"); e("v_bfe_u32 v17, v0, 4, 2")
    outproj("K3", True)
    lab("K3_END")
    e("s_endpgm")

def main():
    hdr = open(f"cdna_kernels/{NAME}.s.ref").read().split("\n")
    top = [l for l in hdr if l.startswith(";") and "@launch" not in l]
    top.append(f"; @launch kernel={K1} grid=(256,1,1) block=(512,1,1) lds={k1new.K1_LDS}")
    top.append(f"; @launch kernel={K2} grid=(256,1,1) block=(512,1,1) lds=131072")
    top.append(f"; @launch kernel={K3} grid=(224,1,1) block=(512,1,1) lds=132096")
    L.extend(top)
    L.append('.amdgcn_target "amdgcn-amd-amdhsa--gfx950"'); L.append(".text")
    gen_k1(); gen_k2(); gen_k3()
    L.append('.section .rodata,"a"')
    L.append(kd(K1, 256, 256)); nv = 200; L.append(kd(K2, nv, nv)); L.append(kd(K3, nv, nv))
    open(OUT, "w").write("\n".join(L) + "\n")
main()
```

```python
XS = 144 * 128
WSr = 352
WH = 32 * WSr
STG = XS + 2 * WH
K1_LDS = 4 * STG
TS = 352
NST = 7

def gen_k1(G):
    e, lab, vr, srd, cvt_pk, unpk_lo, unpk_hi = G.e, G.lab, G.vr, G.srd, G.cvt_pk, G.unpk_lo, G.unpk_hi
    OOB, VAR = G.OOB, G.VAR
    ts = G.ts
    G.kernel_header(G.K1)
    e("s_cmp_ge_u32 s2, 256"); e("s_cbranch_scc1 K1_END")
    ts(0)
    e("s_and_b32 s24, s2, 1"); e("s_mul_i32 s29, s24, 24"); e("s_add_u32 s30, s0, s29"); e("s_addc_u32 s31, s1, 0")
    e("s_load_dwordx4 s[4:7], s[30:31], 0"); e("s_load_dwordx2 s[10:11], s[30:31], 16"); e("s_load_dwordx2 s[8:9], s[0:1], 64")
    e("v_lshrrev_b32 v1, 6, v0"); e("s_bfe_u32 s25, s2, 0x20001"); e("v_readfirstlane_b32 s27, v1")
    e("s_lshl_b32 s25, s25, 2"); e("s_bfe_u32 s26, s2, 0x20003"); e("s_add_u32 s25, s25, s26"); e("s_lshr_b32 s26, s2, 5")
    e("s_lshl_b32 s28, s25, 7")
    e("v_and_b32 v16, 15, v0"); e("v_bfe_u32 v17, v0, 4, 2"); e("v_and_b32 v5, 63, v0")
    e("s_cmp_lt_u32 s27, 4"); e("s_cbranch_scc1 K1_COMP")
    BIGN = "0xcfb2d05e"
    CM = 244
    def epi_pre(kind):
        sfx = kind
        e("s_cmp_eq_u32 s24, 0"); e(f"s_cbranch_scc1 K1_PA{sfx}")
        e("s_lshl_b32 s29, s27, 4"); e("s_add_u32 s30, s29, 16")
        e("v_add_u32 v2, s30, v16"); e(f"v_mul_u32_u24 v2, {TS}, v2"); e("v_lshl_add_u32 v2, v17, 4, v2")
        e(f"v_subrev_u32 v3, {16*TS}, v2")
        e("v_lshrrev_b32 v4, 2, v16"); e("v_lshl_add_u32 v4, v17, 2, v4"); e("v_add_u32 v4, s29, v4")
        e(f"v_mul_u32_u24 v4, {TS}, v4"); e("v_and_b32 v8, 3, v16"); e("v_lshl_add_u32 v4, v8, 3, v4")
        e("v_lshlrev_b32 v8, 2, v17"); e("v_sub_u32 v8, v16, v8"); e("v_add_u32 v8, 16, v8")
        e(f"v_mov_b32 v9, {BIGN}")
        for sl in range(8):
            kb, i = sl >> 2, sl & 3
            e(f"v_subrev_u32 v{CM+sl}, {16*kb+i}, v8"); e(f"v_alignbit_b32 v{CM+sl}, v{CM+sl}, v{CM+sl}, 1")
        for sl in range(8):
            e(f"v_cmp_ge_u32 vcc, 7, v{CM+sl}"); e("s_nop 1"); e(f"v_cndmask_b32 v{CM+sl}, v9, 0, vcc")
        e("s_add_u32 s30, s25, s27"); e("s_cmp_eq_u32 s30, 0"); e(f"s_cbranch_scc0 K1_NM{sfx}")
        for sl in range(4): e(f"v_mov_b32 v{CM+sl}, v9")
        lab(f"K1_NM{sfx}")
        e("v_and_b32 v8, 1, v16"); e("v_cmp_eq_u32 s[64:65], 1, v8"); e("v_cmp_eq_u32 s[66:67], 3, v17")
        e("v_mov_b32 v8, 0xffff"); e("v_mov_b32 v9, 0xffff0000"); e("v_cndmask_b32 v8, v8, v9, s[64:65]")
        e("s_add_u32 s30, s28, s29"); e("v_add_u32 v6, s30, v16"); e("s_movk_i32 s30, 896"); e("v_mul_lo_u32 v6, v6, s30")
        e("v_lshl_add_u32 v6, v17, 3, v6"); e("s_mul_i32 s30, s26, 112"); e("v_add_u32 v6, s30, v6")
        e(f"v_mov_b32 v7, {OOB}"); e("v_cndmask_b32 v7, v6, v7, s[66:67]")
        for i in range(4): e(f"v_mov_b32 v{12+i}, 0x3f803f80")
        e("s_mov_b32 s68, 0x3e8b97f6"); e("s_mov_b32 s69, 0x3e8b97f6"); e(f"s_mov_b32 s70, {G.WS_OB}")
        e(f"s_branch K1_PD{sfx}")
        lab(f"K1_PA{sfx}")
        e("v_mov_b32 v8, 0x3f80"); e("v_mov_b32 v9, 0x3f800000")
        e("s_mov_b32 s68, 0x3fb8aa3b"); e("s_mov_b32 s69, 0x3fb8aa3b"); e("s_mov_b32 s72, 0x358637bd"); e("s_mov_b32 s73, 0x358637bd")
        if kind == "c":
            e("v_lshrrev_b32 v4, 2, v16"); e("v_lshl_add_u32 v4, v17, 2, v4"); e("v_add_u32 v4, 16, v4")
            e(f"v_mul_u32_u24 v4, {TS}, v4"); e("v_and_b32 v3, 3, v16"); e("v_lshl_add_u32 v4, v3, 3, v4")
            e("s_lshr_b32 s29, s27, 1"); e("s_and_b32 s30, s27, 1"); e("s_mul_i32 s31, s29, 56")
            e("s_lshl_b32 s34, s30, 5"); e("s_add_u32 s34, s34, s31"); e("s_add_u32 s34, s34, 112"); e("s_add_u32 s31, s31, 224")
            e("v_add_u32 v2, s34, v4"); e("v_add_u32 v3, s31, v4")
            for i in range(4): e(f"v_mov_b32 v{12+i}, 0x3f803f80")
            e("s_lshl_b32 s31, s26, 1"); e("s_add_u32 s31, s31, s29"); e("s_lshl_b32 s34, s25, 4"); e("s_add_u32 s31, s31, s34")
            e("s_lshl_b32 s34, s31, 12"); e("s_lshl_b32 s36, s30, 6"); e("s_add_u32 s34, s34, s36")
            e("v_lshlrev_b32 v6, 7, v16"); e("v_lshl_add_u32 v6, v17, 4, v6"); e("v_add_u32 v6, s34, v6")
            e("v_cmp_eq_u32 s[66:67], 12, v16")
            e(f"s_mov_b32 s70, {G.WS_KVP}")
        else:
            e("v_bfe_u32 v3, v0, 3, 5"); e("v_and_b32 v4, 3, v0"); e("v_bfe_u32 v7, v0, 2, 1")
            e("v_add_u32 v2, 16, v3"); e(f"v_mul_u32_u24 v2, {TS}, v2"); e("v_mul_u32_u24 v7, 56, v7"); e("v_add_u32 v2, v2, v7")
            e("v_lshl_add_u32 v2, v4, 4, v2"); e("v_cmp_eq_u32 s[66:67], 3, v4")
            e("v_lshrrev_b32 v6, 4, v3"); e("v_lshlrev_b32 v6, 14, v6"); e("v_and_b32 v3, 15, v3"); e("v_lshl_add_u32 v6, v3, 4, v6")
            e("v_and_b32 v4, 7, v0"); e("v_lshl_add_u32 v6, v4, 8, v6")
            e("s_lshl_b32 s29, s26, 11"); e("s_lshl_b32 s30, s28, 10"); e("s_add_u32 s29, s29, s30"); e("v_add_u32 v6, s29, v6")
            for i in range(1, 4): e(f"s_mov_b32 s{74+i}, {32768*i}")
        lab(f"K1_PD{sfx}")
    e("s_sub_u32 s38, s27, 4")
    e("v_lshrrev_b32 v6, 3, v5"); e("v_and_b32 v7, 7, v5"); e("v_xor_b32 v7, v7, v17")
    e("s_lshl_b32 s29, s38, 5"); e("s_add_u32 s29, s29, s28"); e("s_sub_u32 s29, s29, 16")
    e("v_add_u32 v6, s29, v6"); e("s_movk_i32 s31, 896"); e("v_mul_lo_u32 v6, v6, s31")
    e("v_lshl_add_u32 v20, v7, 4, v6"); e("v_xor_b32 v7, 4, v7"); e("v_lshl_add_u32 v21, v7, 4, v6"); e("v_add_u32 v21, 7168, v21")
    e("v_add_u32 v22, 14336, v20"); e("v_add_u32 v23, 14336, v21")
    def wvoff(dst, add):
        e(f"s_add_u32 s30, s38, {add}"); e("s_lshl_b32 s30, s30, 6"); e("v_add_u32 v6, s30, v5")
        e("s_mov_b32 s31, 0xba2e8bb"); e("v_mul_hi_u32 v7, v6, s31")
        e("v_mul_u32_u24 v9, 22, v7"); e("v_sub_u32 v9, v6, v9")
        e("s_mov_b32 s31, 0x24924925"); e("v_mul_hi_u32 v10, v9, s31")
        e("v_mul_u32_u24 v11, 7, v10"); e("v_sub_u32 v11, v9, v11")
        e("v_bfe_u32 v12, v7, 2, 2"); e("v_lshrrev_b32 v13, 4, v7"); e("v_and_b32 v7, 3, v7")
        e("v_lshl_add_u32 v7, v12, 3, v7"); e("v_lshl_add_u32 v7, v13, 2, v7")
        e(f"v_mul_u32_u24 v{dst}, 2688, v7"); e("v_mul_u32_u24 v10, 896, v10"); e(f"v_add_u32 v{dst}, v{dst}, v10")
        e(f"v_lshl_add_u32 v{dst}, v11, 4, v{dst}"); e(f"v_add_u32 v{dst}, s33, v{dst}")
        e("v_cmp_eq_u32 vcc, 21, v9"); e(f"v_mov_b32 v10, {OOB}"); e(f"v_add_u32 v{dst+1}, {32*2688}, v{dst}")
        e(f"v_cndmask_b32 v{dst}, v{dst}, v10, vcc"); e(f"v_cndmask_b32 v{dst+1}, v{dst+1}, v10, vcc")
    e("s_mul_i32 s33, s26, 112")
    wvoff(26, 0); wvoff(28, 4)
    e("s_cmp_eq_u32 s38, 3"); e("s_cbranch_scc1 K1_H3")
    wvoff(24, 8)
    e("s_branch K1_H3D")
    lab("K1_H3")
    e("v_add_u32 v24, 28672, v20"); e("v_add_u32 v25, 28672, v21")
    lab("K1_H3D")
    e("s_lshl_b32 s52, s38, 12")
    for i in range(1, 4): e(f"s_add_u32 s{52+i}, s52, {1024*i}")
    e("s_lshl_b32 s58, s38, 10"); e(f"s_add_u32 s58, s58, {XS}"); e(f"s_add_u32 s59, s58, {WH}")
    e("s_add_u32 s60, s58, 4096"); e("s_add_u32 s61, s59, 4096")
    e("s_add_u32 s56, s58, 8192"); e("s_add_u32 s57, s59, 8192")
    e("s_cmp_eq_u32 s38, 3"); e("s_cselect_b32 s56, 16384, s56"); e("s_cselect_b32 s57, 17408, s57")
    e("s_add_u32 s34, s25, s26"); e("s_lshl_b32 s30, s24, 2"); e("s_add_u32 s34, s34, s30")
    e("s_mul_i32 s30, s34, 37"); e("s_lshr_b32 s30, s30, 8"); e("s_mul_i32 s30, s30, 7"); e("s_sub_u32 s34, s34, s30")
    if "nostag" in VAR: e("s_mov_b32 s34, 0")
    e("s_waitcnt lgkmcnt(0)")
    srd(12, 4, 1835008); srd(16, 6, 448 * 2688)
    e("s_cmp_eq_u32 s38, 3")
    for i in range(4): e(f"s_cselect_b32 s{44+i}, s{12+i}, s{16+i}")
    def gload(st):
        sb = (st % 4) * STG
        e("s_lshl_b32 s35, s34, 7"); e(f"s_mul_i32 s36, s34, {64*2688}")
        e("s_cmp_eq_u32 s38, 3"); e("s_cselect_b32 s37, s35, s36")
        for i in (0, 1, 2, 3, 6, 7, 8, 9, 4, 5):
            sr, so = ("s[12:15]", 35) if i < 4 else (("s[44:47]", 37) if i < 6 else ("s[16:19]", 36))
            e(f"s_add_u32 m0, s{52+i}, {sb}"); e("s_nop 0")
            e(f"buffer_load_dwordx4 v{20+i}, {sr}, s{so} offen lds")
        e("s_add_u32 s34, s34, 1"); e("s_cmp_eq_u32 s34, 7"); e("s_cselect_b32 s34, 0, s34")
    ts(1)
    deep = "deep" in VAR
    gload(0); gload(1)
    ts(2)
    e("s_waitcnt vmcnt(10)"); e("s_barrier")
    srd(20, 8, G.WS_END)
    if deep:
        gload(2); gload(3)
        for s in range(NST):
            if s == 3: epi_pre('h')
            e(f"s_waitcnt vmcnt({(20, 20, 20, 20, 10, 0, 0)[s]})"); e("s_barrier")
            if s + 4 < NST: gload(s + 4)
    else:
        for s in range(NST):
            if s + 2 < NST: gload(s + 2)
            if s == 5: epi_pre('h')
            e(f"s_waitcnt vmcnt({(10, 10, 10, 10, 10, 0, 0)[s]})"); e("s_barrier")
    e("s_branch K1_EPI")
    lab("K1_COMP")
    e("s_cmp_eq_u32 s24, 0"); e("s_movk_i32 s32, 196"); e("s_movk_i32 s33, 7168"); e("s_movk_i32 s34, 896")
    e("s_cselect_b32 s32, 224, s32"); e("s_cselect_b32 s33, 6272, s33"); e("s_cselect_b32 s34, 1024, s34"); e("s_cselect_b64 s[36:37], -1, 0")
    e("s_lshl_b32 s29, s25, 3"); e("s_add_u32 s29, s29, s26"); e("s_mul_i32 s29, s29, s32")
    e("v_add_u32 v6, s29, v0"); e("s_mov_b32 s31, 0x924925"); e("v_mul_hi_u32 v7, v6, s31")
    e("v_mul_u32_u24 v8, 448, v7"); e("v_sub_u32 v8, v6, v8")
    e("v_mul_u32_u24 v9, s33, v7"); e("v_lshl_add_u32 v9, v8, 1, v9")
    e("v_mul_u32_u24 v240, s34, v8"); e("v_lshl_add_u32 v240, v7, 4, v240")
    e("v_cmp_gt_u32 vcc, s32, v0"); e(f"v_mov_b32 v10, {OOB}"); e("s_nop 1")
    e("v_cndmask_b32 v9, v10, v9, vcc"); e("v_cndmask_b32 v240, v10, v240, vcc")
    e("v_cndmask_b32 v11, v9, v10, s[36:37]")
    e("v_subrev_u32 v12, 64, v0"); e("v_cmp_gt_u32 vcc, 32, v12"); e("v_lshlrev_b32 v12, 2, v12"); e("s_lshl_b32 s29, s2, 7"); e("v_add_u32 v12, s29, v12")
    e("v_cndmask_b32 v12, v10, v12, vcc"); e("v_mov_b32 v13, -1")
    e("v_lshrrev_b32 v6, 1, v16"); e("v_xor_b32 v6, v6, v17"); e("v_lshlrev_b32 v24, 7, v16"); e("v_lshl_add_u32 v24, v6, 4, v24")
    e("v_xor_b32 v25, 64, v24"); e(f"v_add_u32 v26, {2*STG}, v24"); e(f"v_add_u32 v27, {2*STG}, v25")
    e("v_lshrrev_b32 v6, 2, v16"); e("v_lshl_add_u32 v6, v17, 2, v6"); e(f"v_mul_u32_u24 v28, {WSr}, v6"); e("v_and_b32 v7, 3, v16")
    e("v_lshl_add_u32 v28, v7, 3, v28"); e(f"v_add_u32 v28, {XS}, v28"); e(f"v_add_u32 v29, {2*STG}, v28")
    e(f"v_mul_u32_u24 v30, {TS}, v16"); e("v_lshl_add_u32 v30, v17, 3, v30")
    e("s_waitcnt lgkmcnt(0)")
    srd(20, 8, G.WS_END); srd(48, 10, 448 * 896)
    e("s_movk_i32 s29, 3584")
    for i in range(4):
        so = "0" if i < 2 else "s29"
        e(f"buffer_load_ushort v{232+i}, v9, s[48:51], {so} offen offset:{1792*(i%2)}")
        e(f"buffer_load_ushort v{236+i}, v{11 if i == 3 else 9}, s[48:51], {so} offen offset:{1792*(i%2)+896}")
    e(f"s_mov_b32 s30, {G.WS_KVT}"); e("buffer_store_dword v13, v12, s[20:23], s30 offen")
    e(f"s_mov_b32 s62, {G.WS_WOT}"); e("s_lshl_b32 s30, s24, 19"); e("s_add_u32 s62, s62, s30")
    epi_pre("c")
    e("s_cmp_eq_u32 s27, 1"); e("s_cbranch_scc1 K1_R1"); e("s_cmp_eq_u32 s27, 2"); e("s_cbranch_scc1 K1_R2")
    e("s_cmp_eq_u32 s27, 3"); e("s_cbranch_scc1 K1_R3")
    F = [32, 84]; ACC = 136
    for role in range(4):
        if role: lab(f"K1_R{role}")
        wm2, wn = role >> 1, role & 1
        if role in (0, 2): wm2, wn = role >> 1, 0
        wm2, wn = role >> 1, role & 1
        if wn == 0:
            cols = [32 * c for c in range(6)]; nmain = 6; halo = []
        elif wm2 == 0:
            cols = [192 + 32 * c for c in range(5)]; nmain = 5; halo = [0, 1, 2, 3]
        else:
            cols = [192 + 32 * c for c in range(5)] + [96, 128, 160]; nmain = 5; halo = [4, 5, 6, 7]
        def freads(cn, f):
            s = cn >> 1; sub = cn & 1; slot = s % 4; st_ = slot >> 1; so = (slot & 1) * STG; b = F[f]; r = []
            for rb in range(4): r.append(f"ds_read_b128 {vr(b+4*rb,4)}, v{24+2*st_+sub} offset:{so+(16+64*wm2+16*rb)*128}")
            for c, cb in enumerate(cols):
                for h in range(2): r.append(f"ds_read_b64_tr_b16 {vr(b+20+4*c+2*h,2)}, v{28+st_} offset:{so+sub*WH+h*16*WSr+cb}")
            if halo: r.append(f"ds_read_b128 {vr(b+16,4)}, v{24+2*st_+sub} offset:{so}")
            return r
        def mfmas(f, first):
            b = F[f]; r = []
            for c in range(nmain):
                for rb in range(4):
                    a = ACC + 4 * (c * 4 + rb)
                    r.append(f"v_mfma_f32_16x16x32_bf16 {vr(a,4)}, {vr(b+20+4*c,4)}, {vr(b+4*rb,4)}, {0 if first else vr(a,4)}")
            for i, c in enumerate(halo):
                a = ACC + 4 * (20 + i)
                r.append(f"v_mfma_f32_16x16x32_bf16 {vr(a,4)}, {vr(b+20+4*c,4)}, {vr(b+16,4)}, {0 if first else vr(a,4)}")
            return r
        e("s_barrier")
        if role == 0: ts(3)
        for x in freads(0, 0): e(x)
        e("s_waitcnt lgkmcnt(0)")
        tw = []
        k = 0
        for c in range(nmain):
            for rb in range(4):
                a = ACC + 4 * (c * 4 + rb); t = 32 + 2 * (k % 8); k += 1
                tw.append([f"v_cvt_pk_bf16_f32 v{t}, v{a}, v{a+1}", f"v_cvt_pk_bf16_f32 v{t+1}, v{a+2}, v{a+3}",
                           f"ds_write_b64 v30, {vr(t,2)} offset:{(16+64*wm2+16*rb)*TS+cols[c]}"])
        for i, c in enumerate(halo):
            a = ACC + 4 * (20 + i); t = 32 + 2 * (k % 8); k += 1
            tw.append([f"v_cvt_pk_bf16_f32 v{t}, v{a}, v{a+1}", f"v_cvt_pk_bf16_f32 v{t+1}, v{a+2}, v{a+3}",
                       f"ds_write_b64 v30, {vr(t,2)} offset:{cols[c]}"])
        DIST = 4
        for cn in range(2 * NST):
            nxt = freads(cn + 1, (cn + 1) & 1) if cn + 1 < 2 * NST else []
            for mi, ins in enumerate(mfmas(cn & 1, cn == 0)):
                e(ins)
                for _ in range(2 if mi < 5 else 1):
                    if nxt: e(nxt.pop(0))
                if cn == 2 * NST - 1 and mi >= DIST:
                    for x in tw.pop(0): e(x)
                if cn == 7 and mi == 20:
                    e("s_waitcnt vmcnt(0)")
                    for i in range(4): e(f"v_lshl_or_b32 v{232+i}, v{236+i}, 16, v{232+i}")
                    e("buffer_store_dwordx4 v[232:235], v240, s[20:23], s62 offen")
            assert not nxt
            if cn + 1 < 2 * NST: e("s_waitcnt lgkmcnt(0)")
            if cn % 2 == 0: e("s_barrier")
        if role == 0: ts(4)
        e("s_nop 7"); e("s_nop 3")
        for x in tw:
            for y in x: e(y)
        if role < 3: e("s_branch K1_EPI")
    lab("K1_EPI")
    e("s_waitcnt lgkmcnt(0)"); e("s_barrier")
    ts(5)
    if "noepi" in VAR: G.ts_flush(6); e("s_branch K1_END")
    e("s_cmp_eq_u32 s24, 0"); e("s_cbranch_scc0 K1_ATTB")
    ONEL, ONEH = 8, 9
    def phi(regs, T0):
        for i0 in range(0, len(regs), 4):
            grp = regs[i0:i0 + 4]
            assert len(grp) == 4
            for i, w in enumerate(grp): unpk_lo(T0 + 2 * i, w); unpk_hi(T0 + 2 * i + 1, w)
            for i, w in enumerate(grp): e(f"v_pk_mul_f32 {vr(T0+2*i,2)}, {vr(T0+2*i,2)}, s[68:69]")
            for i, w in enumerate(grp): e(f"v_pk_max_i16 v{w}, v{w}, 0")
            for i, w in enumerate(grp):
                e(f"v_exp_f32 v{T0+2*i}, v{T0+2*i} clamp"); e(f"v_exp_f32 v{T0+2*i+1}, v{T0+2*i+1} clamp")
            for i, w in enumerate(grp):
                e(f"v_dot2_f32_bf16 v{T0+2*i}, v{w}, v{ONEL}, v{T0+2*i}"); e(f"v_dot2_f32_bf16 v{T0+2*i+1}, v{w}, v{ONEH}, v{T0+2*i+1}")
            for i, w in enumerate(grp): e(f"v_pk_add_f32 {vr(T0+2*i,2)}, {vr(T0+2*i,2)}, s[72:73]")
            for i, w in enumerate(grp): cvt_pk(w, T0 + 2 * i, T0 + 2 * i + 1)
    e("s_cmp_lt_u32 s27, 4"); e("s_cbranch_scc1 K1_AKV")
    for it in range(4):
        for h in range(2): e(f"ds_read_b64 {vr(32+4*it+2*h,2)}, v2 offset:{it*32*TS+8*h}")
    for it in range(4):
        e(f"s_waitcnt lgkmcnt({6-2*it})")
        phi(list(range(32 + 4 * it, 36 + 4 * it)), 64 + 8 * (it & 1))
        e(f"v_cndmask_b32 v{34+4*it}, v{34+4*it}, 0, s[66:67]"); e(f"v_cndmask_b32 v{35+4*it}, v{35+4*it}, 0, s[66:67]")
        e(f"buffer_store_dwordx4 {vr(32+4*it,4)}, v6, s[20:23], {'s%d' % (74+it) if it else 0} offen")
    G.ts_end(6)
    e("s_branch K1_END")
    lab("K1_AKV")
    PK, VV, KA = 32, 48, 100
    for ks in range(4):
        for h in range(2): e(f"ds_read_b64_tr_b16 {vr(PK+4*ks+2*h,2)}, v2 offset:{(32*ks+16*h)*TS}")
    for ks in range(4):
        for nb in range(2):
            for h in range(2): e(f"ds_read_b64_tr_b16 {vr(VV+8*ks+4*nb+2*h,2)}, v3 offset:{(32*ks+16*h)*TS+32*nb}")
    for ks in range(4):
        e(f"s_waitcnt lgkmcnt({min(15, 22-2*ks) if ks < 3 else 0})")
        phi(list(range(PK + 4 * ks, PK + 4 * ks + 4)), 80 + 8 * (ks & 1))
        if ks == 3: e("s_nop 1")
        for kk in ([ks - 1] if ks in (1, 2) else ([2, 3] if ks == 3 else [])):
            if kk < 2: e(f"s_waitcnt lgkmcnt({12-4*kk})")
            c = (lambda a: "0" if kk == 0 else vr(a, 4))
            e(f"v_mfma_f32_16x16x32_bf16 {vr(KA+8,4)}, {vr(PK+4*kk,4)}, v[12:15], {c(KA+8)}")
            e(f"v_mfma_f32_16x16x32_bf16 {vr(KA+4,4)}, {vr(PK+4*kk,4)}, {vr(VV+8*kk+4,4)}, {c(KA+4)}")
            e(f"v_mfma_f32_16x16x32_bf16 {vr(KA,4)}, {vr(PK+4*kk,4)}, {vr(VV+8*kk,4)}, {c(KA)}")
    e("s_nop 7"); e("s_nop 1")
    for i in range(4): e(f"v_cndmask_b32 v{KA+4+i}, v{KA+4+i}, v{KA+8+i}, s[66:67]")
    e(f"buffer_store_dwordx4 {vr(KA+4,4)}, v6, s[20:23], s70 offen offset:2048")
    e(f"buffer_store_dwordx4 {vr(KA,4)}, v6, s[20:23], s70 offen")
    G.ts_end(6)
    e("s_branch K1_END")
    lab("K1_ATTB")
    R = [32, 72]
    for hh in range(2):
        b = R[hh]
        e(f"ds_read2_b64 {vr(b,4)}, v2 offset0:{7*hh} offset1:{7*hh+1}")
        e(f"ds_read2_b64 {vr(b+4,4)}, v3 offset0:{14+7*hh} offset1:{15+7*hh}")
        e(f"ds_read2_b64 {vr(b+8,4)}, v2 offset0:{14+7*hh} offset1:{15+7*hh}")
    for hh in range(2):
        b = R[hh]
        for db in range(2):
            for kb in range(2): e(f"ds_read_b64_tr_b16 {vr(b+12+4*db+2*kb,2)}, v4 offset:{224+56*hh+32*db+16*TS*kb}")
    for hh in range(2):
        b = R[hh]
        e(f"s_waitcnt lgkmcnt({11-3*hh})")
        e(f"v_cndmask_b32 v{b+2}, v{b+2}, 0, s[66:67]"); e(f"v_cndmask_b32 v{b+3}, v{b+3}, 0, s[66:67]"); e("s_nop 1")
        e(f"v_mfma_f32_16x16x32_bf16 {vr(b+20,4)}, {vr(b+4,4)}, {vr(b,4)}, {vr(CM,4)}")
        e(f"v_mfma_f32_16x16x32_bf16 {vr(b+24,4)}, {vr(b+8,4)}, {vr(b,4)}, {vr(CM+4,4)}")
    e("s_nop 7"); e("s_nop 1")
    def both(f):
        for hh in range(2): f(R[hh])
    for hh in range(2):
        b = R[hh]
        for i in range(4): e(f"v_cndmask_b32 v{b+28+i}, v{b+20+2*i}, v{b+21+2*i}, s[64:65]")
    both(lambda b: e(f"v_max3_f32 v{b+32}, v{b+28}, v{b+29}, v{b+30}"))
    both(lambda b: e(f"v_max_f32 v{b+32}, v{b+32}, v{b+31}"))
    for pl in ("v_permlane32_swap_b32", "v_permlane16_swap_b32"):
        both(lambda b: e(f"v_mov_b32 v{b+33}, v{b+32}")); e("s_nop 0")
        both(lambda b: e(f"{pl} v{b+32}, v{b+33}")); e("s_nop 0")
        both(lambda b: e(f"v_max_f32 v{b+32}, v{b+32}, v{b+33}"))
    both(lambda b: e(f"v_mul_f32 v{b+32}, s68, v{b+32}"))
    for u in range(2):
        both(lambda b: e(f"v_pk_fma_f32 {vr(b+28+2*u,2)}, {vr(b+28+2*u,2)}, s[68:69], {vr(b+32,2)} op_sel_hi:[1,1,0] neg_lo:[0,0,1] neg_hi:[0,0,1]"))
    for hh in range(2):
        b = R[hh]
        for i in range(4): e(f"v_exp_f32 v{b+28+i}, v{b+28+i}")
    for hh in range(2):
        b = R[hh]
        for i in range(4): cvt_pk(b + 28 + i, b + 28 + i, b + 28 + i)
        for i in range(4): e(f"v_and_b32 v{b+28+i}, v8, v{b+28+i}")
        e(f"s_waitcnt lgkmcnt({4 if hh == 0 else 0})"); e("s_nop 1")
        e(f"v_mfma_f32_16x16x32_bf16 {vr(b+36,4)}, v[12:15], {vr(b+28,4)}, 0")
        for db in range(2):
            e(f"v_mfma_f32_16x16x32_bf16 {vr(b+20+4*db,4)}, {vr(b+12+4*db,4)}, {vr(b+28,4)}, 0")
    e("s_nop 3")
    e(f"v_rcp_f32 v{R[0]+36}, v{R[0]+36}")
    e("s_nop 7")
    e(f"v_rcp_f32 v{R[1]+36}, v{R[1]+36}")
    for hh in range(2):
        b = R[hh]
        if hh: e("s_nop 1")
        for i in range(4): e(f"v_pk_mul_f32 {vr(b+20+2*i,2)}, {vr(b+20+2*i,2)}, {vr(b+36,2)} op_sel_hi:[1,0]")
        for db in range(2):
            cvt_pk(b + 2 * db, b + 20 + 4 * db, b + 21 + 4 * db); cvt_pk(b + 2 * db + 1, b + 22 + 4 * db, b + 23 + 4 * db)
            e(f"buffer_store_dwordx2 {vr(b+2*db,2)}, v{6+db}, s[20:23], s70 offen offset:{56*hh+32*db}")
    G.ts_end(6)
    lab("K1_END")
    e("s_endpgm")
```

```python
import sys, os
VAR = os.environ.get("VAR", "")
NAME = "concat_heads__linear_attn_block__sliding_local_dilated__prompt"
OUT = os.environ.get("OUT", f"cdna_kernels/{NAME}.s")

L = []
STPOL = os.environ.get("STPOL", "")
def e(s=""):
    if STPOL and s.startswith("buffer_store"): s = s + " " + STPOL
    L.append("    " + s if s and not s.endswith(":") else s)
def lab(s): L.append(s + ":")

WS_PQA = 0
WS_OB = 0x200000
WS_KVP = 0x400000
WS_ZP = 0x500000
WS_WOT = 0x600000
WS_KVT = 0x700000
WS_ZC = 0x780000
WS_END = 0x1000000 if "ts" in VAR.split("_") else 0x800000

def vr(a, n=1): return f"v{a}" if n == 1 else f"v[{a}:{a+n-1}]"
def ar(a, n=1): return f"a{a}" if n == 1 else f"a[{a}:{a+n-1}]"

def srd(dst, ptr_lo, nbytes):
    e(f"s_mov_b32 s{dst}, s{ptr_lo}")
    e(f"s_and_b32 s{dst+1}, s{ptr_lo+1}, 0xffff")
    e(f"s_mov_b32 s{dst+2}, {nbytes}")
    e(f"s_mov_b32 s{dst+3}, 0x00020000")

def kernel_header(name):
    L.append(".p2align 8"); L.append(f".globl {name}"); L.append(f".type {name},@function"); lab(name)

def kd(name, nvgpr, accum, nsgpr=100):
    return f""".p2align 6
.amdhsa_kernel {name}
  .amdhsa_next_free_vgpr {nvgpr}
  .amdhsa_next_free_sgpr {nsgpr}
  .amdhsa_accum_offset {accum}
  .amdhsa_group_segment_fixed_size 0
  .amdhsa_kernarg_size 72
  .amdhsa_user_sgpr_count 2
  .amdhsa_user_sgpr_kernarg_segment_ptr 1
  .amdhsa_system_sgpr_workgroup_id_x 1
.end_amdhsa_kernel"""

def cvt_pk(dst, a, b): e(f"v_cvt_pk_bf16_f32 v{dst}, v{a}, v{b}")
def unpk_lo(dst, src): e(f"v_lshlrev_b32 v{dst}, 16, v{src}")
def unpk_hi(dst, src): e(f"v_and_b32 v{dst}, 0xffff0000, v{src}")

K1 = NAME + "_k1_kernel"; K2 = NAME + "_k2_kernel"; K3 = NAME + "_k3_kernel"
OOB = "0x7fff0000"
XREG = 144 * 64
WSr = 352
SLOT = XREG + 32 * WSr + 1024
NSLOT = 7
K1_LDS = NSLOT * SLOT
TS = 352
NCH = 14


sys.path.insert(0, "gen")
import k1v2 as k1new
def ts(n):
    if "ts" not in VAR.split("_"): return
    e("s_memtime s[98:99]"); e("s_waitcnt lgkmcnt(0)"); e(f"v_writelane_b32 v255, s98, {n}")
    if n == 0:
        e("s_memrealtime s[98:99]"); e("s_waitcnt lgkmcnt(0)"); e(f"v_writelane_b32 v255, s98, 62")
def ts_flush(n):
    if "ts" not in VAR.split("_"): return
    e("v_and_b32 v254, 63, v0"); e("v_lshlrev_b32 v254, 2, v254"); e("s_lshl_b32 s98, s2, 11"); e("s_lshl_b32 s99, s27, 8"); e("s_add_u32 s98, s98, s99"); e("s_add_u32 s98, s98, 0x800000")
    e("buffer_store_dword v255, v254, s[20:23], s98 offen")
def ts_end(n):
    if "ts" not in VAR.split("_"): return
    ts(n); e("s_waitcnt vmcnt(0)"); ts(n + 1)
    e("s_memrealtime s[98:99]"); e("s_waitcnt lgkmcnt(0)"); e(f"v_writelane_b32 v255, s98, 63")
    ts_flush(n + 2)
TSON = "ts" in VAR.split("_")
def ts2(n):
    if not TSON: return
    e("s_memtime s[98:99]"); e("s_waitcnt lgkmcnt(0)"); e(f"v_writelane_b32 v255, s98, {n}")
    if n == 0:
        e("s_memrealtime s[98:99]"); e("s_waitcnt lgkmcnt(0)"); e(f"v_writelane_b32 v255, s98, 62")
def ts2_end(n, area):
    if not TSON: return
    ts2(n); e("s_waitcnt vmcnt(0)"); ts2(n + 1)
    e("s_memrealtime s[98:99]"); e("s_waitcnt lgkmcnt(0)"); e(f"v_writelane_b32 v255, s98, 63")
    e("v_and_b32 v254, 63, v0"); e("v_lshlrev_b32 v254, 2, v254"); e("s_lshl_b32 s98, s2, 11"); e("s_lshl_b32 s99, s27, 8"); e("s_add_u32 s98, s98, s99"); e(f"s_add_u32 s98, s98, {area}")
    e("buffer_store_dword v255, v254, s[20:23], s98 offen")
def gen_k1():
    k1new.gen_k1(sys.modules[__name__])


SC = " sc0 sc1"
RB0, RW0 = 65536, 122880
def oslot(rb, h):
    k = rb * 16 + h
    if k < 48: return k * 1024
    if k < 56: return 57344 + (k - 48) * 1024
    return RB0 + 3 * 8192 + (k - 56) * 1024
def wchunk(c):
    return RW0 + 8192 * c if c < 5 else RB0 + 8192 * (c - 5)

def gen_k2():
    kernel_header(K2)
    e("s_cmp_ge_u32 s2, 256"); e("s_cbranch_scc1 K2_END")
    ts2(0)
    e("s_load_dwordx2 s[6:7], s[0:1], 48"); e("s_load_dwordx2 s[8:9], s[0:1], 64")
    e("v_lshrrev_b32 v1, 6, v0"); e("v_and_b32 v16, 15, v0"); e("v_readfirstlane_b32 s27, v1")
    e("v_bfe_u32 v17, v0, 4, 2"); e("v_and_b32 v5, 63, v0")
    e("s_cmp_ge_u32 s2, 32"); e("s_cbranch_scc1 K2_TILE")
    if "nopro" in VAR: e("s_branch K2_END")
    e("s_cmp_ge_u32 s27, 4"); e("s_cbranch_scc1 K2_END")
    e("s_lshr_b32 s24, s2, 1"); e("s_and_b32 s25, s2, 1")
    e("v_lshrrev_b32 v2, 4, v0")
    e("v_lshrrev_b32 v3, 2, v2"); e("v_and_b32 v4, 3, v2"); e("v_mul_u32_u24 v3, 7, v3"); e("v_add_u32 v3, v3, v4")
    e("s_lshl_b32 s26, s25, 2"); e("v_add_u32 v3, s26, v3"); e("v_add_u32 v4, s26, v4"); e("v_cmp_eq_u32 vcc, 7, v4")
    e("v_mov_b32 v4, 28"); e("s_lshl_b32 s26, s24, 12"); e("v_cndmask_b32 v3, v3, v4, vcc")
    e("v_lshlrev_b32 v3, 7, v3"); e("v_lshl_add_u32 v3, v16, 3, v3"); e("v_add_u32 v3, s26, v3")
    e("s_waitcnt lgkmcnt(0)")
    srd(20, 8, WS_END)
    ts2(1)
    for rt in range(16):
        e(f"s_mov_b32 s35, {WS_KVP+65536*rt}"); e(f"buffer_load_dwordx2 {vr(32+2*rt,2)}, v3, s[20:23], s35 offen")
    ts2(2)
    e("v_lshrrev_b32 v6, 2, v16"); e("v_lshl_add_u32 v6, v6, 4, v2"); e("v_and_b32 v7, 3, v16"); e("v_lshl_add_u32 v6, v6, 2, v7")
    e("v_lshlrev_b32 v6, 2, v6"); e("s_lshl_b32 s26, s2, 10"); e("v_add_u32 v6, s26, v6")
    e("v_cmp_lt_u32 vcc, 13, v16"); e(f"s_mov_b32 s38, {WS_KVT}")
    for rt in range(1, 16):
        e(f"s_waitcnt vmcnt({15-rt})"); e(f"v_pk_add_f32 v[32:33], v[32:33], {vr(32+2*rt,2)}");
    ts2(3)
    e("s_nop 0"); cvt_pk(34, 32, 33); e("s_nop 0"); e("v_cndmask_b32 v34, v34, 0, vcc")
    e("buffer_store_dword v34, v6, s[20:23], s38 offen" + SC)
    ts2_end(6, 0x900000)
    e("s_branch K2_END")
    lab("K2_TILE")
    e("s_sub_u32 s3, s2, 32")
    e("s_lshr_b32 s26, s3, 3"); e("s_mul_hi_u32 s24, s26, 0x24924925"); e("s_mul_i32 s25, s24, 7"); e("s_sub_u32 s25, s26, s25")
    e("s_and_b32 s26, s3, 7"); e("s_lshl_b32 s26, s26, 2"); e("s_add_u32 s24, s24, s26")
    e("s_lshr_b32 s30, s27, 1"); e("s_and_b32 s31, s27, 1")
    e("s_lshl_b32 s28, s24, 6"); e("s_lshl_b32 s26, s25, 6")
    e("s_movk_i32 s29, 896")
    e("s_lshl_b32 s32, s27, 3"); e("s_add_u32 s33, s32, s28"); e("s_add_u32 s32, s32, s26")
    e("v_lshrrev_b32 v6, 3, v5"); e("v_and_b32 v7, 7, v5")
    e("s_lshl_b32 s35, s31, 2"); e("v_add_u32 v8, s35, v17"); e("v_xor_b32 v8, v8, v7")
    e("v_add_u32 v9, s33, v6"); e("v_mul_lo_u32 v2, v9, s29"); e("v_lshl_add_u32 v2, v8, 4, v2")
    e("s_and_b32 s35, s27, 3"); e("s_lshl_b32 s35, s35, 1"); e("v_and_b32 v8, 1, v17"); e("v_add_u32 v8, s35, v8"); e("v_xor_b32 v8, v8, v7")
    e("v_add_u32 v9, s32, v6"); e("v_mul_lo_u32 v3, v9, s29"); e("v_lshl_add_u32 v3, v8, 4, v3")
    e("s_lshl_b32 s34, s27, 10")
    e("s_waitcnt lgkmcnt(0)")
    srd(20, 8, WS_END)
    ts2(1)
    def dmaB(c):
        return [[f"s_mov_b32 s36, {WS_OB+128*c}", f"s_add_u32 m0, s34, {c*8192}", "s_nop 0", "buffer_load_dwordx4 v2, s[20:23], s36 offen lds"],
                [f"s_mov_b32 s37, {WS_WOT+0x80000+128*c}", f"s_add_u32 m0, s34, {RB0+c*8192}", "s_nop 0", "buffer_load_dwordx4 v3, s[20:23], s37 offen lds"]]
    def dmaW(c):
        return [[f"s_mov_b32 s36, {WS_WOT+128*c}", f"s_add_u32 m0, s34, {wchunk(c)}", "s_nop 0", "buffer_load_dwordx4 v4, s[20:23], s36 offen lds"]]
    PQ, KV, ACC, FR, S1 = 32, 64, 80, 88, 216
    def ldpq():
        return [[f"buffer_load_dwordx4 {vr(PQ+8*rb+4*hh,4)}, v{10+(rb>>1)}, s[20:23], s{40+(rb&1)} offen offset:{1024*hh}"] for rb in range(4) for hh in range(2)]
    def ldkv():
        return [[f"buffer_load_dwordx4 {vr(KV+4*k,4)}, v12, s[20:23], s42 offen offset:{1024*k}" + SC] for k in range(4)]
    for c in range(4):
        for g in dmaB(c):
            for x in g: e(x)
    srd(16, 6, 2048 * 1792)
    e("v_lshlrev_b32 v4, 10, v9"); e("v_lshl_add_u32 v4, v8, 4, v4")
    e("s_lshl_b32 s35, s24, 16"); e("s_lshl_b32 s36, s27, 11"); e("s_add_u32 s35, s35, s36")
    e("v_lshlrev_b32 v13, 4, v5"); e("v_add_u32 v10, s35, v13"); e("v_add_u32 v11, 32768, v10")
    e("s_mov_b32 s40, 0"); e("s_movk_i32 s41, 16384")
    e("s_lshl_b32 s36, s27, 12"); e("v_add_u32 v12, s36, v13"); e(f"s_mov_b32 s42, {WS_KVT}")
    e("v_lshrrev_b32 v6, 1, v16"); e("v_xor_b32 v6, v6, v17"); e("v_lshlrev_b32 v6, 4, v6")
    e("s_lshl_b32 s35, s30, 11"); e("v_lshl_add_u32 v20, v16, 7, v6"); e("v_add_u32 v20, s35, v20"); e("v_xor_b32 v21, 64, v20")
    e("v_lshrrev_b32 v7, 2, v16"); e("v_and_b32 v8, 3, v16"); e("v_lshl_add_u32 v7, v7, 3, v8")
    e("s_lshl_b32 s35, s31, 12"); e(f"s_add_u32 s35, s35, {RB0}"); e("v_lshl_add_u32 v22, v7, 7, v6"); e("v_add_u32 v22, s35, v22"); e("v_xor_b32 v23, 64, v22")
    e(f"v_add_u32 v24, {RW0-RB0}, v22"); e(f"v_add_u32 v25, {RW0-RB0}, v23")
    e(f"v_add_u32 v26, {RB0}, v13")
    e("s_mov_b32 s43, 0x358637bd")
    e("s_lshl_b32 s29, s30, 4"); e("s_add_u32 s28, s28, s29"); e("s_lshl_b32 s29, s31, 5"); e("s_add_u32 s26, s26, s29")
    e("v_add_u32 v14, s28, v16"); e("s_movk_i32 s29, 1792"); e("v_mul_lo_u32 v14, v14, s29"); e("v_lshl_add_u32 v14, v17, 4, v14")
    e("s_lshl_b32 s29, s26, 1"); e("v_add_u32 v14, s29, v14")
    SETS = [FR, FR + 48]
    def reads(q):
        b = SETS[q & 1]; r = []
        for jl in range(4 if q < 3 else 2):
            c = 2 * q + (jl >> 1); ks = jl & 1
            g = [f"ds_read_b128 {vr(b+4*jl,4)}, v{20+ks} offset:{c*8192}"]
            for cb in range(2): g.append(f"ds_read_b128 {vr(b+16+16*cb+4*jl,4)}, v{22+ks} offset:{c*8192+512*cb}")
            r.append(g)
        return r
    e("s_waitcnt vmcnt(4)"); e("s_barrier")
    ts2(2)
    for g in reads(0):
        for x in g: e(x)
    for c in (4, 5):
        for g in dmaB(c):
            for x in g: e(x)
    e("s_waitcnt lgkmcnt(0)")
    LD = [dmaB(6) + ldpq(), ldkv() + sum([dmaW(c) for c in range(7)], []), dmaW(7), []]
    WV = (4, 10, 19)
    for q in range(4):
        b = SETS[q & 1]
        nst = 4 if q < 3 else 2
        rd = []; ld = LD[q]
        if q < 3:
            e(f"s_waitcnt vmcnt({WV[q]})"); e("s_barrier")
            ts2(3 + q)
            rd = reads(q + 1)
        per = -(-len(ld) // nst)
        for jl in range(nst):
            g = rd.pop(0) if rd else []
            for cb in range(2):
                a = ACC + 4 * cb
                e(f"v_mfma_f32_16x16x32_bf16 {vr(a,4)}, {vr(b+16+16*cb+4*jl,4)}, {vr(b+4*jl,4)}, {vr(a,4) if (q or jl) else 0}")
                for _ in range(2):
                    if g: e(g.pop(0))
            assert not g
            for _ in range(per):
                if ld:
                    for x in ld.pop(0): e(x)
        assert not rd and not ld
        if q < 3: e("s_waitcnt lgkmcnt(0)")
    e("s_mov_b32 s44, 0")
    e("s_waitcnt vmcnt(8)")
    ts2(6)
    def check():
        e(f"v_max3_u32 v6, v{KV}, v{KV+1}, v{KV+2}")
        for k in range(3, 15, 2): e(f"v_max3_u32 v6, v6, v{KV+k}, v{KV+k+1}")
        e(f"v_max_u32 v6, v6, v{KV+15}"); e("v_cmp_eq_u32 vcc, -1, v6")
    check()
    for k in range(4): cvt_pk(S1 + k, ACC + 2 * k, ACC + 2 * k + 1)
    e(f"buffer_store_dwordx4 {vr(S1,4)}, v14, s[16:19], 0 offen offset:896")
    e("s_cbranch_vccz K2_GO")
    lab("K2_POLL")
    for g in ldkv(): e(g[0])
    e("s_add_u32 s44, s44, 1")
    e("s_waitcnt vmcnt(0)")
    check()
    e("s_nop 4"); e("s_cbranch_vccz K2_GO")
    e(f"s_cmp_lt_u32 s44, {4 if 'nopro' in VAR else 400}"); e("s_cbranch_scc1 K2_POLL")
    e("v_lshrrev_b32 v6, 2, v16"); e("v_and_b32 v7, 3, v16"); e("v_mul_u32_u24 v6, 7, v6"); e("v_add_u32 v6, v6, v7")
    e("v_add_u32 v8, 4, v6"); e("v_cmp_eq_u32 vcc, 3, v7"); e("v_mov_b32 v9, 28"); e("s_lshl_b32 s35, s27, 13"); e("v_cndmask_b32 v8, v8, v9, vcc")
    e("v_lshlrev_b32 v6, 7, v6"); e("v_lshl_add_u32 v6, v17, 5, v6"); e("v_add_u32 v6, s35, v6")
    e("v_lshlrev_b32 v8, 7, v8"); e("v_lshl_add_u32 v8, v17, 5, v8"); e("v_add_u32 v8, s35, v8")
    e("v_add_u32 v7, 4096, v6"); e("v_add_u32 v9, 4096, v8")
    for k in range(32): e(f"v_mov_b32 v{S1+k}, 0")
    e(f"s_mov_b32 s35, {WS_KVP}"); e("s_mov_b32 s44, 0")
    lab("K2_FB")
    for k, v in enumerate((6, 8, 7, 9)):
        for u in range(2): e(f"buffer_load_dwordx4 {vr(FR+8*k+4*u,4)}, v{v}, s[20:23], s35 offen offset:{16*u}")
    e("s_add_u32 s35, s35, 65536"); e("s_add_u32 s44, s44, 1")
    e("s_waitcnt vmcnt(0)")
    for k in range(16): e(f"v_pk_add_f32 {vr(S1+2*k,2)}, {vr(S1+2*k,2)}, {vr(FR+2*k,2)}")
    e("s_cmp_lt_u32 s44, 16"); e("s_cbranch_scc1 K2_FB")
    e("v_cmp_eq_u32 vcc, 3, v17")
    for k in range(16): cvt_pk(KV + k, S1 + 2 * k, S1 + 2 * k + 1)
    for k in range(4):
        for u in (2, 3): e(f"v_cndmask_b32 v{KV+4*k+u}, v{KV+4*k+u}, 0, vcc")
    lab("K2_GO")
    ts2(7)
    items = [(rb, hh) for rb in range(4) for hh in range(2)]
    def s1valu(k):
        rb, hh = items[k]; a = S1 + 8 * (k & 3); o = PQ + 8 * rb + 4 * hh
        e(f"v_add_f32 v{a+7}, s43, v{a+7}"); e(f"v_rcp_f32 v{a+7}, v{a+7}"); e("s_nop 0")
        for u in range(3): e(f"v_pk_mul_f32 {vr(a+2*u,2)}, {vr(a+2*u,2)}, {vr(a+6,2)} op_sel:[0,1] op_sel_hi:[1,1]")
        e(f"v_mul_f32 v{a+6}, v{a+6}, v{a+7}")
        for u in range(3): cvt_pk(o + u, a + 2 * u, a + 2 * u + 1)
        e(f"v_cvt_pk_bf16_f32 v{o+3}, v{a+6}, 0")
        for w in range(1):
            pass
    e("s_lshl_b32 s35, s27, 11"); e("v_add_u32 v27, s35, v13")
    e(f"s_mov_b32 s35, {RB0+24576-8192}"); e(f"s_cmp_lt_u32 s27, 4"); e(f"s_cselect_b32 s35, 57344, s35"); e("v_add_u32 v28, s35, v27")
    for k in range(10):
        if k < 8:
            rb, hh = items[k]; a = S1 + 8 * (k & 3)
            for eb in range(2):
                e(f"v_mfma_f32_16x16x32_bf16 {vr(a+4*eb,4)}, {vr(KV+8*hh+4*eb,4)}, {vr(PQ+8*rb+4*hh,4)}, 0")
        else: e("s_nop 7")
        if k >= 2:
            s1valu(k - 2)
            rb, hh = items[k - 2]; o = PQ + 8 * rb + 4 * hh
            if rb < 3: e(f"ds_write_b128 v27, {vr(o,4)} offset:{rb*16384+1024*hh}")
            else: e(f"ds_write_b128 v28, {vr(o,4)} offset:{1024*hh}")
    e("s_waitcnt vmcnt(0) lgkmcnt(0)")
    ts2(8)
    e("s_barrier")
    ts2(9)
    e("s_lshl_b32 s35, s30, 14"); e("v_add_u32 v27, s35, v13")
    AF = [PQ + 4 * h for h in range(8)] + [S1 + 4 * h for h in range(8)]
    def rd2(h):
        c = h >> 1; ks = h & 1
        r = []
        for cb in range(2):
            if c < 5: r.append(f"ds_read_b128 {vr(FR+8*h+4*cb,4)}, v{24+ks} offset:{c*8192+512*cb}")
            else: r.append(f"ds_read_b128 {vr(FR+8*h+4*cb,4)}, v{22+ks} offset:{(c-5)*8192+512*cb}")
        return r
    for variant in range(2):
        if variant == 0:
            e("s_cmp_eq_u32 s30, 3"); e("s_cbranch_scc1 K2_S2B")
        else: lab("K2_S2B")
        def rdA(h):
            if variant == 0: return f"ds_read_b128 {vr(AF[h],4)}, v27 offset:{1024*h}"
            o = oslot(3, h)
            return f"ds_read_b128 {vr(AF[h],4)}, v13 offset:{o}" if o < 65536 else f"ds_read_b128 {vr(AF[h],4)}, v26 offset:{o-RB0}"
        D = 4
        for h in range(16 + D):
            if h < 16:
                e(rdA(h))
                for x in rd2(h): e(x)
            if h >= D:
                hh = h - D
                e(f"s_waitcnt lgkmcnt({3*min(D, 15-hh)})")
                for cb in range(2):
                    a = ACC + 4 * cb
                    e(f"v_mfma_f32_16x16x32_bf16 {vr(a,4)}, {vr(FR+8*hh+4*cb,4)}, {vr(AF[hh],4)}, {vr(a,4) if hh else 0}")
        if variant == 0: e("s_branch K2_FIN")
    lab("K2_FIN")
    e("s_nop 7"); e("s_nop 7")
    for k in range(4): cvt_pk(32 + k, ACC + 2 * k, ACC + 2 * k + 1)
    e("buffer_store_dwordx4 v[32:35], v14, s[16:19], 0 offen")
    ts2_end(10, 0x900000)
    lab("K2_END")
    e("s_endpgm")

def main():
    hdr = open(f"cdna_kernels/{NAME}.s.ref").read().split("\n")
    top = [l for l in hdr if l.startswith(";") and "@launch" not in l]
    top.append(f"; @launch kernel={K1} grid=(256,1,1) block=(512,1,1) lds={k1new.K1_LDS}")
    top.append(f"; @launch kernel={K2} grid=(256,1,1) block=(512,1,1) lds=163840")
    L.extend(top)
    L.append('.amdgcn_target "amdgcn-amd-amdhsa--gfx950"'); L.append(".text")
    gen_k1(); gen_k2()
    L.append('.section .rodata,"a"')
    L.append(kd(K1, 256, 256)); L.append(kd(K2, 256, 256))
    open(OUT, "w").write("\n".join(L) + "\n")
main()
```

```python
import sys, os
VAR = os.environ.get("VAR", "")
VS = VAR.split("_")
NAME = "concat_heads__linear_attn_block__sliding_local_dilated__prompt"
OUT = os.environ.get("OUT", f"cdna_kernels/{NAME}.s")
L = []
def e(s=""): L.append("    " + s if s and not s.endswith(":") else s)
def lab(s): L.append(s + ":")

WS_PQA = 0
WS_OB = 0x200000
WS_KVP = 0x400000
WS_KVT = 0x500000
WS_F = 0x580000
WS_E1 = 0x590000
WS_E2 = 0x591000
WS_E3 = 0x592000
WS_TS = 0x800000
WS_PRIV = 0x1000000
WS_END = WS_PRIV + 128 * 0x100000
LIMIT = int(os.environ.get("LIMIT", "4000"))
WD = [int(x) for x in os.environ.get("WD", "0,10,9").split(",")]
TCN = int(os.environ.get("TCN", "6"))
MLO, MHI = 0x7f4a7c15 & ~15, 0x9e3779b9
SC = " sc0 sc1"

def vr(a, n=1): return f"v{a}" if n == 1 else f"v[{a}:{a+n-1}]"
def srd(dst, ptr_lo, nbytes):
    e(f"s_mov_b32 s{dst}, s{ptr_lo}"); e(f"s_and_b32 s{dst+1}, s{ptr_lo+1}, 0xffff")
    e(f"s_mov_b32 s{dst+2}, {nbytes}"); e(f"s_mov_b32 s{dst+3}, 0x00020000")
def kd(name, nvgpr, accum, nsgpr=100):
    return f""".p2align 6
.amdhsa_kernel {name}
  .amdhsa_next_free_vgpr {nvgpr}
  .amdhsa_next_free_sgpr {nsgpr}
  .amdhsa_accum_offset {accum}
  .amdhsa_group_segment_fixed_size 0
  .amdhsa_kernarg_size 72
  .amdhsa_user_sgpr_count 2
  .amdhsa_user_sgpr_kernarg_segment_ptr 1
  .amdhsa_system_sgpr_workgroup_id_x 1
.end_amdhsa_kernel"""
def cvt_pk(dst, a, b): e(f"v_cvt_pk_bf16_f32 v{dst}, v{a}, v{b}")
def unpk_lo(dst, src): e(f"v_lshlrev_b32 v{dst}, 16, v{src}")
def unpk_hi(dst, src): e(f"v_and_b32 v{dst}, 0xffff0000, v{src}")
KN = NAME + "_kernel"
OOB = "0x7fff0000"
TSON = "ts" in VS
def ts(n):
    if not TSON: return
    e("s_memtime s[98:99]"); e("s_waitcnt lgkmcnt(0)"); e(f"v_writelane_b32 v255, s98, {n}")
    if n == 0:
        e("s_memrealtime s[98:99]"); e("s_waitcnt lgkmcnt(0)"); e("v_writelane_b32 v255, s98, 62")
def ts_end(n):
    if not TSON: return
    ts(n); e("s_waitcnt vmcnt(0)"); ts(n + 1)
    e("s_memrealtime s[98:99]"); e("s_waitcnt lgkmcnt(0)"); e("v_writelane_b32 v255, s98, 63")
    e("v_and_b32 v254, 63, v0"); e("v_lshlrev_b32 v254, 2, v254"); e("s_lshl_b32 s98, s2, 11"); e("s_lshl_b32 s99, s27, 8")
    e("s_add_u32 s98, s98, s99"); e(f"s_add_u32 s98, s98, {WS_TS}")
    e("buffer_store_dword v255, v254, s[20:23], s98 offen")

class Q:
    def __init__(self, name, mx): self.q = []; self.name = name; self.mx = mx
    def issue(self, ins, tag=None): e(ins); self.q.append(tag)
    def wait(self, tag):
        if tag not in self.q: return
        i = len(self.q) - 1 - self.q[::-1].index(tag)
        n = len(self.q) - 1 - i
        e(f"s_waitcnt {self.name}({min(n, self.mx)})"); self.q = self.q[i + 1:]
    def all(self): e(f"s_waitcnt {self.name}(0)"); self.q = []

XS = 144 * 128
WSr = 352
WH = 32 * WSr
STG = XS + 2 * WH
LDS = 4 * STG
TS = 352
NST = 7
TB = 12 * 6272
HB = TB + 144 * TS
ST = 155648
_n = [0]
def uid(): _n[0] += 1; return _n[0]
def st2(ins):
    k = uid()
    e("s_cmp_eq_u32 s92, 0"); e(f"s_cbranch_scc1 SL{k}"); e(ins); e(f"s_branch SD{k}")
    lab(f"SL{k}"); e(ins + SC); lab(f"SD{k}")
def chk(a, t0, xcc=None):
    e(f"v_xor_b32 v{a}, {hex(MLO)}, v{a}"); e(f"v_xor_b32 v{a+1}, {hex(MHI)}, v{a+1}")
    if xcc is not None: e(f"v_and_b32 v{xcc}, 15, v{a}"); e(f"v_xor_b32 v{xcc}, s88, v{xcc}")
    e(f"v_sub_co_u32 v{a}, vcc, v{a}, v{t0}"); e("s_nop 1")
    e(f"v_subb_co_u32 v{a+1}, vcc, v{a+1}, v{t0+1}, vcc")
    e(f"v_lshrrev_b32 v{a}, 24, v{a}")
    if xcc is not None: e(f"v_or3_b32 v{a}, v{a}, v{a+1}, v{xcc}")
    else: e(f"v_or_b32 v{a}, v{a}, v{a+1}")
    e(f"v_cmp_ne_u32 vcc, 0, v{a}"); e("s_nop 4")
def mkflag():
    e("s_andn2_b32 s90, s90, 15"); e("s_or_b32 s90, s90, s88"); e(f"s_xor_b32 s90, s90, {hex(MLO)}"); e(f"s_xor_b32 s91, s91, {hex(MHI)}")

def gen():
    L.append(".p2align 8"); L.append(f".globl {KN}"); L.append(f".type {KN},@function"); lab(KN)
    e("s_cmp_ge_u32 s2, 256"); e("s_cbranch_scc1 K_END")
    if "onlyA" in VS: e("s_bitcmp1_b32 s2, 0"); e("s_cbranch_scc1 K_END")
    e("s_memrealtime s[86:87]")
    e("s_getreg_b32 s88, hwreg(HW_REG_XCC_ID)"); e("s_and_b32 s88, s88, 15")
    e("s_mov_b32 s95, s2"); e("s_mov_b32 s96, 0"); e("s_mov_b32 s97, 0")
    ts(0)
    lab("RESTART")
    e("s_and_b32 s24, s2, 1"); e("s_mul_i32 s29, s24, 24"); e("s_add_u32 s30, s0, s29"); e("s_addc_u32 s31, s1, 0")
    e("s_load_dwordx4 s[4:7], s[30:31], 0"); e("s_load_dwordx2 s[8:9], s[0:1], 64"); e("s_load_dwordx2 s[10:11], s[30:31], 16"); e("s_load_dwordx2 s[80:81], s[0:1], 48")
    e("v_lshrrev_b32 v1, 6, v0"); e("s_bfe_u32 s25, s2, 0x20001"); e("v_readfirstlane_b32 s27, v1")
    e("s_lshl_b32 s25, s25, 2"); e("s_bfe_u32 s26, s2, 0x20003"); e("s_add_u32 s25, s25, s26"); e("s_lshr_b32 s26, s2, 5")
    e("s_lshl_b32 s28, s25, 7")
    e("v_and_b32 v16, 15, v0"); e("v_bfe_u32 v17, v0, 4, 2"); e("v_and_b32 v5, 63, v0")
    e("s_cmp_lt_u32 s27, 4"); e("s_cbranch_scc1 K1_COMP")
    BIGN = "0xcfb2d05e"
    CM = 244
    def epi_pre(kind):
        sfx = kind
        e("s_cmp_eq_u32 s24, 0"); e(f"s_cbranch_scc1 K1_PA{sfx}")
        e("s_lshl_b32 s29, s27, 4"); e("s_add_u32 s30, s29, 16")
        e("v_add_u32 v2, s30, v16"); e(f"v_mul_u32_u24 v2, {TS}, v2"); e("v_lshl_add_u32 v2, v17, 4, v2"); e(f"v_add_u32 v2, {TB}, v2")
        e(f"v_subrev_u32 v3, {16*TS}, v2")
        e("v_lshrrev_b32 v4, 2, v16"); e("v_lshl_add_u32 v4, v17, 2, v4"); e("v_add_u32 v4, s29, v4")
        e(f"v_mul_u32_u24 v4, {TS}, v4"); e("v_and_b32 v8, 3, v16"); e("v_lshl_add_u32 v4, v8, 3, v4"); e(f"v_add_u32 v4, {TB}, v4")
        e("v_lshlrev_b32 v8, 2, v17"); e("v_sub_u32 v8, v16, v8"); e("v_add_u32 v8, 16, v8")
        e(f"v_mov_b32 v9, {BIGN}")
        for sl in range(8):
            kb, i = sl >> 2, sl & 3
            e(f"v_subrev_u32 v{CM+sl}, {16*kb+i}, v8"); e(f"v_alignbit_b32 v{CM+sl}, v{CM+sl}, v{CM+sl}, 1")
        for sl in range(8):
            e(f"v_cmp_ge_u32 vcc, 7, v{CM+sl}"); e("s_nop 1"); e(f"v_cndmask_b32 v{CM+sl}, v9, 0, vcc")
        e("s_add_u32 s30, s25, s27"); e("s_cmp_eq_u32 s30, 0"); e(f"s_cbranch_scc0 K1_NM{sfx}")
        for sl in range(4): e(f"v_mov_b32 v{CM+sl}, v9")
        lab(f"K1_NM{sfx}")
        e("v_and_b32 v8, 1, v16"); e("v_cmp_eq_u32 s[64:65], 1, v8"); e("v_cmp_eq_u32 s[66:67], 3, v17")
        e("v_mov_b32 v8, 0xffff"); e("v_mov_b32 v9, 0xffff0000"); e("v_cndmask_b32 v8, v8, v9, s[64:65]")
        e("s_lshl_b32 s30, s25, 3"); e("s_add_u32 s30, s30, s27"); e("s_lshl_b32 s30, s30, 14"); e("s_lshl_b32 s31, s26, 11"); e("s_add_u32 s30, s30, s31")
        e("v_lshlrev_b32 v6, 4, v5"); e("v_add_u32 v6, s30, v6")
        for i in range(4): e(f"v_mov_b32 v{12+i}, 0x3f803f80")
        e("s_mov_b32 s68, 0x3e8b97f6"); e("s_mov_b32 s69, 0x3e8b97f6"); e(f"s_mov_b32 s70, {WS_OB}")
        e(f"s_branch K1_PD{sfx}")
        lab(f"K1_PA{sfx}")
        e("v_mov_b32 v8, 0x3f80"); e("v_mov_b32 v9, 0x3f800000")
        e("s_mov_b32 s68, 0x3fb8aa3b"); e("s_mov_b32 s69, 0x3fb8aa3b"); e("s_mov_b32 s72, 0x358637bd"); e("s_mov_b32 s73, 0x358637bd")
        if kind == "c":
            e("v_lshrrev_b32 v4, 2, v16"); e("v_lshl_add_u32 v4, v17, 2, v4"); e("v_add_u32 v4, 16, v4")
            e(f"v_mul_u32_u24 v4, {TS}, v4"); e("v_and_b32 v3, 3, v16"); e("v_lshl_add_u32 v4, v3, 3, v4"); e(f"v_add_u32 v4, {TB}, v4")
            e("s_lshr_b32 s29, s27, 1"); e("s_and_b32 s30, s27, 1"); e("s_mul_i32 s31, s29, 56")
            e("s_lshl_b32 s34, s30, 5"); e("s_add_u32 s34, s34, s31"); e("s_add_u32 s34, s34, 112"); e("s_add_u32 s31, s31, 224")
            e("v_add_u32 v2, s34, v4"); e("v_add_u32 v3, s31, v4")
            for i in range(4): e(f"v_mov_b32 v{12+i}, 0x3f803f80")
            e("s_lshl_b32 s31, s26, 2"); e("s_add_u32 s31, s31, s27"); e("s_lshl_b32 s34, s25, 5"); e("s_add_u32 s31, s31, s34")
            e("s_lshl_b32 s34, s31, 11")
            e("v_lshlrev_b32 v6, 4, v5"); e("v_add_u32 v6, s34, v6")
            e("v_cmp_eq_u32 s[66:67], 12, v16")
            e("s_lshr_b32 s70, s95, 1"); e("s_lshl_b32 s70, s70, 20"); e(f"s_add_u32 s70, s70, {WS_PRIV}")
            e("s_cmp_eq_u32 s96, 0"); e(f"s_cselect_b32 s70, {WS_KVP}, s70")
        else:
            e("v_bfe_u32 v3, v0, 3, 5"); e("v_and_b32 v4, 3, v0"); e("v_bfe_u32 v7, v0, 2, 1")
            e("v_add_u32 v2, 16, v3"); e(f"v_mul_u32_u24 v2, {TS}, v2"); e("v_mul_u32_u24 v7, 56, v7"); e("v_add_u32 v2, v2, v7")
            e("v_lshl_add_u32 v2, v4, 4, v2"); e(f"v_add_u32 v2, {TB}, v2"); e("v_cmp_eq_u32 s[66:67], 3, v4")
            e("v_lshrrev_b32 v6, 4, v3"); e("v_lshlrev_b32 v6, 14, v6"); e("v_and_b32 v3, 15, v3"); e("v_lshl_add_u32 v6, v3, 4, v6")
            e("v_and_b32 v4, 7, v0"); e("v_lshl_add_u32 v6, v4, 8, v6")
            e("s_lshl_b32 s29, s26, 11"); e("s_lshl_b32 s30, s28, 10"); e("s_add_u32 s29, s29, s30"); e("v_add_u32 v6, s29, v6")
            for i in range(1, 4): e(f"s_mov_b32 s{74+i}, {32768*i}")
        lab(f"K1_PD{sfx}")
    e("s_sub_u32 s38, s27, 4")
    e("v_lshrrev_b32 v6, 3, v5"); e("v_and_b32 v7, 7, v5"); e("v_xor_b32 v7, v7, v17")
    e("s_lshl_b32 s29, s38, 5"); e("s_add_u32 s29, s29, s28"); e("s_sub_u32 s29, s29, 16")
    e("v_add_u32 v6, s29, v6"); e("s_movk_i32 s31, 896"); e("v_mul_lo_u32 v6, v6, s31")
    e("v_lshl_add_u32 v20, v7, 4, v6"); e("v_xor_b32 v7, 4, v7"); e("v_lshl_add_u32 v21, v7, 4, v6"); e("v_add_u32 v21, 7168, v21")
    e("v_add_u32 v22, 14336, v20"); e("v_add_u32 v23, 14336, v21")
    def wvoff(dst, add):
        e(f"s_add_u32 s30, s38, {add}"); e("s_lshl_b32 s30, s30, 6"); e("v_add_u32 v6, s30, v5")
        e("s_mov_b32 s31, 0xba2e8bb"); e("v_mul_hi_u32 v7, v6, s31")
        e("v_mul_u32_u24 v9, 22, v7"); e("v_sub_u32 v9, v6, v9")
        e("s_mov_b32 s31, 0x24924925"); e("v_mul_hi_u32 v10, v9, s31")
        e("v_mul_u32_u24 v11, 7, v10"); e("v_sub_u32 v11, v9, v11")
        e("v_bfe_u32 v12, v7, 2, 2"); e("v_lshrrev_b32 v13, 4, v7"); e("v_and_b32 v7, 3, v7")
        e("v_lshl_add_u32 v7, v12, 3, v7"); e("v_lshl_add_u32 v7, v13, 2, v7")
        e(f"v_mul_u32_u24 v{dst}, 2688, v7"); e("v_mul_u32_u24 v10, 896, v10"); e(f"v_add_u32 v{dst}, v{dst}, v10")
        e(f"v_lshl_add_u32 v{dst}, v11, 4, v{dst}"); e(f"v_add_u32 v{dst}, s33, v{dst}")
        e("v_cmp_eq_u32 vcc, 21, v9"); e(f"v_mov_b32 v10, {OOB}"); e(f"v_add_u32 v{dst+1}, {32*2688}, v{dst}")
        e(f"v_cndmask_b32 v{dst}, v{dst}, v10, vcc"); e(f"v_cndmask_b32 v{dst+1}, v{dst+1}, v10, vcc")
    e("s_mul_i32 s33, s26, 112")
    wvoff(26, 0); wvoff(28, 4)
    e("s_cmp_eq_u32 s38, 3"); e("s_cbranch_scc1 K1_H3")
    wvoff(24, 8)
    e("s_branch K1_H3D")
    lab("K1_H3")
    e("v_add_u32 v24, 28672, v20"); e("v_add_u32 v25, 28672, v21")
    lab("K1_H3D")
    e("s_lshl_b32 s52, s38, 12")
    for i in range(1, 4): e(f"s_add_u32 s{52+i}, s52, {1024*i}")
    e("s_lshl_b32 s58, s38, 10"); e(f"s_add_u32 s58, s58, {XS}"); e(f"s_add_u32 s59, s58, {WH}")
    e("s_add_u32 s60, s58, 4096"); e("s_add_u32 s61, s59, 4096")
    e("s_add_u32 s56, s58, 8192"); e("s_add_u32 s57, s59, 8192")
    e("s_cmp_eq_u32 s38, 3"); e("s_cselect_b32 s56, 16384, s56"); e("s_cselect_b32 s57, 17408, s57")
    ROT = os.environ.get("ROT", "full")
    if ROT == "full": e("s_add_u32 s34, s25, s26"); e("s_lshl_b32 s30, s24, 2"); e("s_add_u32 s34, s34, s30")
    if ROT == "none": e("s_mov_b32 s34, 0")
    if ROT == "xcd": e("s_and_b32 s34, s2, 7")
    if ROT == "hp": e("s_mov_b32 s34, s26")
    if ROT == "rt": e("s_mov_b32 s34, s25")
    if ROT == "rt2": e("s_lshl_b32 s34, s25, 1")
    if ROT == "full2": e("s_lshl_b32 s34, s25, 1"); e("s_add_u32 s34, s34, s26")
    e("s_mul_i32 s30, s34, 37"); e("s_lshr_b32 s30, s30, 8"); e("s_mul_i32 s30, s30, 7"); e("s_sub_u32 s34, s34, s30")
    if "py" in VS:
        e("s_lshr_b32 s29, s2, 3"); e("s_mul_i32 s30, s29, 5376"); e("v_lshlrev_b32 v44, 7, v5"); e("v_add_u32 v44, s30, v44")
        e("v_cmp_gt_u32 vcc, 42, v5"); e(f"v_mov_b32 v45, {OOB}"); e("s_lshl_b32 s29, s29, 4"); e("v_cndmask_b32 v44, v45, v44, vcc")
        e("s_bfe_u32 s30, s2, 0x20001"); e("s_lshl_b32 s30, s30, 9"); e("s_add_u32 s29, s29, s30"); e("v_add_u32 v46, s29, v16")
        e("v_mul_u32_u24 v46, 896, v46")
        e(f"v_cmp_gt_u32 vcc, 16, v5"); e(f"s_mul_i32 s40, s38, {64*2688}"); e("s_lshl_b32 s41, s38, 7"); e("v_cndmask_b32 v46, v45, v46, vcc")
    e("s_waitcnt lgkmcnt(0)")
    srd(12, 4, 1835008); srd(16, 6, 448 * 2688)
    e("s_cmp_eq_u32 s38, 3")
    for i in range(4): e(f"s_cselect_b32 s{44+i}, s{12+i}, s{16+i}")
    def gload(st):
        sb = (st % 4) * STG
        e("s_lshl_b32 s35, s34, 7"); e(f"s_mul_i32 s36, s34, {64*2688}")
        e("s_cmp_eq_u32 s38, 3"); e("s_cselect_b32 s37, s35, s36")
        for i in (0, 1, 2, 3, 6, 7, 8, 9, 4, 5):
            sr, so = ("s[12:15]", 35) if i < 4 else (("s[44:47]", 37) if i < 6 else ("s[16:19]", 36))
            e(f"s_add_u32 m0, s{52+i}, {sb}"); e("s_nop 0")
            e(f"buffer_load_dwordx4 v{20+i}, {sr}, s{so} offen lds")
        e("s_add_u32 s34, s34, 1"); e("s_cmp_eq_u32 s34, 7"); e("s_cselect_b32 s34, 0, s34")
    ts(1)
    PY = "py" in VS
    PZ = "pz" in VS
    PP = int(os.environ.get("PP", "1"))
    def p2():
        e(f"s_add_u32 s29, s40, {4*64*2688}"); e("s_add_u32 s30, s41, 512"); e("s_cmp_eq_u32 s38, 3"); e("s_cselect_b32 s29, 0, s29"); e("s_cselect_b32 s30, 0, s30")
        e("buffer_load_dword v47, v44, s[16:19], s29 offen"); e("buffer_load_dword v47, v46, s[12:15], s30 offen")
    if PY:
        e("buffer_load_dword v47, v44, s[16:19], s40 offen"); e("buffer_load_dword v47, v46, s[12:15], s41 offen")
    gload(0)
    if PY and not PZ and PP == 0: p2()
    gload(1)
    if PY and not PZ and PP == 1: p2()
    ts(2)
    e("v_mul_u32_u24 v6, 4682, v5"); e("v_lshrrev_b32 v6, 16, v6"); e("v_mul_u32_u24 v7, 14, v6"); e("v_sub_u32 v7, v5, v7")
    e("s_lshl_b32 s29, s38, 2"); e("v_add_u32 v6, s29, v6"); e("v_mul_u32_u24 v31, 896, v6"); e("v_lshl_add_u32 v31, v7, 4, v31")
    e("s_bfe_u32 s29, s2, 0x20003"); e("s_mul_i32 s29, s29, 224"); e("v_add_u32 v31, s29, v31")
    e("s_mul_i32 s62, s38, 896")
    e("s_mov_b32 s82, -1"); e("s_mov_b32 s83, 0xffffff")
    e("v_and_b32 v18, 31, v5"); e("v_lshlrev_b32 v18, 3, v18"); e("s_and_b32 s29, s2, 7"); e("s_lshl_b32 s29, s29, 8"); e(f"s_add_u32 s29, s29, {WS_E1}")
    e("s_or_b32 s30, s38, s96"); e("s_cmp_eq_u32 s30, 0"); e(f"s_cselect_b32 s29, s29, {OOB}"); e("v_add_u32 v18, s29, v18")
    srd(20, 8, WS_END); srd(48, 10, 448 * 896)
    X2 = 2 if (PY and not PZ) else 0
    e(f"s_waitcnt vmcnt({10 + (X2 if PP <= 1 else 0)})"); e("s_barrier")
    def wodma(sets):
        e("s_mov_b64 exec, s[82:83]")
        for j in sets:
            la = j * 3584 if j < 21 else HB + (j - 21) * 3584
            e(f"s_add_u32 m0, s62, {la}"); e(f"s_mov_b32 s36, {j*14336}")
            e("buffer_load_dwordx4 v31, s[48:51], s36 offen lds")
        e("s_mov_b64 exec, -1")
    order = list(range(21, 28)) + list(range(0, 21))
    WS5, WS6, WS7 = order[:WD[0]], order[WD[0]:WD[0]+WD[1]], order[WD[0]+WD[1]:sum(WD)]
    WREST = order[sum(WD):]
    assert all(j >= 21 or j < 11 for j in WS5)
    for s in range(NST):
        if s + 2 < NST: gload(s + 2)
        if X2 and PP == s + 2: p2()
        if s == 3:
            e("s_memrealtime s[90:91]"); e("s_waitcnt lgkmcnt(0)"); mkflag()
        if s == 4:
            epi_pre('h')
            for r in (234, 235, 236): e(f"v_mov_b32 v{r}, {OOB}")
            e("s_mov_b32 s94, 0")
        if s == 5:
            e("buffer_load_dwordx2 v[32:33], v18, s[20:23], 0 offen" + SC)
            if WS5: wodma(WS5)
        if s == 6:
            if WS6: wodma(WS6)
            e("s_cmp_eq_u32 s38, 0"); e("s_cbranch_scc0 K1_HNE")
            e("s_andn2_b32 s29, s86, 15"); e("v_mov_b32 v34, s29"); e("v_mov_b32 v35, s87")
            e(f"s_waitcnt vmcnt({len(WS5)+len(WS6)})")
            chk(32, 34, xcc=36)
            e("s_cmp_eq_u64 vcc, 0"); e("s_cselect_b32 s29, 1, 0")
            if "remote" in VS: e("s_mov_b32 s29, 0")
            e("s_or_b32 s29, s29, s96")
            e("v_mov_b32 v32, s29"); e(f"v_mov_b32 v33, {ST+64}")
            e("ds_write_b32 v33, v32")
            lab("K1_HNE")
        if s < 6: e(f"s_waitcnt vmcnt({(10, 10, 10, 10, 10, 1+len(WS5))[s] + (X2 if PP in (s + 1, s + 2) else 0)})")
        e("s_barrier")
    if WS7: wodma(WS7)
    e("s_branch K1_EPI")
    lab("K1_COMP")
    e("v_lshrrev_b32 v6, 1, v16"); e("v_xor_b32 v6, v6, v17"); e("v_lshlrev_b32 v24, 7, v16"); e("v_lshl_add_u32 v24, v6, 4, v24")
    e("v_xor_b32 v25, 64, v24"); e(f"v_add_u32 v26, {2*STG}, v24"); e(f"v_add_u32 v27, {2*STG}, v25")
    e("v_lshrrev_b32 v6, 2, v16"); e("v_lshl_add_u32 v6, v17, 2, v6"); e(f"v_mul_u32_u24 v28, {WSr}, v6"); e("v_and_b32 v7, 3, v16")
    e("v_lshl_add_u32 v28, v7, 3, v28"); e(f"v_add_u32 v28, {XS}, v28"); e(f"v_add_u32 v29, {2*STG}, v28")
    e(f"v_mul_u32_u24 v30, {TS}, v16"); e("v_lshl_add_u32 v30, v17, 3, v30"); e(f"v_add_u32 v30, {TB}, v30")
    PF = "pf" in VS
    PF0 = int(os.environ.get("PF0", "2"))
    if PF:
        e("s_lshr_b32 s29, s2, 3"); e("s_mul_i32 s30, s29, 5376"); e("v_lshlrev_b32 v44, 7, v5"); e("v_add_u32 v44, s30, v44")
        e("v_cmp_gt_u32 vcc, 42, v5"); e(f"v_mov_b32 v45, {OOB}"); e("s_lshl_b32 s29, s29, 4"); e("v_cndmask_b32 v44, v45, v44, vcc")
        e("s_bfe_u32 s30, s2, 0x20001"); e("s_lshl_b32 s30, s30, 9"); e("s_add_u32 s29, s29, s30"); e("v_add_u32 v46, s29, v16")
        e("v_mul_u32_u24 v46, 896, v46")
        e(f"v_cmp_gt_u32 vcc, 16, v5"); e("s_nop 1"); e("v_cndmask_b32 v46, v45, v46, vcc")
    e("s_waitcnt lgkmcnt(0)")
    if "pz" in VS:
        ZS = int(os.environ.get("ZS", "128"))
        e("s_lshr_b32 s29, s2, 3"); e("s_cmp_eq_u32 s27, 3"); e("s_cbranch_scc1 PZ_X")
        e("s_mul_i32 s30, s29, 5376"); e(f"s_mul_i32 s31, s27, {64*2688}"); e("s_add_u32 s30, s30, s31"); e(f"s_add_u32 s30, s30, {4*64*2688}")
        e("s_add_u32 s30, s6, s30"); e("s_addc_u32 s31, s7, 0")
        for o in range(0, 5376, ZS): e(f"s_load_dword s71, s[30:31], {o}")
        e("s_branch PZ_D")
        lab("PZ_X")
        e("s_lshl_b32 s29, s29, 4"); e("s_bfe_u32 s30, s2, 0x20001"); e("s_lshl_b32 s30, s30, 9"); e("s_add_u32 s29, s29, s30"); e("s_mul_i32 s30, s29, 896")
        e("s_add_u32 s30, s4, s30"); e("s_addc_u32 s31, s5, 0")
        for c in range(4, 7):
            for r in range(16):
                for o in range(0, 128, ZS): e(f"s_load_dword s71, s[30:31], {r*896+c*128+o}")
        lab("PZ_D")
        e("s_waitcnt lgkmcnt(0)")
        ts(2)
    srd(20, 8, WS_END); srd(48, 10, 448 * 896)
    e("s_lshr_b32 s29, s2, 3"); e("s_mul_i32 s29, s29, 98"); e("s_lshl_b32 s30, s27, 6"); e("s_add_u32 s29, s29, s30"); e("s_sub_u32 s29, s29, 64")
    e("v_add_u32 v232, s29, v5"); e("v_lshlrev_b32 v232, 7, v232")
    epi_pre("c")
    e("s_bfe_u32 s39, s2, 0x20001"); e("s_lshr_b32 s29, s2, 4"); e("s_lshl_b32 s29, s29, 2"); e("s_add_u32 s39, s39, s29")
    e("s_and_b32 s29, s2, 7"); e("s_lshl_b32 s29, s29, 8"); e("s_lshr_b32 s30, s2, 3"); e("s_lshl_b32 s30, s30, 3"); e("s_add_u32 s29, s29, s30"); e(f"s_add_u32 s29, s29, {WS_E1}")
    e("s_lshl_b32 s30, s26, 7"); e("s_lshl_b32 s31, s25, 3"); e("s_add_u32 s30, s30, s31"); e(f"s_add_u32 s30, s30, {WS_E2}")
    e("s_lshl_b32 s31, s39, 3"); e(f"s_add_u32 s31, s31, {WS_E3}")
    e("s_and_b32 s34, s2, 9"); e("s_cmp_eq_u32 s34, 0"); e(f"s_cselect_b32 s31, s31, {OOB}")
    e("s_or_b32 s35, s34, s96"); e("s_or_b32 s35, s35, s27"); e("s_cmp_eq_u32 s35, 0"); e("s_cselect_b32 s94, 1, 0")
    e("s_lshr_b32 s35, s39, 3"); e("s_lshl_b32 s35, s35, 7"); e(f"s_add_u32 s35, s35, {WS_E2}")
    e("v_lshlrev_b32 v234, 3, v16"); e("v_add_u32 v234, s35, v234")
    e("v_and_b32 v36, 7, v5"); e("s_and_b32 s35, s39, 1"); e("s_lshl_b32 s35, s35, 3"); e("v_add_u32 v36, s35, v36")
    e("v_lshrrev_b32 v37, 2, v36"); e("v_and_b32 v38, 3, v36"); e("v_mul_u32_u24 v37, 3, v37"); e("v_add_u32 v37, v37, v38"); e("v_add_u32 v37, 64, v37")
    e("v_cmp_eq_u32 vcc, 3, v38"); e("v_mov_b32 v38, 76"); e("s_bitcmp1_b32 s39, 1"); e("v_cndmask_b32 v37, v37, v38, vcc")
    e("s_cselect_b64 vcc, -1, 0"); e("v_lshrrev_b32 v38, 3, v5"); e("s_nop 0"); e("v_cndmask_b32 v37, v36, v37, vcc")
    e("v_lshlrev_b32 v37, 4, v37"); e("v_and_b32 v39, 3, v38"); e("v_lshl_add_u32 v37, v39, 8, v37"); e("v_lshrrev_b32 v39, 2, v38"); e("v_lshl_add_u32 v37, v39, 11, v37")
    e("s_lshr_b32 s35, s39, 2"); e("s_lshl_b32 s35, s35, 12"); e("v_add_u32 v37, s35, v37")
    e("v_cmp_eq_u32 vcc, 7, v38"); e(f"v_mov_b32 v39, {OOB}"); e("s_nop 0"); e("v_cndmask_b32 v235, v37, v39, vcc")
    e("v_lshrrev_b32 v39, 1, v38"); e("v_lshlrev_b32 v39, 8, v39"); e("v_lshl_add_u32 v36, v36, 4, v39"); e("v_and_b32 v38, 1, v38"); e("v_lshl_add_u32 v236, v38, 3, v36")
    e("s_lshr_b32 s35, s39, 1"); e("s_lshl_b32 s35, s35, 10"); e(f"s_add_u32 s46, s35, {WS_KVT}")
    e("s_andn2_b32 s35, s86, 15"); e("v_mov_b32 v238, s35"); e("v_mov_b32 v239, s87")
    e("s_cmp_eq_u32 s24, 0"); e(f"s_cselect_b32 s30, s30, {OOB}")
    e(f"v_mov_b32 v31, {OOB}")
    e("s_cmp_eq_u32 s96, 0"); e("s_cbranch_scc0 K1_NOINIT")
    e("v_writelane_b32 v31, s29, 0"); e("v_writelane_b32 v31, s30, 1"); e("v_writelane_b32 v31, s31, 2")
    e("s_cmp_eq_u32 s24, 0"); e("s_cbranch_scc0 K1_NOINIT")
    for i in range(4): e(f"v_mov_b32 v{32+i}, -1")
    e("buffer_store_dwordx4 v[32:35], v6, s[20:23], s70 offen" + SC)
    e("buffer_store_dwordx4 v[32:35], v6, s[20:23], s70 offen offset:1024" + SC)
    e("s_or_b32 s34, s34, s27"); e("s_cmp_eq_u32 s34, 0"); e("s_cbranch_scc0 K1_NOINIT")
    e("v_lshrrev_b32 v36, 4, v5"); e("v_lshlrev_b32 v36, 8, v36"); e("v_and_b32 v37, 7, v5"); e("v_lshl_add_u32 v36, v37, 4, v36")
    e("v_bfe_u32 v37, v5, 3, 1"); e("v_lshl_add_u32 v36, v37, 3, v36")
    e("s_lshr_b32 s29, s39, 1"); e("s_lshl_b32 s29, s29, 10"); e("s_and_b32 s30, s39, 1"); e("s_lshl_b32 s30, s30, 7"); e("s_add_u32 s29, s29, s30"); e(f"s_add_u32 s29, s29, {WS_KVT}")
    e("buffer_store_dwordx2 v[32:33], v36, s[20:23], s29 offen" + SC)
    lab("K1_NOINIT")
    if PF:
        D0 = int(os.environ.get("D0", "0")); DP = int(os.environ.get("DP", "8"))
        srd(12, 4, 1835008); srd(16, 6, 448 * 2688)
        ts(1)
        e("s_cmp_eq_u32 s27, 3"); e("s_cbranch_scc0 PF_D")
        if D0: e(f"s_sleep {D0}")
        for c in range(PF0, 7):
            e(f"s_mov_b32 s29, {c*64*2688}")
            e(f"buffer_load_dword v233, v44, s[16:19], s29 offen")
            e(f"buffer_load_dword v233, v46, s[12:15], 0 offen offset:{128*c}")
            if c < 6 and DP: e(f"s_sleep {DP}")
        ts(2)
        lab("PF_D")
    e("s_cmp_eq_u32 s27, 1"); e("s_cbranch_scc1 K1_R1"); e("s_cmp_eq_u32 s27, 2"); e("s_cbranch_scc1 K1_R2")
    e("s_cmp_eq_u32 s27, 3"); e("s_cbranch_scc1 K1_R3")
    F = [32, 84]; ACC = 136
    for role in range(4):
        if role: lab(f"K1_R{role}")
        wm2, wn = role >> 1, role & 1
        if wn == 0:
            cols = [32 * c for c in range(6)]; nmain = 6; halo = []
        elif wm2 == 0:
            cols = [192 + 32 * c for c in range(5)]; nmain = 5; halo = [0, 1, 2, 3]
        else:
            cols = [192 + 32 * c for c in range(5)] + [96, 128, 160]; nmain = 5; halo = [4, 5, 6, 7]
        def freads(cn, f):
            s = cn >> 1; sub = cn & 1; slot = s % 4; st_ = slot >> 1; so = (slot & 1) * STG; b = F[f]; r = []
            for rb in range(4): r.append(f"ds_read_b128 {vr(b+4*rb,4)}, v{24+2*st_+sub} offset:{so+(16+64*wm2+16*rb)*128}")
            for c, cb in enumerate(cols):
                for h in range(2): r.append(f"ds_read_b64_tr_b16 {vr(b+20+4*c+2*h,2)}, v{28+st_} offset:{so+sub*WH+h*16*WSr+cb}")
            if halo: r.append(f"ds_read_b128 {vr(b+16,4)}, v{24+2*st_+sub} offset:{so}")
            return r
        def mfmas(f, first):
            b = F[f]; r = []
            for c in range(nmain):
                for rb in range(4):
                    a = ACC + 4 * (c * 4 + rb)
                    r.append(f"v_mfma_f32_16x16x32_bf16 {vr(a,4)}, {vr(b+20+4*c,4)}, {vr(b+4*rb,4)}, {0 if first else vr(a,4)}")
            for i, c in enumerate(halo):
                a = ACC + 4 * (20 + i)
                r.append(f"v_mfma_f32_16x16x32_bf16 {vr(a,4)}, {vr(b+20+4*c,4)}, {vr(b+16,4)}, {0 if first else vr(a,4)}")
            return r
        if TCN < 0 and role in (1, 2):
            e("buffer_load_dword v233, v232, s[48:51], 0 offen"); e("s_waitcnt vmcnt(1)")
        elif not PF: e("s_waitcnt vmcnt(0)")
        e("s_barrier")
        if role == 0: ts(3)
        for x in freads(0, 0): e(x)
        e("s_waitcnt lgkmcnt(0)")
        tw = []
        k = 0
        for c in range(nmain):
            for rb in range(4):
                a = ACC + 4 * (c * 4 + rb); t = 32 + 2 * (k % 8); k += 1
                tw.append([f"v_cvt_pk_bf16_f32 v{t}, v{a}, v{a+1}", f"v_cvt_pk_bf16_f32 v{t+1}, v{a+2}, v{a+3}",
                           f"ds_write_b64 v30, {vr(t,2)} offset:{(16+64*wm2+16*rb)*TS+cols[c]}"])
        for i, c in enumerate(halo):
            a = ACC + 4 * (20 + i); t = 32 + 2 * (k % 8); k += 1
            tw.append([f"v_cvt_pk_bf16_f32 v{t}, v{a}, v{a+1}", f"v_cvt_pk_bf16_f32 v{t+1}, v{a+2}, v{a+3}",
                       f"ds_write_b64 v30, {vr(t,2)} offset:{cols[c]}"])
        DIST = 4
        for cn in range(2 * NST):
            nxt = freads(cn + 1, (cn + 1) & 1) if cn + 1 < 2 * NST else []
            if cn == 2: e("s_memrealtime s[90:91]")
            if cn == TCN and role in (1, 2): e("buffer_load_dword v233, v232, s[48:51], 0 offen")
            for mi, ins in enumerate(mfmas(cn & 1, cn == 0)):
                e(ins)
                for _ in range(2 if mi < 5 else 1):
                    if nxt: e(nxt.pop(0))
                if cn == 2 * NST - 1 and mi >= DIST:
                    for x in tw.pop(0): e(x)
                if cn == (9 if PF else 3) and mi == 20:
                    mkflag()
                    if role == 0:
                        e("v_mov_b32 v240, s90"); e("v_mov_b32 v241, s91")
                        e("buffer_store_dwordx2 v[240:241], v31, s[20:23], 0 offen" + SC)
            assert not nxt
            if cn + 1 < 2 * NST: e("s_waitcnt lgkmcnt(0)")
            if PF and cn == 8: e("s_waitcnt vmcnt(0)")
            if cn % 2 == 0:
                e("s_barrier")
                if role == 0 and "tsl" in VS: ts(20 + cn // 2)
        if role == 0: ts(4)
        e("s_nop 7"); e("s_nop 3")
        for x in tw:
            for y in x: e(y)
        if role < 3: e("s_branch K1_EPI")
    lab("K1_EPI")
    e(f"v_mov_b32 v18, {ST+64}")
    e("s_waitcnt lgkmcnt(0)"); e("s_barrier")
    ts(5)
    e("ds_read_b32 v18, v18")
    e("s_cmp_eq_u32 s24, 0"); e("s_cbranch_scc0 K1_ATTB")
    ONEL, ONEH = 8, 9
    def phi(regs, T0):
        for i0 in range(0, len(regs), 4):
            grp = regs[i0:i0 + 4]
            for i, w in enumerate(grp): unpk_lo(T0 + 2 * i, w); unpk_hi(T0 + 2 * i + 1, w)
            for i, w in enumerate(grp): e(f"v_pk_mul_f32 {vr(T0+2*i,2)}, {vr(T0+2*i,2)}, s[68:69]")
            for i, w in enumerate(grp): e(f"v_pk_max_i16 v{w}, v{w}, 0")
            for i, w in enumerate(grp):
                e(f"v_exp_f32 v{T0+2*i}, v{T0+2*i} clamp"); e(f"v_exp_f32 v{T0+2*i+1}, v{T0+2*i+1} clamp")
            for i, w in enumerate(grp):
                e(f"v_dot2_f32_bf16 v{T0+2*i}, v{w}, v{ONEL}, v{T0+2*i}"); e(f"v_dot2_f32_bf16 v{T0+2*i+1}, v{w}, v{ONEH}, v{T0+2*i+1}")
            for i, w in enumerate(grp): e(f"v_pk_add_f32 {vr(T0+2*i,2)}, {vr(T0+2*i,2)}, s[72:73]")
            for i, w in enumerate(grp): cvt_pk(w, T0 + 2 * i, T0 + 2 * i + 1)
    e("s_cmp_lt_u32 s27, 4"); e("s_cbranch_scc1 K1_AKV")
    for it in range(4):
        for h in range(2): e(f"ds_read_b64 {vr(32+4*it+2*h,2)}, v2 offset:{it*32*TS+8*h}")
    if WREST: wodma(WREST)
    for it in range(4):
        e(f"s_waitcnt lgkmcnt({6-2*it})")
        if it == 0: e("v_readfirstlane_b32 s92, v18")
        phi(list(range(32 + 4 * it, 36 + 4 * it)), 64 + 8 * (it & 1))
        e(f"v_cndmask_b32 v{34+4*it}, v{34+4*it}, 0, s[66:67]"); e(f"v_cndmask_b32 v{35+4*it}, v{35+4*it}, 0, s[66:67]")
        st2(f"buffer_store_dwordx4 {vr(32+4*it,4)}, v6, s[20:23], {'s%d' % (74+it) if it else 0} offen")
    e("s_branch P2")
    lab("K1_AKV")
    PK, VV, KA = 32, 48, 100
    RP = 168
    LDE2 = "buffer_load_dwordx2 v[114:115], v234, s[20:23], 0 offen" + SC
    e("s_cmp_eq_u32 s94, 0"); e("s_cbranch_scc1 K1_AK0")
    e(LDE2)
    lab("K1_AK0")
    for ks in range(4):
        for h in range(2): e(f"ds_read_b64_tr_b16 {vr(PK+4*ks+2*h,2)}, v2 offset:{(32*ks+16*h)*TS}")
    for ks in range(4):
        for nb in range(2):
            for h in range(2): e(f"ds_read_b64_tr_b16 {vr(VV+8*ks+4*nb+2*h,2)}, v3 offset:{(32*ks+16*h)*TS+32*nb}")
    for ks in range(4):
        e(f"s_waitcnt lgkmcnt({min(15, 22-2*ks) if ks < 3 else 0})")
        if ks == 0: e("v_readfirstlane_b32 s92, v18")
        phi(list(range(PK + 4 * ks, PK + 4 * ks + 4)), 80 + 8 * (ks & 1))
        if ks == 3: e("s_nop 1")
        for kk in ([ks - 1] if ks in (1, 2) else ([2, 3] if ks == 3 else [])):
            if kk < 2: e(f"s_waitcnt lgkmcnt({12-4*kk})")
            c = (lambda a: "0" if kk == 0 else vr(a, 4))
            e(f"v_mfma_f32_16x16x32_bf16 {vr(KA+8,4)}, {vr(PK+4*kk,4)}, v[12:15], {c(KA+8)}")
            e(f"v_mfma_f32_16x16x32_bf16 {vr(KA+4,4)}, {vr(PK+4*kk,4)}, {vr(VV+8*kk+4,4)}, {c(KA+4)}")
            e(f"v_mfma_f32_16x16x32_bf16 {vr(KA,4)}, {vr(PK+4*kk,4)}, {vr(VV+8*kk,4)}, {c(KA)}")
    e("s_nop 7"); e("s_nop 1")
    for i in range(4): e(f"v_cndmask_b32 v{KA+4+i}, v{KA+4+i}, v{KA+8+i}, s[66:67]")
    if "failk" in VS:
        e("s_cmp_eq_u32 s5, s5"); e("s_xor_b32 s29, s2, 66"); e("s_or_b32 s29, s29, s96"); e("s_cmp_eq_u32 s29, 0"); e("s_cbranch_scc1 P2")
    e(f"buffer_store_dwordx4 {vr(KA+4,4)}, v6, s[20:23], s70 offen offset:1024" + SC)
    e(f"buffer_store_dwordx4 {vr(KA,4)}, v6, s[20:23], s70 offen" + SC)
    e("s_cmp_eq_u32 s94, 0"); e("s_cbranch_scc1 P2")
    e("s_mov_b32 s45, 0")
    e("s_waitcnt vmcnt(2)")
    lab("RD_EP")
    chk(114, 238)
    e("s_cbranch_vccz RD_RL")
    e(LDE2); e("s_waitcnt vmcnt(0)")
    e("s_add_u32 s45, s45, 1"); e(f"s_cmp_lt_u32 s45, {LIMIT}"); e("s_cbranch_scc1 RD_EP")
    e("s_branch P2")
    lab("RD_RL")
    for rt in range(16):
        e(f"s_mov_b32 s35, {WS_KVP+65536*rt}"); e(f"buffer_load_dwordx4 {vr(RP+4*rt,4)}, v235, s[20:23], s35 offen" + SC)
    for st in (8, 4, 2, 1):
        for r in range(st):
            if st == 8: e(f"s_waitcnt vmcnt({7-r})")
            for u in range(2): e(f"v_pk_add_f32 {vr(RP+4*r+2*u,2)}, {vr(RP+4*r+2*u,2)}, {vr(RP+4*(r+st)+2*u,2)}")
    e(f"v_add_f32 v18, v{RP}, v{RP+1}"); e(f"v_add_f32 v19, v{RP+2}, v{RP+3}"); e("v_cmp_u_f32 vcc, v18, v19")
    cvt_pk(RP, RP, RP + 1); cvt_pk(RP + 1, RP + 2, RP + 3); e("s_nop 2")
    e("s_cbranch_vccz RD_RS")
    e("s_add_u32 s45, s45, 1"); e(f"s_cmp_lt_u32 s45, {LIMIT}"); e("s_cbranch_scc1 RD_RL")
    e("s_branch P2")
    lab("RD_RS")
    e(f"buffer_store_dwordx2 {vr(RP,2)}, v236, s[20:23], s46 offen" + SC)
    ts(18)
    e("s_branch P2")
    lab("K1_ATTB")
    R = [32, 72]
    for hh in range(2):
        b = R[hh]
        e(f"ds_read2_b64 {vr(b,4)}, v2 offset0:{7*hh} offset1:{7*hh+1}")
        e(f"ds_read2_b64 {vr(b+4,4)}, v3 offset0:{14+7*hh} offset1:{15+7*hh}")
        e(f"ds_read2_b64 {vr(b+8,4)}, v2 offset0:{14+7*hh} offset1:{15+7*hh}")
    for hh in range(2):
        b = R[hh]
        for db in range(2):
            for kb in range(2): e(f"ds_read_b64_tr_b16 {vr(b+12+4*db+2*kb,2)}, v4 offset:{224+56*hh+32*db+16*TS*kb}")
    if WREST:
        e("s_cmp_lt_u32 s27, 4"); e("s_cbranch_scc1 K1_BNW")
        wodma(WREST)
        lab("K1_BNW")
    for hh in range(2):
        b = R[hh]
        e(f"s_waitcnt lgkmcnt({11-3*hh})")
        e(f"v_cndmask_b32 v{b+2}, v{b+2}, 0, s[66:67]"); e(f"v_cndmask_b32 v{b+3}, v{b+3}, 0, s[66:67]"); e("s_nop 1")
        e(f"v_mfma_f32_16x16x32_bf16 {vr(b+20,4)}, {vr(b+4,4)}, {vr(b,4)}, {vr(CM,4)}")
        e(f"v_mfma_f32_16x16x32_bf16 {vr(b+24,4)}, {vr(b+8,4)}, {vr(b,4)}, {vr(CM+4,4)}")
    e("v_readfirstlane_b32 s92, v18")
    e("s_nop 7"); e("s_nop 1")
    def both(f):
        for hh in range(2): f(R[hh])
    for hh in range(2):
        b = R[hh]
        for i in range(4): e(f"v_cndmask_b32 v{b+28+i}, v{b+20+2*i}, v{b+21+2*i}, s[64:65]")
    both(lambda b: e(f"v_max3_f32 v{b+32}, v{b+28}, v{b+29}, v{b+30}"))
    both(lambda b: e(f"v_max_f32 v{b+32}, v{b+32}, v{b+31}"))
    for pl in ("v_permlane32_swap_b32", "v_permlane16_swap_b32"):
        both(lambda b: e(f"v_mov_b32 v{b+33}, v{b+32}")); e("s_nop 0")
        both(lambda b: e(f"{pl} v{b+32}, v{b+33}")); e("s_nop 0")
        both(lambda b: e(f"v_max_f32 v{b+32}, v{b+32}, v{b+33}"))
    both(lambda b: e(f"v_mul_f32 v{b+32}, s68, v{b+32}"))
    for u in range(2):
        both(lambda b: e(f"v_pk_fma_f32 {vr(b+28+2*u,2)}, {vr(b+28+2*u,2)}, s[68:69], {vr(b+32,2)} op_sel_hi:[1,1,0] neg_lo:[0,0,1] neg_hi:[0,0,1]"))
    for hh in range(2):
        b = R[hh]
        for i in range(4): e(f"v_exp_f32 v{b+28+i}, v{b+28+i}")
    for hh in range(2):
        b = R[hh]
        for i in range(4): cvt_pk(b + 28 + i, b + 28 + i, b + 28 + i)
        for i in range(4): e(f"v_and_b32 v{b+28+i}, v8, v{b+28+i}")
        e(f"s_waitcnt lgkmcnt({4 if hh == 0 else 0})"); e("s_nop 1")
        e(f"v_mfma_f32_16x16x32_bf16 {vr(b+36,4)}, v[12:15], {vr(b+28,4)}, 0")
        for db in range(2):
            e(f"v_mfma_f32_16x16x32_bf16 {vr(b+20+4*db,4)}, {vr(b+12+4*db,4)}, {vr(b+28,4)}, 0")
    e("s_nop 3")
    e(f"v_rcp_f32 v{R[0]+36}, v{R[0]+36}")
    e("s_nop 7")
    e(f"v_rcp_f32 v{R[1]+36}, v{R[1]+36}")
    for hh in range(2):
        b = R[hh]
        if hh: e("s_nop 1")
        for i in range(4): e(f"v_pk_mul_f32 {vr(b+20+2*i,2)}, {vr(b+20+2*i,2)}, {vr(b+36,2)} op_sel_hi:[1,0]")
        for db in range(2):
            cvt_pk(b + 2 * db, b + 20 + 4 * db, b + 21 + 4 * db); cvt_pk(b + 2 * db + 1, b + 22 + 4 * db, b + 23 + 4 * db)
        e(f"v_cndmask_b32 v{b+2}, v{b+2}, 0, s[66:67]"); e(f"v_cndmask_b32 v{b+3}, v{b+3}, 0, s[66:67]")
        st2(f"buffer_store_dwordx4 {vr(b,4)}, v6, s[20:23], s70 offen offset:{1024*hh}")
    lab("P2")
    ts(6)
    e("s_cmp_eq_u32 s96, 0"); e("s_cbranch_scc1 P2N")
    e("s_add_u32 s97, s97, 1"); e("s_cmp_eq_u32 s97, 128"); e("s_cbranch_scc1 P2N")
    e("s_add_u32 s2, s2, 2"); e("s_and_b32 s2, s2, 255")
    e("s_waitcnt vmcnt(0) lgkmcnt(0)"); e("s_barrier"); e("s_branch RESTART")
    lab("P2N")
    if "diag" in VS:
        e("s_cmp_eq_u32 s92, 0"); e("s_cbranch_scc0 DG1")
        for _ in range(4): e("s_sleep 127")
        lab("DG1")
    WF, AC2 = 176, 240
    FL, EF, T0 = 112, 114, 116
    e("s_lshl_b32 s29, s24, 4"); e("s_add_u32 s29, s29, s25"); e("s_lshl_b32 s29, s29, 3"); e("s_add_u32 s29, s29, s26"); e("s_lshl_b32 s29, s29, 7")
    e("s_lshl_b32 s30, s27, 3"); e("s_add_u32 s29, s29, s30"); e(f"s_add_u32 s29, s29, {WS_F}")
    e("s_lshr_b32 s30, s27, 2"); e("s_or_b32 s30, s30, s24"); e("s_andn2_b32 s30, s30, s96")
    if "failf" in VS:
        e("s_cmp_eq_u32 s2, 37"); e("s_cselect_b32 s30, 0, s30"); e("s_cmp_eq_u32 s2, 100"); e("s_cselect_b32 s30, 0, s30")
    e("s_cmp_eq_u32 s30, 1"); e(f"s_cselect_b32 s29, s29, {OOB}")
    e(f"v_mov_b32 v2, {OOB}"); e("v_writelane_b32 v2, s29, 0")
    e("v_mov_b32 v118, s90"); e("v_mov_b32 v119, s91")
    e("s_bfe_u32 s28, s2, 0x20001"); e("s_lshl_b32 s28, s28, 3"); e("s_add_u32 s28, s28, s26")
    e("s_bfe_u32 s33, s2, 0x20003"); e("s_mul_i32 s33, s33, 224")
    e("s_lshr_b32 s29, s28, 1"); e("s_lshl_b32 s30, s24, 4"); e("s_add_u32 s29, s29, s30"); e("s_lshl_b32 s29, s29, 3"); e("s_add_u32 s29, s29, s27"); e("s_lshl_b32 s29, s29, 7")
    e("s_and_b32 s30, s28, 1"); e("s_cmp_eq_u32 s24, 0"); e("s_cselect_b32 s30, 1, s30"); e("s_lshl_b32 s30, s30, 5"); e("s_add_u32 s29, s29, s30"); e(f"s_add_u32 s29, s29, {WS_F}")
    e("v_and_b32 v3, 3, v5"); e("v_lshlrev_b32 v3, 3, v3"); e("v_add_u32 v3, s29, v3")
    e("s_andn2_b32 s29, s86, 15"); e(f"v_mov_b32 v{T0}, s29"); e(f"v_mov_b32 v{T0+1}, s87")
    e("v_lshlrev_b32 v13, 4, v5"); e("s_lshl_b32 s34, s27, 11"); e("v_add_u32 v4, s34, v13")
    e("s_lshl_b32 s40, s28, 16"); e("s_lshl_b32 s29, s24, 21"); e("s_add_u32 s40, s40, s29")
    for rb in range(1, 4): e(f"s_add_u32 s{40+rb}, s40, {16384*rb}")
    e("v_lshrrev_b32 v6, 2, v16"); e("v_lshl_add_u32 v7, v17, 2, v6"); e("v_mul_u32_u24 v20, 224, v7")
    e("s_cmp_eq_u32 s24, 0"); e("s_cbranch_scc1 P2_HA")
    e("v_min_u32 v7, 2, v17"); e("v_lshl_add_u32 v7, v7, 2, v6"); e("v_add_u32 v7, 16, v7")
    e("s_branch P2_HD")
    lab("P2_HA")
    e("v_mul_u32_u24 v7, 3, v17"); e("v_add_u32 v7, v7, v6"); e("v_add_u32 v7, 16, v7")
    e("v_and_b32 v8, 1, v17"); e("v_and_b32 v9, 2, v17"); e("v_sub_u32 v8, v8, v9"); e("v_add_u32 v8, 22, v8")
    e("v_cmp_eq_u32 vcc, 3, v6"); e("s_nop 1"); e("v_cndmask_b32 v7, v7, v8, vcc")
    lab("P2_HD")
    e("v_mul_u32_u24 v21, 224, v7")
    e("s_lshl_b32 s35, s27, 5"); e("v_and_b32 v7, 3, v16"); e("v_lshl_add_u32 v7, v7, 3, s35")
    e("v_add_u32 v20, v20, v7"); e("v_add_u32 v21, v21, v7")
    e(f"v_add_u32 v22, {8*6272}, v20"); e(f"v_add_u32 v23, {8*6272}, v21"); e(f"v_add_u32 v24, {HB}, v20"); e(f"v_add_u32 v25, {HB}, v21")
    srd(16, 80, 2048 * 1792)
    e("s_lshl_b32 s29, s28, 6"); e("v_add_u32 v14, s29, v16"); e("s_movk_i32 s29, 1792"); e("v_mul_lo_u32 v14, v14, s29"); e("v_lshl_add_u32 v14, v17, 3, v14")
    e("s_mul_i32 s29, s24, 896"); e("s_add_u32 s29, s29, s35"); e("s_add_u32 s29, s29, s33"); e("v_add_u32 v14, s29, v14")
    for rb in range(4): e(f"s_mov_b32 s{60+rb}, {rb*16*1792}")
    e("s_lshl_b32 s29, s27, 2"); e(f"s_add_u32 s29, s29, {ST}"); e("v_mov_b32 v26, s29")
    e("v_and_b32 v27, 7, v5"); e("v_lshlrev_b32 v27, 2, v27"); e(f"v_add_u32 v27, {ST}, v27")
    e("s_mov_b32 s89, 0")
    PQ, KV, S1 = 32, 64, 80
    LDF = f"buffer_load_dwordx2 {vr(FL,2)}, v3, s[20:23], 0 offen" + SC
    LDE = f"buffer_load_dwordx2 {vr(EF,2)}, v28, s[20:23], 0 offen" + SC
    e("v_and_b32 v28, 7, v5"); e("v_lshlrev_b32 v28, 3, v28"); e("s_lshl_b32 s29, s27, 6"); e(f"s_add_u32 s29, s29, {WS_E3}"); e("v_add_u32 v28, s29, v28")
    e("s_waitcnt vmcnt(0)")
    ts(7)
    st2("buffer_store_dwordx2 v[118:119], v2, s[20:23], 0 offen")
    e("s_cmp_eq_u32 s24, 0"); e("s_cbranch_scc0 P2_NE")
    e(LDE)
    lab("P2_NE")
    e("s_barrier")
    ts(8)
    e("s_cmp_eq_u32 s27, 7"); e("s_cbranch_scc1 P2_NH")
    for h in range(16):
        for u in range(2):
            bs, oh = (20, h) if h < 8 else ((22, h - 8) if h < 12 else (24, h - 12))
            e(f"ds_read_b64_tr_b16 {vr(WF+4*h+2*u,2)}, v{bs+u} offset:{oh*6272}")
    lab("P2_NH")
    e(LDF)
    e("s_waitcnt lgkmcnt(0)"); e("s_barrier")
    ts(9)
    e("s_mov_b32 s93, 0")
    e("s_cmp_eq_u32 s24, 0"); e("s_cbranch_scc1 P2_A")
    AFS = [32, 96]
    def gemm(tag, bars):
        Lq = Q("lgkmcnt", 15)
        Lq.issue("ds_read_b32 v29, v27", "st")
        def rd(rb, k): Lq.issue(f"ds_read_b128 {vr(AFS[rb&1]+4*k,4)}, v13 offset:{rb*16384+1024*k}", f"a{rb}_{k}")
        for k in range(16): rd(0, k)
        Lq.wait("st")
        e("v_cmp_ne_u32 vcc, 0, v29"); e("s_nop 4"); e("s_cbranch_vccnz FALLBACK")
        for rb in range(4):
            if bars and rb < 3:
                e(f"s_waitcnt vmcnt({4-2*rb+max(0,rb-1)})"); e("s_barrier")
            ts(11 + rb)
            a = AC2 + 4 * (rb & 1)
            for k in range(16):
                Lq.wait(f"a{rb}_{k}")
                e(f"v_mfma_f32_16x16x32_bf16 {vr(a,4)}, {vr(WF+4*k,4)}, {vr(AFS[rb&1]+4*k,4)}, {vr(a,4) if k else 0}")
                if rb < 3: rd(rb + 1, k)
                if rb and k == 3:
                    p = AC2 + 4 * ((rb - 1) & 1)
                    cvt_pk(p, p, p + 1); cvt_pk(p + 1, p + 2, p + 3)
                    e(f"buffer_store_dwordx2 {vr(p,2)}, v14, s[16:19], s{60+rb-1} offen")
        e("s_nop 7"); e("s_nop 7")
        p = AC2 + 4
        cvt_pk(p, p, p + 1); cvt_pk(p + 1, p + 2, p + 3)
        e(f"buffer_store_dwordx2 {vr(p,2)}, v14, s[16:19], s63 offen")
        ts_end(15)
        e("s_branch K_END")
    def w7tail(bars):
        e("ds_read_b32 v29, v27"); e("s_waitcnt lgkmcnt(0)")
        e("v_cmp_ne_u32 vcc, 0, v29"); e("s_nop 4"); e("s_cbranch_vccnz FALLBACK")
        if bars:
            for rb in range(3): e(f"s_waitcnt vmcnt({4-2*rb})"); e("s_barrier")
        ts_end(15)
        e("s_branch K_END")
    e("s_cmp_eq_u32 s96, 0"); e("s_cbranch_scc0 PB_GO")
    lab("PB_POLL")
    e("s_waitcnt vmcnt(0)")
    chk(FL, T0)
    e("s_cbranch_vccz PB_GO")
    e(LDF)
    e("s_add_u32 s93, s93, 1"); e(f"s_cmp_lt_u32 s93, {LIMIT}"); e("s_cbranch_scc1 PB_POLL")
    e("s_mov_b32 s89, 1"); e("s_branch PB_ND")
    lab("PB_GO")
    ts(10)
    for rb in range(4):
        e(f"s_add_u32 m0, s34, {rb*16384}"); e("s_nop 0")
        for hh in range(2): e(f"buffer_load_dwordx4 v4, s[20:23], s{40+rb} offen offset:{1024*hh}" + SC + " lds")
    lab("PB_ND")
    e("v_mov_b32 v29, s89"); e("ds_write_b32 v26, v29")
    e("s_waitcnt vmcnt(6) lgkmcnt(0)"); e("s_barrier")
    e("s_cmp_eq_u32 s27, 7"); e("s_cbranch_scc1 PB_W7")
    gemm("b", True)
    lab("PB_W7")
    w7tail(True)
    lab("P2_A")
    def ldpq():
        for rb in range(4):
            for hh in range(2): e(f"buffer_load_dwordx4 {vr(PQ+8*rb+4*hh,4)}, v4, s[20:23], s{40+rb} offen offset:{1024*hh}" + SC)
    def ldkv():
        for k in range(4): e(f"buffer_load_dwordx4 {vr(KV+4*k,4)}, v12, s[20:23], s44 offen offset:{1024*k}" + SC)
    e("s_lshl_b32 s29, s27, 12"); e("v_add_u32 v12, s29, v13"); e(f"s_mov_b32 s44, {WS_KVT}")
    e("v_mov_b32 v8, 0"); e("v_mov_b32 v9, 0"); e("v_mov_b32 v10, 0"); e("v_mov_b32 v11, 0x358637bd")
    e("s_cmp_eq_u32 s96, 0"); e("s_cbranch_scc0 PA_FB")
    e("s_mov_b32 s45, 0")
    lab("PA_EP")
    e("s_waitcnt vmcnt(0)")
    chk(EF, T0)
    e("s_cbranch_vccz PA_FP")
    e(LDE)
    e("s_add_u32 s45, s45, 1"); e(f"s_cmp_lt_u32 s45, {LIMIT}"); e("s_cbranch_scc1 PA_EP")
    e("s_branch PA_FAIL")
    lab("PA_FP")
    chk(FL, T0)
    e("s_cbranch_vccz PA_FOK")
    e(LDF)
    e("s_waitcnt vmcnt(0)")
    e("s_add_u32 s45, s45, 1"); e(f"s_cmp_lt_u32 s45, {LIMIT}"); e("s_cbranch_scc1 PA_FP")
    e("s_branch PA_FAIL")
    lab("PA_FOK")
    ldpq()
    ts(10)
    lab("PA_KL")
    ldkv()
    e("s_waitcnt vmcnt(0)")
    e(f"v_max3_u32 v6, v{KV}, v{KV+1}, v{KV+2}")
    for k in range(3, 15, 2): e(f"v_max3_u32 v6, v6, v{KV+k}, v{KV+k+1}")
    e(f"v_max_u32 v6, v6, v{KV+15}"); e("v_cmp_eq_u32 vcc, -1, v6"); e("s_nop 4")
    e("s_cbranch_vccz PA_GO")
    e("s_add_u32 s45, s45, 1"); e(f"s_cmp_lt_u32 s45, {LIMIT}"); e("s_cbranch_scc1 PA_KL")
    lab("PA_FAIL")
    e("s_mov_b32 s89, 1"); e("s_branch PA_ST")
    lab("PA_FB")
    ldpq()
    e("v_lshrrev_b32 v7, 2, v16"); e("v_and_b32 v18, 3, v16"); e("v_mul_u32_u24 v7, 3, v7"); e("v_add_u32 v7, v7, v18"); e("v_add_u32 v7, 64, v7")
    e("v_cmp_eq_u32 vcc, 3, v18"); e("v_mov_b32 v18, 76"); e("s_nop 0"); e("v_cndmask_b32 v7, v7, v18, vcc")
    e("v_lshrrev_b32 v18, 1, v17"); e("v_lshlrev_b32 v18, 11, v18"); e("v_and_b32 v19, 1, v17"); e("v_lshl_add_u32 v18, v19, 9, v18")
    e("s_lshl_b32 s29, s27, 13"); e("v_add_u32 v18, s29, v18")
    e("v_lshl_add_u32 v6, v16, 4, v18"); e("v_lshl_add_u32 v7, v7, 4, v18")
    e("v_add_u32 v18, 4096, v6"); e("v_add_u32 v19, 4096, v7")
    for k in range(32): e(f"v_mov_b32 v{S1+k}, 0")
    e("s_lshr_b32 s35, s95, 1"); e("s_lshl_b32 s35, s35, 20"); e(f"s_add_u32 s35, s35, {WS_PRIV}"); e("s_mov_b32 s45, 0")
    lab("PA_FL")
    for k, v in enumerate((6, 7, 18, 19)):
        for u in range(2): e(f"buffer_load_dwordx4 {vr(120+8*k+4*u,4)}, v{v}, s[20:23], s35 offen offset:{256*u}" + SC)
    e("s_add_u32 s35, s35, 65536"); e("s_add_u32 s45, s45, 1")
    e("s_waitcnt vmcnt(0)")
    for k in range(16): e(f"v_pk_add_f32 {vr(S1+2*k,2)}, {vr(S1+2*k,2)}, {vr(120+2*k,2)}")
    e("s_cmp_lt_u32 s45, 16"); e("s_cbranch_scc1 PA_FL")
    e("v_cmp_eq_u32 vcc, 3, v17")
    for k in range(16): cvt_pk(KV + k, S1 + 2 * k, S1 + 2 * k + 1)
    for k in range(4):
        for u in (2, 3): e(f"v_cndmask_b32 v{KV+4*k+u}, v{KV+4*k+u}, 0, vcc")
    e("s_nop 1")
    lab("PA_GO")
    ts(17)
    items = [(rb, hh) for rb in range(4) for hh in range(2)]
    def s1valu(k):
        rb, hh = items[k]; a = S1 + 8 * (k & 3); o = PQ + 8 * rb + 4 * hh
        e(f"v_rcp_f32 v{a+7}, v{a+7}"); e("s_nop 0")
        for u in range(3): e(f"v_pk_mul_f32 {vr(a+2*u,2)}, {vr(a+2*u,2)}, {vr(a+6,2)} op_sel:[0,1] op_sel_hi:[1,1]")
        e(f"v_mul_f32 v{a+6}, v{a+6}, v{a+7}")
        for u in range(3): cvt_pk(o + u, a + 2 * u, a + 2 * u + 1)
        e(f"v_cvt_pk_bf16_f32 v{o+3}, v{a+6}, 0")
        e(f"ds_write_b128 v4, {vr(o,4)} offset:{rb*16384+1024*hh}")
    for k in range(10):
        if k < 8:
            rb, hh = items[k]; a = S1 + 8 * (k & 3)
            for eb in range(2):
                e(f"v_mfma_f32_16x16x32_bf16 {vr(a+4*eb,4)}, {vr(KV+8*hh+4*eb,4)}, {vr(PQ+8*rb+4*hh,4)}, {'v[8:11]' if eb else 0}")
        else: e("s_nop 7")
        if k >= 2: s1valu(k - 2)
    lab("PA_ST")
    e("v_mov_b32 v29, s89"); e("ds_write_b32 v26, v29")
    e("s_waitcnt lgkmcnt(0)"); e("s_barrier")
    e("s_cmp_eq_u32 s27, 7"); e("s_cbranch_scc1 PA_W7")
    gemm("a", False)
    lab("PA_W7")
    w7tail(False)
    lab("FALLBACK")
    e("s_waitcnt vmcnt(0) lgkmcnt(0)"); e("s_barrier")
    e("s_mov_b32 s96, 1"); e("s_mov_b32 s97, 0"); e("s_add_u32 s2, s95, 2"); e("s_and_b32 s2, s2, 255")
    e("s_branch RESTART")
    lab("K_END")
    e("s_endpgm")

def main():
    hdr = open(f"cdna_kernels/{NAME}.s.ref").read().split("\n")
    top = [l for l in hdr if l.startswith(";") and "@launch" not in l]
    top.append(f"; @launch kernel={KN} grid=(256,1,1) block=(512,1,1) lds={LDS}")
    L.extend(top)
    L.append('.amdgcn_target "amdgcn-amd-amdhsa--gfx950"'); L.append(".text")
    gen()
    L.append('.section .rodata,"a"')
    L.append(kd(KN, 256, 256))
    open(OUT, "w").write("\n".join(L) + "\n")
main()
```

```python
import sys, os
VAR = os.environ.get("VAR", "")
VS = VAR.split("_")
NAME = "concat_heads__linear_attn_block__sliding_local_dilated__prompt"
OUT = os.environ.get("OUT", f"cdna_kernels/{NAME}.s")
L = []
def e(s=""): L.append("    " + s if s and not s.endswith(":") else s)
def lab(s): L.append(s + ":")

WS_PQA = 0
WS_OB = 0x200000
WS_KVP = 0x400000
WS_KVT = 0x600000
WS_F = 0x680000
WS_EA = 0x690000
WS_S = 0x694000
WS_GO = 0x698000
WS_TS = 0x800000
WS_WOF = 0x900000
WOG = 0x80000
WS_PRIV = 0x1000000
WS_END = WS_PRIV + 128 * 0x20000
LIMIT = int(os.environ.get("LIMIT", "4000"))
ROT = os.environ.get("ROT", "full2")
WFS = [int(x) for x in os.environ.get("WFS", "4,3,3,3,3").split(",")]
SLP = int(os.environ.get("SLP", "0"))
RSL = int(os.environ.get("RSL", "0"))
RSL0 = int(os.environ.get("RSL0", "0"))
MLO, MHI = 0x7f4a7c15 & ~15, 0x9e3779b9
SC = " sc0 sc1"
OSC = SC if "osc" in VS else ""
WFP = "" if "wfp" in VS else SC

def vr(a, n=1): return f"v{a}" if n == 1 else f"v[{a}:{a+n-1}]"
def srd(dst, ptr_lo, nbytes):
    e(f"s_mov_b32 s{dst}, s{ptr_lo}"); e(f"s_and_b32 s{dst+1}, s{ptr_lo+1}, 0xffff")
    e(f"s_mov_b32 s{dst+2}, {nbytes}"); e(f"s_mov_b32 s{dst+3}, 0x00020000")
def kd(name, nvgpr, accum, nsgpr=100):
    return f""".p2align 6
.amdhsa_kernel {name}
  .amdhsa_next_free_vgpr {nvgpr}
  .amdhsa_next_free_sgpr {nsgpr}
  .amdhsa_accum_offset {accum}
  .amdhsa_group_segment_fixed_size 0
  .amdhsa_kernarg_size 72
  .amdhsa_user_sgpr_count 2
  .amdhsa_user_sgpr_kernarg_segment_ptr 1
  .amdhsa_system_sgpr_workgroup_id_x 1
.end_amdhsa_kernel"""
def cvt(dst, a, b): return f"v_cvt_pk_bf16_f32 v{dst}, v{a}, v{b}"
def cvt_pk(dst, a, b): e(cvt(dst, a, b))
KN = NAME + "_kernel"
OOB = "0x7fff0000"
TSON = "ts" in VS
def ts(n):
    if not TSON: return
    e("s_memtime s[98:99]"); e("s_waitcnt lgkmcnt(0)"); e(f"v_writelane_b32 v255, s98, {n}")
    if n == 0:
        e("s_memrealtime s[98:99]"); e("s_waitcnt lgkmcnt(0)"); e("v_writelane_b32 v255, s98, 62")
def ts_dyn(base):
    if not (TSON and "tsl" in VS): return
    e("s_memtime s[98:99]"); e("s_waitcnt lgkmcnt(0)"); e(f"s_add_u32 m0, s39, {base}"); e("s_nop 3"); e("v_writelane_b32 v255, s98, m0")
def tsl(n):
    if "tsl" in VS: ts(n)
def ts_end(n):
    if not TSON: return
    ts(n); e("s_waitcnt vmcnt(0)"); ts(n + 1)
    e("s_memrealtime s[98:99]"); e("s_waitcnt lgkmcnt(0)"); e("v_writelane_b32 v255, s98, 63")
    e("v_and_b32 v254, 63, v0"); e("v_lshlrev_b32 v254, 2, v254"); e("s_lshl_b32 s98, s2, 11"); e("s_lshl_b32 s99, s27, 8")
    e("s_add_u32 s98, s98, s99"); e(f"s_add_u32 s98, s98, {WS_TS}")
    e("buffer_store_dword v255, v254, s[20:23], s98 offen")

class Q:
    def __init__(self, name, mx): self.q = []; self.name = name; self.mx = mx
    def issue(self, ins, tag=None): e(ins); self.q.append(tag)
    def wait(self, tag):
        if tag not in self.q: return
        i = len(self.q) - 1 - self.q[::-1].index(tag)
        n = len(self.q) - 1 - i
        e(f"s_waitcnt {self.name}({min(n, self.mx)})"); self.q = self.q[i + 1:]

XS = 144 * 128
WSr = 352
WH = 32 * WSr
STG = XS + 2 * WH
LDS = 4 * STG
SCR = 3 * STG
HX = SCR + 16384
ST = HX + 20480
assert ST + 128 <= LDS
_n = [0]
def uid(): _n[0] += 1; return _n[0]
def st2(ins):
    k = uid()
    e("s_cmp_eq_u32 s92, 0"); e(f"s_cbranch_scc1 SL{k}"); e(ins); e(f"s_branch SD{k}")
    lab(f"SL{k}"); e(ins + SC); lab(f"SD{k}")
T0 = 240; FD = 242
def bad(a, xcc=None):
    e(f"v_xor_b32 v{a}, {hex(MLO)}, v{a}"); e(f"v_xor_b32 v{a+1}, {hex(MHI)}, v{a+1}")
    if xcc is not None: e(f"v_and_b32 v{xcc}, 15, v{a}"); e(f"v_xor_b32 v{xcc}, s88, v{xcc}")
    e(f"v_sub_co_u32 v{a}, vcc, v{a}, v{T0}"); e("s_nop 1")
    e(f"v_subb_co_u32 v{a+1}, vcc, v{a+1}, v{T0+1}, vcc")
    e(f"v_lshrrev_b32 v{a}, 24, v{a}")
    if xcc is not None: e(f"v_or3_b32 v{a}, v{a}, v{a+1}, v{xcc}")
    else: e(f"v_or_b32 v{a}, v{a}, v{a+1}")
def chk(a, xcc=None, two=False):
    bad(a, xcc)
    if two:
        bad(a + 2, xcc); e(f"v_or_b32 v{a}, v{a}, v{a+2}")
    e(f"v_cmp_ne_u32 vcc, 0, v{a}"); e("s_nop 4")

F = [32, 72]; ACC = 112; WF = 176
CM = 168; CMP = 244; ONES = 248; PAR = 252
BIGN = "0xcfb2d05e"

def pre0():
    e("s_andn2_b32 s90, s86, 15"); e("s_sub_u32 s29, s90, 512"); e("s_subb_u32 s30, s87, 0")
    e(f"v_mov_b32 v{T0}, s29"); e(f"v_mov_b32 v{T0+1}, s30")
    e("s_or_b32 s90, s90, s88"); e(f"s_xor_b32 s90, s90, {hex(MLO)}"); e(f"s_xor_b32 s91, s87, {hex(MHI)}")
    e(f"v_mov_b32 v{FD}, s90"); e(f"v_mov_b32 v{FD+1}, s91")
LP0 = SC if "allsc" in VS else " sc1"
def ld2(inss, tail=""):
    if isinstance(inss, str): inss = [inss]
    k = uid()
    e("s_cmp_eq_u32 s92, 0"); e(f"s_cbranch_scc1 SL{k}")
    for x in inss: e(x + LP0 + tail if x.startswith("buffer") else x)
    e(f"s_branch SD{k}"); lab(f"SL{k}")
    for x in inss: e(x + SC + tail if x.startswith("buffer") else x)
    lab(f"SD{k}")

def pre2(sfx):
    e("s_and_b32 s29, s27, 1"); e("s_bfe_u32 s30, s27, 0x10001"); e("s_lshr_b32 s31, s27, 2")
    e("s_lshl_b32 s31, s31, 1"); e("s_add_u32 s31, s31, s29"); e("s_lshl_b32 s31, s31, 1"); e("s_lshl_b32 s32, s30, 2")
    e("s_cmp_eq_u32 s24, 0"); e("s_cselect_b32 s40, s29, s30"); e("s_cselect_b32 s41, s32, s31")
    e("v_lshrrev_b32 v6, 1, v16"); e("v_xor_b32 v6, v6, v17"); e("v_lshlrev_b32 v7, 7, v16"); e("v_lshl_add_u32 v6, v6, 4, v7"); e("v_xor_b32 v7, 64, v6")
    e("s_lshl_b32 s29, s41, 11"); e("s_add_u32 s29, s29, 2048"); e("v_add_u32 v2, s29, v6"); e("v_add_u32 v3, s29, v7")
    e("v_lshrrev_b32 v4, 2, v16"); e("v_lshl_add_u32 v4, v17, 2, v4"); e(f"v_mul_u32_u24 v4, {WSr}, v4"); e("v_and_b32 v8, 3, v16")
    e("v_lshl_add_u32 v4, v8, 3, v4"); e("s_mul_i32 s29, s40, 56"); e(f"s_add_u32 s29, s29, {XS}"); e("v_add_u32 v4, s29, v4")
    e("s_mov_b32 s42, 0"); e("s_mov_b32 s39, 0")
    e("s_lshl_b32 s33, s26, 1"); e("s_add_u32 s33, s33, s40")
    e("s_lshl_b32 s29, s25, 3"); e("s_add_u32 s29, s29, s41"); e("s_lshl_b32 s29, s29, 4"); e("s_add_u32 s29, s29, s33"); e("s_lshl_b32 s29, s29, 10")
    e("s_lshl_b32 s30, s24, 21"); e("s_add_u32 s70, s29, s30")
    e("s_lshr_b32 s29, s27, 2"); e("s_or_b32 s29, s29, s24"); e("s_cmp_eq_u32 s29, 0"); e(f"s_cbranch_scc0 PR_A{sfx}")
    e("s_lshl_b32 s29, s41, 2"); e("s_add_u32 s29, s29, s33"); e("s_lshl_b32 s29, s29, 12")
    e("s_lshr_b32 s31, s95, 1"); e("s_lshl_b32 s31, s31, 17"); e(f"s_add_u32 s31, s31, {WS_PRIV}"); e("s_add_u32 s31, s31, s29")
    e("s_lshl_b32 s29, s33, 1"); e("s_lshr_b32 s30, s41, 2"); e("s_add_u32 s29, s29, s30"); e("s_lshl_b32 s29, s29, 10")
    e("s_lshl_b32 s30, s25, 15"); e(f"s_add_u32 s30, s30, {WS_KVP}"); e("s_add_u32 s30, s30, s29")
    e("s_cmp_eq_u32 s96, 0"); e("s_cselect_b32 s70, s30, s31")
    lab(f"PR_A{sfx}")
    e("s_lshl_b32 s29, s24, 4"); e("s_add_u32 s29, s29, s25"); e("s_lshl_b32 s29, s29, 3"); e("s_add_u32 s29, s29, s26"); e("s_lshl_b32 s29, s29, 7")
    e("s_lshl_b32 s30, s27, 3"); e("s_add_u32 s29, s29, s30"); e(f"s_add_u32 s29, s29, {WS_F}")
    e("s_lshr_b32 s30, s27, 2"); e("s_or_b32 s30, s30, s24"); e("s_andn2_b32 s30, s30, s96")
    if "failf" in VS:
        e("s_cmp_eq_u32 s2, 37"); e("s_cselect_b32 s30, 0, s30"); e("s_cmp_eq_u32 s2, 100"); e("s_cselect_b32 s30, 0, s30")
    e("s_cmp_eq_u32 s30, 1"); e(f"s_cselect_b32 s29, s29, {OOB}")
    e(f"v_mov_b32 v9, {OOB}"); e("v_writelane_b32 v9, s29, 0")
    e("s_bfe_u32 s31, s2, 0x20001"); e("s_lshl_b32 s31, s31, 3"); e("s_add_u32 s31, s31, s26")
    e("s_lshr_b32 s29, s31, 1"); e("s_lshl_b32 s30, s24, 4"); e("s_add_u32 s29, s29, s30"); e("s_lshl_b32 s29, s29, 3"); e("s_add_u32 s29, s29, s27"); e("s_lshl_b32 s29, s29, 7")
    e("s_and_b32 s30, s31, 1"); e("s_cmp_eq_u32 s24, 0"); e("s_cselect_b32 s30, 1, s30"); e("s_lshl_b32 s30, s30, 5"); e("s_add_u32 s29, s29, s30"); e(f"s_add_u32 s29, s29, {WS_F}")
    e("v_and_b32 v10, 3, v5"); e("v_lshlrev_b32 v10, 3, v10"); e("v_add_u32 v10, s29, v10")
    e("s_lshl_b32 s29, s27, 12"); e("v_add_u32 v12, s29, v13")
    e("s_lshl_b32 s29, s27, 11"); e("v_add_u32 v15, s29, v13")
    e("s_lshl_b32 s72, s31, 16"); e("s_lshl_b32 s29, s24, 21"); e("s_add_u32 s72, s72, s29")
    for rb in range(1, 4): e(f"s_add_u32 s{72+rb}, s72, {16384*rb}")
    e("s_bfe_u32 s32, s2, 0x20003")
    e("s_lshl_b32 s29, s31, 6"); e("v_add_u32 v14, s29, v16"); e("v_mul_u32_u24 v14, 1792, v14"); e("v_lshl_add_u32 v14, v17, 3, v14")
    e("s_mul_i32 s29, s24, 896"); e("s_lshl_b32 s30, s27, 5"); e("s_add_u32 s29, s29, s30"); e("s_mul_i32 s30, s32, 224"); e("s_add_u32 s29, s29, s30"); e("v_add_u32 v14, s29, v14")
    for rb in range(4): e(f"s_mov_b32 s{76+rb}, {rb*16*1792}")
    e("s_mul_i32 s29, s32, 7"); e("s_add_u32 s29, s29, s27"); e("s_lshl_b32 s29, s29, 14")
    e("s_cmp_eq_u32 s27, 7"); e(f"s_cselect_b32 s29, {OOB}, s29"); e("v_add_u32 v18, s29, v13")
    e("s_and_b32 s29, s2, 7"); e("s_lshl_b32 s29, s29, 19"); e(f"s_add_u32 s71, s29, {WS_WOF}")
    for k in range(3): e(f"s_add_u32 s{82+k}, s71, {4096*(k+1)}")
    e("s_lshl_b32 s29, s27, 2"); e(f"s_add_u32 s29, s29, {ST}"); e("v_mov_b32 v30, s29")
    e("v_and_b32 v31, 7, v5"); e("v_lshlrev_b32 v31, 2, v31"); e(f"v_add_u32 v31, {ST}, v31")
    e("v_cmp_eq_u32 s[66:67], 3, v17")
    e("s_cmp_eq_u32 s24, 0"); e(f"s_cbranch_scc1 PR_B{sfx}")
    e("v_lshlrev_b32 v8, 2, v17"); e("v_sub_u32 v8, v16, v8"); e("v_add_u32 v8, 16, v8")
    e(f"v_mov_b32 v1, {BIGN}")
    for sl in range(8):
        kb, i = sl >> 2, sl & 3
        e(f"v_subrev_u32 v{CM+sl}, {16*kb+i}, v8"); e(f"v_alignbit_b32 v{CM+sl}, v{CM+sl}, v{CM+sl}, 1")
    for sl in range(8):
        e(f"v_cmp_ge_u32 vcc, 7, v{CM+sl}"); e("s_nop 1"); e(f"v_cndmask_b32 v{CM+sl}, v1, 0, vcc")
    e("s_add_u32 s30, s25, s41"); e("s_cmp_eq_u32 s30, 0"); e("s_cselect_b64 vcc, -1, 0")
    for sl in range(4): e(f"v_cndmask_b32 v{CMP+sl}, v{CM+sl}, v1, vcc")
    e("v_and_b32 v8, 1, v16"); e("v_cmp_eq_u32 s[64:65], 1, v8")
    e("v_mov_b32 v8, 0xffff"); e("v_mov_b32 v1, 0xffff0000"); e(f"v_cndmask_b32 v{PAR}, v8, v1, s[64:65]")
    for i in range(4): e(f"v_mov_b32 v{ONES+i}, 0x3f803f80")
    e("s_mov_b32 s68, 0x3e8b97f6"); e("s_mov_b32 s69, 0x3e8b97f6")
    e("s_mul_i32 s29, s40, 10240"); e(f"s_add_u32 s29, s29, {HX}"); e("v_add_u32 v8, s29, v13")
    e("s_lshl_b32 s29, s41, 10"); e("v_add_u32 v19, s29, v8")
    e(f"s_branch PR_D{sfx}")
    lab(f"PR_B{sfx}")
    e("s_mov_b32 s68, 0x3fb8aa3b"); e("s_mov_b32 s69, 0x3fb8aa3b")
    e("v_cmp_le_u32 s[64:65], 12, v16")
    for i in range(3): e(f"v_mov_b32 v{ONES+i}, 0")
    e(f"v_mov_b32 v{ONES+3}, 0x358637bd"); e(f"v_mov_b32 v{PAR}, 0x3f803f80")
    if sfx == "c":
        e("s_lshl_b32 s29, s26, 2"); e("s_add_u32 s29, s29, s32")
        e("s_lshl_b32 s30, s29, 10"); e("s_lshl_b32 s31, s27, 8"); e("s_add_u32 s30, s30, s31"); e(f"s_add_u32 s30, s30, {WS_KVP}")
        e("s_and_b32 s31, s32, 1"); e("s_lshl_b32 s31, s31, 2"); e("s_add_u32 s31, s31, s27"); e("s_cmp_eq_u32 s31, 7"); e(f"s_cselect_b32 s30, {OOB}, s30")
        e("v_lshlrev_b32 v244, 15, v17"); e("v_lshl_add_u32 v244, v16, 4, v244"); e("v_add_u32 v244, s30, v244")
        e("v_mul_u32_u24 v1, 11, v16"); e("v_lshrrev_b32 v1, 5, v1"); e("v_add_u32 v1, v1, v16")
        e("v_lshlrev_b32 v8, 2, v16"); e("v_subrev_u32 v8, 45, v8"); e("v_cndmask_b32 v1, v1, v8, s[64:65]"); e("v_add_u32 v1, 64, v1")
        e("v_cmp_lt_u32 vcc, 1, v17"); e("v_and_b32 v8, 1, v17"); e("s_lshr_b32 s30, s29, 1"); e("v_cndmask_b32 v1, v16, v1, vcc")
        e("v_lshlrev_b32 v1, 4, v1"); e("v_lshl_add_u32 v1, v8, 2, v1")
        e("s_lshl_b32 s30, s30, 11"); e("s_and_b32 s31, s29, 1"); e("s_lshl_b32 s31, s31, 3"); e("s_add_u32 s30, s30, s31"); e("s_lshl_b32 s31, s27, 8"); e("s_add_u32 s30, s30, s31")
        e("s_and_b32 s31, s2, 7"); e("s_lshl_b32 s31, s31, 15"); e("s_add_u32 s30, s30, s31"); e(f"s_add_u32 s30, s30, {WS_KVT}")
        e("v_add_u32 v245, s30, v1")
        e("v_mov_b32 v246, 0x3f80"); e("v_mov_b32 v247, 0x3f800000")
        e("s_lshl_b32 s29, s27, 11"); e(f"s_add_u32 s29, s29, {HX}"); e("v_add_u32 v8, s29, v13"); e("s_xor_b32 s29, s27, 2"); e("s_lshl_b32 s29, s29, 11"); e(f"s_add_u32 s29, s29, {HX}"); e("v_add_u32 v19, s29, v13")
    lab(f"PR_D{sfx}")

DORD = (0, 1, 2, 3, 6, 7, 8, 9, 4, 5)
NA = int(os.environ.get("NA", "5"))
def dma_i(i):
    sr, so = ("s[12:15]", 35) if i < 4 else (("s[44:47]", 37) if i < 6 else ("s[16:19]", 36))
    return f"buffer_load_dwordx4 v{20+i}, {sr}, s{so} offen lds"
KOFF = ["s_lshl_b32 s35, s34, 7", f"s_mul_i32 s36, s34, {64*2688}", "s_cmp_eq_u32 s38, 3", "s_cselect_b32 s37, s35, s36",
        "s_add_u32 s34, s34, 1", "s_cmp_eq_u32 s34, 7", "s_cselect_b32 s34, 0, s34"]
def gl_half(h):
    idx = DORD[:NA] if h == 0 else DORD[NA:]
    grp = [(["s_mov_b32 s62, s42"] + KOFF) if h == 0 else []]
    for i in idx:
        grp[-1].append(f"s_add_u32 m0, s{52+i}, s62")
        grp.append([dma_i(i)])
    return grp
def gl_now(halves):
    for h in halves:
        for g in gl_half(h):
            for x in g:
                if x.startswith("buffer"): e("s_nop 0")
                e(x)

def gen():
    L.append(".p2align 8"); L.append(f".globl {KN}"); L.append(f".type {KN},@function"); lab(KN)
    e("s_cmp_ge_u32 s2, 256"); e("s_cbranch_scc1 K_END")
    e("s_memrealtime s[86:87]")
    e("s_getreg_b32 s88, hwreg(HW_REG_XCC_ID)"); e("s_and_b32 s88, s88, 15")
    e("s_mov_b32 s95, s2"); e("s_mov_b32 s96, 0"); e("s_mov_b32 s97, 0")
    ts(0)
    lab("RESTART")
    e("s_and_b32 s24, s2, 1"); e("s_mul_i32 s29, s24, 24"); e("s_add_u32 s30, s0, s29"); e("s_addc_u32 s31, s1, 0")
    e("s_load_dwordx4 s[4:7], s[30:31], 0"); e("s_load_dwordx2 s[8:9], s[0:1], 64"); e("s_load_dwordx2 s[10:11], s[30:31], 16"); e("s_load_dwordx2 s[80:81], s[0:1], 48")
    e("v_lshrrev_b32 v1, 6, v0"); e("s_bfe_u32 s25, s2, 0x20001"); e("v_readfirstlane_b32 s27, v1")
    e("s_lshl_b32 s25, s25, 2"); e("s_bfe_u32 s26, s2, 0x20003"); e("s_add_u32 s25, s25, s26"); e("s_lshr_b32 s26, s2, 5")
    e("s_lshl_b32 s28, s25, 7"); e("s_mov_b32 s89, 0")
    e("v_and_b32 v5, 63, v0"); e("v_lshlrev_b32 v13, 4, v5")
    e("v_and_b32 v16, 15, v0"); e("v_bfe_u32 v17, v0, 4, 2")
    e("s_and_b32 s38, s27, 3")
    e("s_cmp_lt_u32 s27, 4"); e("s_cbranch_scc1 CW_PRO")
    e("v_lshrrev_b32 v6, 3, v5"); e("v_and_b32 v7, 7, v5"); e("v_mul_u32_u24 v199, 896, v6"); e("v_lshl_add_u32 v199, v7, 4, v199"); e("v_xor_b32 v7, v7, v17")
    e("s_lshl_b32 s29, s38, 5"); e("s_add_u32 s29, s29, s28"); e("s_sub_u32 s29, s29, 16")
    e("v_add_u32 v6, s29, v6"); e("s_movk_i32 s31, 896"); e("v_mul_lo_u32 v6, v6, s31")
    e("v_lshl_add_u32 v20, v7, 4, v6"); e("v_xor_b32 v7, 4, v7"); e("v_lshl_add_u32 v21, v7, 4, v6"); e("v_add_u32 v21, 7168, v21")
    e("v_add_u32 v22, 14336, v20"); e("v_add_u32 v23, 14336, v21")
    def wvoff(dst, add):
        e(f"s_add_u32 s30, s38, {add}"); e("s_lshl_b32 s30, s30, 6"); e("v_add_u32 v40, s30, v5")
        e("s_mov_b32 s31, 0xba2e8bb"); e("v_mul_hi_u32 v41, v40, s31")
        e("v_mul_u32_u24 v42, 22, v41"); e("v_sub_u32 v42, v40, v42")
        e("v_mul_u32_u24 v43, 37, v42"); e("v_lshrrev_b32 v43, 8, v43")
        e("v_mul_u32_u24 v44, 7, v43"); e("v_sub_u32 v44, v42, v44")
        e("v_bfe_u32 v45, v41, 2, 2"); e("v_lshrrev_b32 v46, 4, v41"); e("v_and_b32 v41, 3, v41")
        e("v_lshl_add_u32 v41, v45, 3, v41"); e("v_lshl_add_u32 v41, v46, 2, v41")
        e(f"v_mul_u32_u24 v{dst}, 2688, v41"); e("v_mul_u32_u24 v43, 896, v43"); e(f"v_add3_u32 v{dst}, v{dst}, v43, s32")
        e("v_cmp_eq_u32 vcc, 21, v42"); e(f"v_lshl_add_u32 v{dst}, v44, 4, v{dst}"); e(f"v_add_u32 v{dst+1}, {32*2688}, v{dst}")
        e(f"v_cndmask_b32 v{dst}, v{dst}, v47, vcc"); e(f"v_cndmask_b32 v{dst+1}, v{dst+1}, v47, vcc")
    e("s_mul_i32 s32, s26, 112"); e(f"v_mov_b32 v47, {OOB}")
    wvoff(26, 0); wvoff(28, 4)
    e("v_add_u32 v24, 28672, v20"); e("v_add_u32 v25, 28672, v21")
    e("s_cmp_eq_u32 s38, 3"); e("s_cbranch_scc1 LD_R3")
    wvoff(24, 8)
    lab("LD_R3")
    e("s_or_b32 s29, s24, s38"); e("s_cmp_eq_u32 s29, 0"); e("s_cselect_b64 vcc, -1, 0"); e("v_cndmask_b32 v20, v20, v47, vcc"); e("v_cndmask_b32 v21, v21, v47, vcc")
    e("s_lshl_b32 s52, s38, 12")
    for i in range(1, 4): e(f"s_add_u32 s{52+i}, s52, {1024*i}")
    e("s_lshl_b32 s58, s38, 10"); e(f"s_add_u32 s58, s58, {XS}"); e(f"s_add_u32 s59, s58, {WH}")
    e("s_add_u32 s60, s58, 4096"); e("s_add_u32 s61, s59, 4096")
    e("s_add_u32 s56, s58, 8192"); e("s_add_u32 s57, s59, 8192")
    e("s_cmp_eq_u32 s38, 3"); e("s_cselect_b32 s56, 16384, s56"); e("s_cselect_b32 s57, 17408, s57")
    if ROT == "full2": e("s_lshl_b32 s34, s25, 1"); e("s_add_u32 s34, s34, s26")
    if ROT == "full": e("s_add_u32 s34, s25, s26"); e("s_lshl_b32 s30, s24, 2"); e("s_add_u32 s34, s34, s30")
    e("s_mul_i32 s30, s34, 37"); e("s_lshr_b32 s30, s30, 8"); e("s_mul_i32 s30, s30, 7"); e("s_sub_u32 s34, s34, s30")
    e("s_mov_b32 s42, 0")
    e("s_waitcnt lgkmcnt(0)")
    srd(12, 4, 1835008); srd(16, 6, 448 * 2688)
    e("s_cmp_eq_u32 s38, 3")
    for i in range(4): e(f"s_cselect_b32 s{44+i}, s{12+i}, s{16+i}")
    ts(1)
    gl_now((0, 1))
    srd(48, 10, 448 * 896); srd(20, 8, WS_END)
    pre0()
    pre2("l")
    for i in range(48): e(f"v_mov_b32 v{ACC+i}, 0")
    e("s_lshl_b32 s85, s38, 5"); e("s_lshr_b32 s29, s2, 3"); e("s_add_u32 s85, s85, s29")
    e("v_lshrrev_b32 v1, 2, v16"); e("v_lshl_add_u32 v192, v17, 2, v1")
    e("s_cmp_eq_u32 s24, 0"); e("s_cbranch_scc1 LD_HA")
    e("v_min_u32 v193, 2, v17"); e("v_lshl_add_u32 v193, v193, 2, v1")
    e("s_branch LD_HD")
    lab("LD_HA")
    e("v_mul_u32_u24 v193, 3, v17"); e("v_min_u32 v1, 2, v1"); e("v_add_u32 v193, v193, v1")
    lab("LD_HD")
    e("v_add_u32 v193, 16, v193")
    e("v_and_b32 v1, 3, v16"); e("v_lshlrev_b32 v1, 3, v1"); e(f"s_add_u32 s29, s52, {SCR}"); e("v_add_u32 v1, s29, v1")
    e("v_lshl_add_u32 v192, v192, 7, v1"); e("v_lshl_add_u32 v193, v193, 7, v1")
    e("s_and_b32 s29, s2, 7"); e("s_lshl_b32 s30, s29, 10")
    e("v_min_u32 v166, 55, v5"); e("v_lshlrev_b32 v166, 4, v166"); e(f"s_add_u32 s31, s30, {WS_GO}")
    e("s_or_b32 s32, s38, s96"); e("s_cmp_eq_u32 s32, 0"); e(f"s_cselect_b32 s32, s31, {OOB}"); e("v_add_u32 v166, s32, v166")
    e("s_lshl_b32 s32, s85, 3"); e("s_add_u32 s31, s31, s32"); e("s_cmp_lt_u32 s85, 112"); e(f"s_cselect_b32 s31, s31, {OOB}"); e("s_cmp_eq_u32 s96, 0"); e(f"s_cselect_b32 s31, s31, {OOB}")
    if "failo" in VS:
        e("s_cmp_eq_u32 s2, 43"); e(f"s_cselect_b32 s31, {OOB}, s31")
    e(f"v_mov_b32 v167, {OOB}"); e("v_writelane_b32 v167, s31, 0")
    e("s_lshl_b32 s30, s29, 8"); e(f"s_add_u32 s30, s30, {WS_S}"); e("v_and_b32 v200, 31, v5"); e("v_lshlrev_b32 v200, 3, v200"); e("v_add_u32 v200, s30, v200")
    e("s_xor_b32 s30, s38, 1"); e("s_or_b32 s30, s30, s24"); e("s_or_b32 s30, s30, s96"); e(f"s_mov_b32 s31, {WS_EA}"); e("s_cmp_eq_u32 s30, 0"); e(f"s_cselect_b32 s30, s31, {OOB}"); e("s_cselect_b32 s63, 0, 1")
    e("v_add_u32 v165, s30, v13")
    e("s_lshr_b32 s30, s85, 4"); e("s_lshl_b32 s30, s30, 16"); e("s_and_b32 s31, s85, 15"); e("s_lshl_b32 s31, s31, 10"); e("s_add_u32 s33, s30, s31"); e("s_add_u32 s33, s33, s71")
    e("s_cmp_lt_u32 s85, 112"); e("s_cselect_b64 vcc, -1, 0"); e("v_cndmask_b32 v194, v47, v13, vcc"); e("v_cndmask_b32 v199, v47, v199, vcc")
    e(f"s_mov_b32 s42, {STG}")
    gl_now((0, 1))
    ts(2)
    e("s_and_b32 s29, s85, 15"); e(f"s_mul_i32 s29, s29, {28*896}"); e("s_lshr_b32 s30, s85, 4"); e("s_lshl_b32 s30, s30, 7"); e("s_add_u32 s29, s29, s30")
    e(f"s_add_u32 s30, s52, {SCR}")
    for i in range(4):
        if i == 3: e("s_mov_b32 exec_hi, 0")
        e(f"s_add_u32 m0, s30, {1024*i}"); e("s_nop 0")
        e("buffer_load_dwordx4 v199, s[48:51], s29 offen lds")
        if i < 3: e("s_add_u32 s29, s29, 7168")
    e("s_mov_b32 exec_hi, -1")
    e("buffer_load_dwordx2 v[196:197], v200, s[20:23], 0 offen" + SC)
    e("buffer_load_dwordx4 v[160:163], v166, s[20:23], 0 offen")
    e("buffer_load_dwordx4 v[204:207], v165, s[20:23], 0 offen" + SC)
    NX = 7
    if "pt" in VS: e("buffer_load_dword v253, v10, s[20:23], 0 offen"); NX += 1
    e(f"s_mov_b32 s42, {2*STG}")
    gl_now((0,))
    e("s_mov_b32 s42, 0")
    e(f"s_waitcnt vmcnt({10+NX+NA})")
    e("s_cmp_eq_u32 s24, 0"); e("s_cbranch_scc1 R_AQ")
    e("s_branch R_BL")
    lab("CW_PRO")
    if "cpf" in VS:
        e("s_getpc_b64 s[30:31]"); lab("PCREF")
        e(f"s_sub_u32 s30, s30, PCREF-{KN}"); e("s_subb_u32 s31, s31, 0")
        e("s_lshr_b32 s29, s2, 3"); e("s_lshl_b32 s29, s29, 2"); e("s_add_u32 s29, s29, s27"); e("s_lshl_b32 s29, s29, 2")
        e("v_and_b32 v1, 3, v5"); e("v_add_lshl_u32 v1, s29, v1, 7"); e(f"v_min_u32 v1, K_END-{KN}, v1")
        e("global_load_dword v253, v1, s[30:31]")
    e("s_and_b32 s29, s2, 7"); e("s_lshl_b32 s34, s29, 8"); e("s_lshr_b32 s30, s2, 3"); e("s_lshl_b32 s30, s30, 3"); e("s_add_u32 s34, s34, s30"); e(f"s_add_u32 s34, s34, {WS_S}")
    e("s_lshl_b32 s35, s25, 15"); e("s_lshl_b32 s30, s26, 12"); e("s_add_u32 s35, s35, s30"); e(f"s_add_u32 s35, s35, {WS_KVP}")
    e("s_lshl_b32 s36, s29, 15"); e("s_lshr_b32 s30, s2, 4"); e("s_lshl_b32 s30, s30, 11"); e("s_add_u32 s36, s36, s30"); e("s_and_b32 s30, s2, 8"); e("s_add_u32 s36, s36, s30"); e(f"s_add_u32 s36, s36, {WS_KVT}")
    e("s_lshl_b32 s37, s26, 7"); e("s_lshl_b32 s30, s25, 3"); e("s_add_u32 s37, s37, s30"); e(f"s_add_u32 s37, s37, {WS_EA}")
    e(f"v_mov_b32 v1, {OOB}"); e("v_writelane_b32 v1, 0, 0")
    for i in range(4): e(f"v_mov_b32 v{92+i}, -1")
    e("s_or_b32 s94, s27, s96")
    e("s_waitcnt lgkmcnt(0)")
    srd(20, 8, WS_END)
    pre0()
    e("s_cmp_eq_u32 s94, 0"); e("s_cbranch_scc0 CW_NE")
    e(f"buffer_store_dwordx2 {vr(FD,2)}, v1, s[20:23], s34 offen" + SC)
    e("s_or_b32 s94, s94, s24")
    e("s_cmp_eq_u32 s94, 0"); e("s_cbranch_scc0 CW_NE")
    for k in range(4): e(f"buffer_store_dwordx4 v[92:95], v13, s[20:23], s35 offen offset:{1024*k}" + SC)
    for k in range(2): e(f"buffer_store_dwordx2 v[92:93], v13, s[20:23], s36 offen offset:{1024*k}" + SC)
    lab("CW_NE")
    e("v_mov_b32 v96, v1")
    pre2("c")
    if "pt" in VS: e("buffer_load_dword v253, v10, s[20:23], 0 offen")
    for i in range(56): e(f"v_mov_b32 v{ACC+i}, 0")
    e("s_cmp_eq_u32 s24, 0"); e("s_cbranch_scc0 CW_Z")
    for i in range(56, 64): e(f"v_mov_b32 v{ACC+i}, 0")
    e(f"ds_write_b32 v30, v{ACC} offset:96")
    e("s_cmp_eq_u32 s94, 0"); e("s_cbranch_scc0 R_AK")
    ts(28)
    e("s_waitcnt vmcnt(0)")
    ts(29)
    if "faile" in VS:
        e("s_cmp_eq_u32 s2, 70"); e("s_cbranch_scc1 R_AK")
    e(f"buffer_store_dwordx2 {vr(FD,2)}, v96, s[20:23], s37 offen" + SC)
    e("s_branch R_AK")
    lab("CW_Z")
    e("s_bitcmp1_b32 s27, 0"); e("s_cbranch_scc1 R_BV")
    e("s_branch R_BK")

    def phi_blk(a, o, t):
        r = []
        r.append([f"v_pk_mul_f32 {vr(t+2*u,2)}, {vr(a+2*u,2)}, s[68:69]" for u in range(2)])
        r.append([f"v_exp_f32 v{t+i}, v{t+i} clamp" for i in range(4)])
        r.append([f"v_max_f32 v{a+i}, 0x358637bd, v{a+i}" for i in range(4)])
        r.append([f"v_pk_add_f32 {vr(t+2*u,2)}, {vr(t+2*u,2)}, {vr(a+2*u,2)}" for u in range(2)])
        r.append([cvt(o + u, t + 2 * u, t + 2 * u + 1) for u in range(2)])
        return r
    def phi2(blks):
        ps = [phi_blk(*b) for b in blks]
        out = []
        for s in range(5):
            for p in ps: out += p[s]
        return out

    def role(name):
        loader = name in ("AQ", "BL")
        isA = name[0] == "A"
        nx = 4 if isA else 2
        wcols = {"AK": [112, 144, 224, 256], "AQ": [0, 32]}.get(name, [0, 32, 112, 144, 224, 256])
        halo = {"BK": (2, 3), "BV": (4, 5)}.get(name)
        WO = 16 if isA else 12
        def freads(sub, f):
            b = F[f]; r = []
            for a in range(nx): r.append(f"ds_read_b128 {vr(b+4*a,4)}, v{2+sub} offset:{a*2048}")
            for c, cb in enumerate(wcols):
                for h in range(2): r.append(f"ds_read_b64_tr_b16 {vr(b+WO+4*c+2*h,2)}, v4 offset:{sub*WH+h*16*WSr+cb}")
            if halo: r.append(f"ds_read_b128 {vr(b+8,4)}, v{6+sub}")
            return r
        def swapped(c): return name == "AK" or (not isA and c >= 4)
        def acc(a, c):
            if name == "AK": return ACC + 32 * (c >> 1) + 4 * (2 * a + (c & 1))
            if name == "AQ": return ACC + 4 * (2 * a + c)
            return ACC + 16 * (c >> 1) + 4 * (2 * a + (c & 1))
        def mf(f, a, c, hal=False):
            b = F[f]; x = vr(b + (8 if hal else 4 * a), 4); w = vr(b + WO + 4 * c, 4)
            d = vr(ACC + 48 + 4 * (c & 1), 4) if hal else vr(acc(a, c), 4)
            p, q = (x, w) if swapped(c) else (w, x)
            return f"v_mfma_f32_16x16x32_bf16 {d}, {p}, {q}, {d}"
        def mfmas(f, last=False):
            if not last or name == "AQ":
                r = [mf(f, a, c) for c in range(len(wcols)) for a in range(nx)] if name != "AQ" else [mf(f, a, c) for a in range(nx) for c in range(2)]
                if halo: r += [mf(f, 0, c, True) for c in halo]
                return r
            if name == "AK": return [mf(f, a, c) for kv in range(2) for a in range(4) for c in (2 * kv, 2 * kv + 1)]
            r = [mf(f, 1, c) for c in (2, 3, 4, 5)]
            if halo: r += [mf(f, 0, c, True) for c in halo]
            r += [mf(f, 0, c) for c in (2, 3)] + [mf(f, 1, c) for c in (0, 1)] + [mf(f, 0, c) for c in (0, 1, 4, 5)]
            return r
        bump = ["s_mov_b32 s43, %d" % STG, "s_cmp_eq_u32 s42, %d" % (2 * STG), "s_cselect_b32 s43, %d, s43" % (-2 * STG), "v_add_u32 v2, s43, v2", "v_add_u32 v3, s43, v3", "v_add_u32 v4, s43, v4"]
        if halo: bump += ["v_add_u32 v6, s43, v6", "v_add_u32 v7, s43, v7"]
        def chunk(ms, rds, groups=(), tail=()):
            rds = list(rds); groups = list(groups); n = len(ms)
            if "nofr" in VS: rds = [x for x in rds if "b32" in x]
            if "nofx" in VS: rds = [x for x in rds if "b128" not in x]
            if "nofw" in VS: rds = [x for x in rds if "_tr_" not in x]
            if "nogl" in VS: groups = [[x for x in g if " lds" not in x] or ["s_nop 0"] for g in groups]
            if "nomf" in VS: ms = ["s_nop 0"] * n
            per = -(-len(rds) // max(1, n - 2))
            for mi, ins in enumerate(ms):
                e(ins)
                for _ in range(per):
                    if rds: e(rds.pop(0))
                k = -(-len(groups) // (n - mi))
                for _ in range(k):
                    for x in groups.pop(0): e(x)
                    if k > 1 and groups and groups[0][0].startswith("buffer"): e("s_nop 0")
            assert not rds and not groups
            for x in tail: e(x)
        wfi = [0]
        def wfl(n):
            r = []
            for _ in range(n):
                h = wfi[0]; wfi[0] += 1
                r.append([f"buffer_load_dwordx4 {vr(WF+4*h,4)}, v18, s[20:23], s{(71,82,83,84)[h>>2]} offen offset:{1024*(h&3)}" + WFP])
            return r
        lab(f"R_{name}")
        e("s_waitcnt lgkmcnt(0)"); e("s_barrier")
        ts(3)
        for x in freads(0, 0): e(x)
        e("s_waitcnt lgkmcnt(0)")
        lab(f"LP_{name}")
        chunk(mfmas(0), freads(1, 1), groups=gl_half(1) if loader else (), tail=bump)
        if loader:
            e("s_cmp_eq_u32 s39, 0"); e(f"s_cbranch_scc1 LW_{name}"); e("s_waitcnt vmcnt(10)"); lab(f"LW_{name}")
        e("s_waitcnt lgkmcnt(0)" + (f" vmcnt({10+NX})" if loader else "")); e("s_barrier")
        ts_dyn(20)
        if loader:
            e("s_cmp_lg_u32 s39, 0"); e(f"s_cbranch_scc1 SP_{name}")
            lab(f"SR_{name}")
        chunk(mfmas(1), freads(0, 0), groups=gl_half(0) if loader else (), tail=["s_add_u32 s42, s42, s43", "s_add_u32 s39, s39, 1", "s_cmp_lt_u32 s39, 4"])
        e("s_waitcnt lgkmcnt(0)")
        e(f"s_cbranch_scc1 LP_{name}")
        chunk(mfmas(0), freads(1, 1), groups=gl_half(1) if loader else (), tail=bump)
        if loader:
            e("s_waitcnt vmcnt(10)")
            e("s_mov_b32 s93, 0")
            e("s_cmp_eq_u32 s63, 0"); e(f"s_cbranch_scc1 EA_P{name}")
            e("s_or_b32 s29, s38, s96"); e("s_cmp_eq_u32 s29, 0"); e(f"s_cbranch_scc0 GO_OK{name}")
            lab(f"GO_P{name}")
            chk(160, two=True)
            e(f"s_cbranch_vccz GO_OK{name}")
            ld2("buffer_load_dwordx4 v[160:163], v166, s[20:23], 0 offen"); e("s_waitcnt vmcnt(0)")
            e("s_add_u32 s93, s93, 1"); e(f"s_cmp_lt_u32 s93, {LIMIT}"); e(f"s_cbranch_scc1 GO_P{name}")
            e("s_mov_b32 s89, 1")
            lab(f"GO_OK{name}")
        e("s_waitcnt lgkmcnt(0)"); e("s_barrier")
        tsl(24)
        chunk(mfmas(1), freads(0, 0), groups=wfl(WFS[0]), tail=["s_add_u32 s42, s42, s43"])
        e("s_waitcnt lgkmcnt(0)")
        chunk(mfmas(0), freads(1, 1), groups=wfl(WFS[1]), tail=bump)
        e("s_waitcnt lgkmcnt(0)" + (f" vmcnt({WFS[0]+WFS[1]})" if loader else "")); e("s_barrier")
        tsl(25)
        chunk(mfmas(1), freads(0, 0), groups=wfl(WFS[2]))
        e("s_waitcnt lgkmcnt(0)")
        e(f"v_mov_b32 v1, {ST+64}")
        chunk(mfmas(0), freads(1, 1) + ["ds_read_b64 v[22:23], v1"], groups=wfl(WFS[3]))
        e("s_waitcnt lgkmcnt(0)"); e("s_barrier")
        tsl(26)
        e("v_readfirstlane_b32 s92, v22")
        if name == "AK":
            e("v_readfirstlane_b32 s94, v23")
            e("s_setprio 3")
        ms = mfmas(1, True)
        lastwf = wfl(WFS[4]); assert wfi[0] == 16
        if name == "AK":
            PKo = lambda a, u: 32 + 8 * (a >> 1) + 4 * u + 2 * (a & 1)
            VVo = lambda a, u: 48 + 8 * (a >> 1) + 4 * u + 2 * (a & 1)
            KA = 72
            v0l = phi2([(acc(a, u), PKo(a, u), (64, 68, 22, 26)[2 * a + u]) for a in range(2) for u in range(2)])
            for mi, ins in enumerate(ms):
                e(ins)
                if lastwf:
                    for x in lastwf.pop(0): e(x)
                if mi >= 8:
                    for _ in range(3):
                        if v0l: e(v0l.pop(0))
            for x in v0l: e(x)
            def vcv(t):
                for a in (2 * t, 2 * t + 1):
                    for u in range(2):
                        s = acc(a, 2 + u); o = VVo(a, u)
                        cvt_pk(o, s, s + 1); cvt_pk(o + 1, s + 2, s + 3)
                for i in range(4): e(f"v_cndmask_b32 v{48+8*t+4+i}, v{48+8*t+4+i}, v{PAR}, s[64:65]")
            def kvm(t):
                for ud in range(2):
                    for ue in range(2):
                        d = vr(KA + 8 * ud + 4 * ue, 4)
                        e(f"v_mfma_f32_16x16x32_bf16 {d}, {vr(32+8*t+4*ud,4)}, {vr(48+8*t+4*ue,4)}, {d if t else 0}")
            vcv(0); e("s_nop 1"); kvm(0)
            for x in phi2([(acc(a, u), PKo(a, u), (64, 68, 22, 26)[2 * (a - 2) + u]) for a in (2, 3) for u in range(2)]): e(x)
            vcv(1); e("s_nop 1"); kvm(1)
            ts(4)
            e("s_cmp_eq_u32 s96, 0"); e("s_cbranch_scc1 AK_1")
            for k in range(4): e(f"buffer_load_dwordx4 {vr(88+4*k,4)}, v13, s[20:23], s70 offen offset:{1024*k}" + SC)
            e("s_waitcnt vmcnt(0)")
            for k in range(8): e(f"v_pk_add_f32 {vr(KA+2*k,2)}, {vr(KA+2*k,2)}, {vr(88+2*k,2)}")
            for k in range(4): e(f"buffer_store_dwordx4 {vr(KA+4*k,4)}, v13, s[20:23], s70 offen offset:{1024*k}" + SC)
            e("s_branch P2")
            lab("AK_1")
            e("v_xor_b32 v1, 8, v30"); e("v_mov_b32 v22, 1")
            e("s_bitcmp1_b32 s27, 1"); e("s_cbranch_scc1 AK_H1")
            e("s_nop 7"); e("s_nop 1")
            for ue in range(2): e(f"ds_write_b128 v8, {vr(KA+8+4*ue,4)} offset:{1024*ue}")
            e("s_branch AK_HD")
            lab("AK_H1")
            e("s_nop 3")
            for ue in range(2): e(f"ds_write_b128 v8, {vr(KA+4*ue,4)} offset:{1024*ue}")
            e("s_nop 3")
            for k in range(4): e(f"v_pk_mov_b32 {vr(KA+2*k,2)}, {vr(KA+8+2*k,2)}, {vr(KA+8+2*k,2)} op_sel:[0,1]")
            lab("AK_HD")
            e("ds_write_b32 v30, v22 offset:96")
            lab("AK_SP")
            e("ds_read_b32 v22, v1 offset:96")
            for ue in range(2): e(f"ds_read_b128 {vr(88+4*ue,4)}, v19 offset:{1024*ue}")
            e("s_waitcnt lgkmcnt(2)"); e("v_readfirstlane_b32 s29, v22"); e("s_cmp_eq_u32 s29, 1"); e("s_waitcnt lgkmcnt(0)"); e("s_cbranch_scc0 AK_SP")
            for k in range(4): e(f"v_pk_add_f32 {vr(KA+2*k,2)}, {vr(KA+2*k,2)}, {vr(88+2*k,2)}")
            for k in range(4): cvt_pk(KA + k, KA + 2 * k, KA + 2 * k + 1)
            if "failk" in VS:
                e("s_cmp_eq_u32 s2, 66"); e("s_cbranch_scc1 P2")
            e(f"buffer_store_dwordx4 {vr(KA,4)}, v13, s[20:23], s70 offen" + SC)
            ts(5)
            e("s_or_b32 s89, s89, s94")
            e("s_cmp_eq_u32 s94, 0"); e("s_cbranch_scc0 P2")
            RP = 112; RS = 128
            e("s_mov_b32 s93, 0")
            for n in range(1, 4): e(f"s_mov_b32 s{34+n}, {131072*n}")
            if RSL0: e(f"s_sleep {RSL0}")
            lab("RD_RL")
            for n in range(4): e(f"buffer_load_dwordx4 {vr(RP+4*n,4)}, v244, s[20:23], {'s%d' % (34+n) if n else 0} offen" + SC)
            for n in range(4):
                e(f"s_waitcnt vmcnt({3-n})")
                for w in range(4):
                    for p in range(2):
                        d = RS + 2 * w + p
                        e(f"v_dot2_f32_bf16 v{d}, v{RP+4*n+w}, v{246+p}, {'v%d' % d if n else 0}")
            e("s_nop 1")
            for a in range(4): e(f"v_permlane32_swap_b32 v{RS+a}, v{RS+4+a}")
            e("s_nop 0")
            for u in range(2): e(f"v_pk_add_f32 {vr(RS+2*u,2)}, {vr(RS+2*u,2)}, {vr(RS+4+2*u,2)}")
            e("s_nop 1")
            for a in range(2): e(f"v_permlane16_swap_b32 v{RS+a}, v{RS+2+a}")
            e("s_nop 0")
            e(f"v_pk_add_f32 {vr(RS,2)}, {vr(RS,2)}, {vr(RS+2,2)}")
            e(f"v_cmp_u_f32 vcc, v{RS}, v{RS+1}")
            cvt_pk(RS, RS, RS + 1); e("s_nop 3")
            e("s_cbranch_vccz RD_RS")
            if RSL: e(f"s_sleep {RSL}")
            e("s_add_u32 s93, s93, 1"); e(f"s_cmp_lt_u32 s93, {LIMIT}"); e("s_cbranch_scc1 RD_RL")
            e("s_branch P2")
            lab("RD_RS")
            st2(f"buffer_store_dword v{RS}, v245, s[20:23], 0 offen")
            ts(18)
            e("s_branch P2")
        elif name == "AQ":
            for mi, ins in enumerate(ms):
                e(ins)
                if lastwf:
                    for x in lastwf.pop(0): e(x)
            ts(4)
            e("s_nop 3")
            for a2 in range(2):
                for x in phi2([(acc(a, u), 32 + 4 * a + 2 * u, 48 + 4 * (2 * (a & 1) + u)) for a in (2 * a2, 2 * a2 + 1) for u in range(2)]): e(x)
                for a in (2 * a2, 2 * a2 + 1):
                    e(f"v_cndmask_b32 v{34+4*a}, v{34+4*a}, 0, s[66:67]"); e(f"v_cndmask_b32 v{35+4*a}, v{35+4*a}, 0, s[66:67]")
                    st2(f"buffer_store_dwordx4 {vr(32+4*a,4)}, v13, s[20:23], s70 offen")
                    if a < 3: e("s_add_u32 s70, s70, 16384")
            e("s_branch P2")
        else:
            def cv2(o, s): return [cvt(o, s, s + 1), cvt(o + 1, s + 2, s + 3)]
            nh = 2 if halo else 0
            dl = []
            dl.append((5, cv2(48, acc(1, 2)) + cv2(50, acc(1, 3)) + ["ds_write_b128 v19, v[48:51] offset:2048"]))
            dl.append((7, cv2(56, acc(1, 4)) + cv2(62, acc(1, 5)) + ["ds_write_b64 v19, v[56:57] offset:3072", "ds_write_b64 v19, v[62:63] offset:3080"]))
            if halo:
                dl.append((9, cv2(64, ACC + 48) + cv2(66, ACC + 52) + [f"ds_write_b128 v8, v[64:67] offset:{0 if name == 'BK' else 1024}"]))
            dl.append((9 + nh, cv2(44, acc(0, 2)) + cv2(46, acc(0, 3))))
            dl.append((11 + nh, cv2(36, acc(1, 0)) + cv2(38, acc(1, 1)) + ["v_cndmask_b32 v38, v38, 0, s[66:67]", "v_cndmask_b32 v39, v39, 0, s[66:67]"]))
            for mi, ins in enumerate(ms):
                e(ins)
                if lastwf:
                    for x in lastwf.pop(0): e(x)
                while dl and dl[0][0] <= mi:
                    for x in dl.pop(0)[1]: e(x)
            assert not dl
            if name != "BL": e("s_branch B_EPI")
    def special(name):
        lab(f"SP_{name}")
        e("s_cmp_eq_u32 s39, 1"); e(f"s_cbranch_scc0 SP2_{name}")
        for c in range(4):
            for u in range(2): e(f"ds_read_b64_tr_b16 {vr(176+4*c+2*u,2)}, v{192+u} offset:{32*c}")
        chk(196, xcc=198)
        e("s_cmp_eq_u64 vcc, 0"); e("s_cselect_b32 s92, 1, 0")
        if "remote" in VS: e("s_mov_b32 s92, 0")
        e("s_or_b32 s92, s92, s96")
        e("s_cmp_eq_u32 s63, 0"); e(f"s_cbranch_scc0 SP1_{name}")
        chk(204, two=True)
        e("s_cmp_eq_u64 vcc, 0"); e("s_cselect_b32 s63, 1, 0")
        if "lateea" in VS: e("s_mov_b32 s63, 0")
        lab(f"SP1_{name}")
        e("v_mov_b32 v196, s92"); e("v_mov_b32 v197, 0"); e(f"v_mov_b32 v198, {ST+64}")
        e("s_cmp_eq_u32 s38, 0"); e(f"s_cbranch_scc0 SP0_{name}")
        e("ds_write_b64 v198, v[196:197]")
        lab(f"SP0_{name}")
        e("s_waitcnt lgkmcnt(0)")
        for c in range(4):
            st2(f"buffer_store_dwordx4 {vr(176+4*c,4)}, v194, s[20:23], s33 offen")
            if c < 3: e("s_add_u32 s33, s33, 16384")
        e(f"s_branch SR_{name}")
        lab(f"SP2_{name}")
        e("s_cmp_eq_u32 s39, 2"); e(f"s_cbranch_scc0 SP3_{name}")
        st2(f"buffer_store_dwordx2 {vr(FD,2)}, v167, s[20:23], 0 offen")
        e(f"s_branch SR_{name}")
        lab(f"SP3_{name}")
        ld2("buffer_load_dwordx4 v[160:163], v166, s[20:23], 0 offen")
        e(f"s_branch SR_{name}")
        lab(f"EA_P{name}")
        e("buffer_load_dwordx4 v[204:207], v165, s[20:23], 0 offen" + SC); e("s_waitcnt vmcnt(0)")
        chk(204, two=True)
        e(f"s_cbranch_vccz GO_OK{name}")
        e("s_add_u32 s93, s93, 1"); e(f"s_cmp_lt_u32 s93, {LIMIT}"); e(f"s_cbranch_scc1 EA_P{name}")
        e("s_mov_b32 s89, 1"); e("v_mov_b32 v196, 1"); e(f"v_mov_b32 v198, {ST+68}"); e("ds_write_b32 v198, v196")
        e(f"s_branch GO_OK{name}")
    special("AQ"); special("BL")
    role("AK"); role("AQ"); role("BK"); role("BV"); role("BL")
    lab("B_EPI")
    accB = lambda a, c: ACC + 16 * (c >> 1) + 4 * (2 * a + (c & 1))
    R = [72 - 20, 92 - 20]
    e("s_waitcnt lgkmcnt(0)"); e("s_barrier")
    ts(4)
    e("ds_read_b128 v[40:43], v19"); e("ds_read_b64 v[52:53], v19 offset:1024"); e("ds_read_b64 v[58:59], v19 offset:1032")
    b = R[1]
    e(f"v_mfma_f32_16x16x32_bf16 {vr(b+20,4)}, v[44:47], v[36:39], {vr(CM,4)}")
    e(f"v_mfma_f32_16x16x32_bf16 {vr(b+24,4)}, v[48:51], v[36:39], {vr(CM+4,4)}")
    for u in range(2):
        s = accB(0, u); cvt_pk(32 + 2 * u, s, s + 1); cvt_pk(33 + 2 * u, s + 2, s + 3)
    e("v_cndmask_b32 v34, v34, 0, s[66:67]"); e("v_cndmask_b32 v35, v35, 0, s[66:67]")
    for u in range(2):
        s = accB(0, 4 + u); cvt_pk(54 + 6 * u, s, s + 1); cvt_pk(55 + 6 * u, s + 2, s + 3)
    b = R[0]
    e(f"v_mfma_f32_16x16x32_bf16 {vr(b+24,4)}, v[44:47], v[32:35], {vr(CM+4,4)}")
    e("s_waitcnt lgkmcnt(2)")
    e(f"v_mfma_f32_16x16x32_bf16 {vr(b+20,4)}, v[40:43], v[32:35], {vr(CMP,4)}")
    order = [1, 0]
    def both(f):
        for a in order: f(R[a])
    b = R[1]
    for i in range(4): e(f"v_cndmask_b32 v{b+28+i}, v{b+20+2*i}, v{b+21+2*i}, s[64:65]")
    e(f"v_max3_f32 v{b+32}, v{b+28}, v{b+29}, v{b+30}"); e(f"v_max_f32 v{b+32}, v{b+32}, v{b+31}")
    e("s_nop 3")
    b = R[0]
    for i in (2, 3, 0, 1): e(f"v_cndmask_b32 v{b+28+i}, v{b+20+2*i}, v{b+21+2*i}, s[64:65]")
    e(f"v_max3_f32 v{b+32}, v{b+28}, v{b+29}, v{b+30}"); e(f"v_max_f32 v{b+32}, v{b+32}, v{b+31}")
    for pl in ("v_permlane32_swap_b32", "v_permlane16_swap_b32"):
        both(lambda b: e(f"v_mov_b32 v{b+33}, v{b+32}")); e("s_nop 0")
        both(lambda b: e(f"{pl} v{b+32}, v{b+33}")); e("s_nop 0")
        both(lambda b: e(f"v_max_f32 v{b+32}, v{b+32}, v{b+33}"))
    both(lambda b: e(f"v_mul_f32 v{b+32}, s68, v{b+32}"))
    for u in range(2):
        both(lambda b: e(f"v_pk_fma_f32 {vr(b+28+2*u,2)}, {vr(b+28+2*u,2)}, s[68:69], {vr(b+32,2)} op_sel_hi:[1,1,0] neg_lo:[0,0,1] neg_hi:[0,0,1]"))
    for a in order:
        b = R[a]
        for i in range(4): e(f"v_exp_f32 v{b+28+i}, v{b+28+i}")
    for a in order:
        b = R[a]
        for i in range(4): cvt_pk(b + 28 + i, b + 28 + i, b + 28 + i)
        for i in range(4): e(f"v_and_b32 v{b+28+i}, v{PAR}, v{b+28+i}")
        e("s_waitcnt lgkmcnt(0)"); e("s_nop 1")
        e(f"v_mfma_f32_16x16x32_bf16 {vr(b+36,4)}, {vr(ONES,4)}, {vr(b+28,4)}, 0")
        for u in range(2):
            e(f"v_mfma_f32_16x16x32_bf16 {vr(b+20+4*u,4)}, {vr(52+6*u+2*a,4)}, {vr(b+28,4)}, 0")
    e("s_add_u32 s29, s70, 16384")
    e("s_nop 2")
    e(f"v_rcp_f32 v{R[1]+36}, v{R[1]+36}")
    e("s_nop 7")
    e(f"v_rcp_f32 v{R[0]+36}, v{R[0]+36}")
    for k, a in enumerate(order):
        b = R[a]; o = 32 + 4 * a
        if k: e("s_nop 1")
        for i in range(4): e(f"v_pk_mul_f32 {vr(b+20+2*i,2)}, {vr(b+20+2*i,2)}, {vr(b+36,2)} op_sel_hi:[1,0]")
        for u in range(2):
            cvt_pk(o + 2 * u, b + 20 + 4 * u, b + 21 + 4 * u); cvt_pk(o + 2 * u + 1, b + 22 + 4 * u, b + 23 + 4 * u)
        e(f"v_cndmask_b32 v{o+2}, v{o+2}, 0, s[66:67]"); e(f"v_cndmask_b32 v{o+3}, v{o+3}, 0, s[66:67]")
        st2(f"buffer_store_dwordx4 {vr(o,4)}, v13, s[20:23], s{29 if a else 70} offen")
    lab("P2")
    e("s_setprio 0")
    ts(6)
    e("s_cmp_eq_u32 s96, 0"); e("s_cbranch_scc1 P2N")
    e("s_waitcnt vmcnt(0) lgkmcnt(0)"); e("s_barrier")
    e("s_add_u32 s97, s97, 1"); e("s_cmp_eq_u32 s97, 128"); e("s_cbranch_scc1 P2N")
    e("s_add_u32 s2, s2, 2"); e("s_and_b32 s2, s2, 255")
    e("s_branch RESTART")
    lab("P2N")
    AC2 = 160
    FL, EF = 20, 22
    PQ, KV, S1 = 32, 64, 80
    LDF = f"buffer_load_dwordx2 {vr(FL,2)}, v10, s[20:23], 0 offen"
    srd(16, 80, 2048 * 1792)
    e("s_lshl_b32 s34, s27, 11")
    e("s_mov_b32 s93, 0")
    e("s_cmp_eq_u32 s24, 0"); e("s_cbranch_scc1 P2_A")
    AFS = [32, 96]
    def gemm(tag, bars):
        Lq = Q("lgkmcnt", 15)
        Lq.issue("ds_read_b32 v29, v31", "st")
        def rd(rb, k): Lq.issue(f"ds_read_b128 {vr(AFS[rb&1]+4*k,4)}, v13 offset:{rb*16384+1024*k}", f"a{rb}_{k}")
        for k in range(16): rd(0, k)
        Lq.wait("st")
        e("v_cmp_ne_u32 vcc, 0, v29"); e("s_nop 4"); e("s_cbranch_vccnz FALLBACK")
        for rb in range(4):
            if bars and rb < 3:
                e(f"s_waitcnt vmcnt({4-2*rb+max(0,rb-1)})"); e("s_barrier")
            ts(11 + rb)
            a = AC2 + 4 * (rb & 1)
            for k in range(16):
                Lq.wait(f"a{rb}_{k}")
                e(f"v_mfma_f32_16x16x32_bf16 {vr(a,4)}, {vr(WF+4*k,4)}, {vr(AFS[rb&1]+4*k,4)}, {vr(a,4) if k else 0}")
                if rb < 3: rd(rb + 1, k)
                if rb and k == 3:
                    p = AC2 + 4 * ((rb - 1) & 1)
                    cvt_pk(p, p, p + 1); cvt_pk(p + 1, p + 2, p + 3)
                    e(f"buffer_store_dwordx2 {vr(p,2)}, v14, s[16:19], s{76+rb-1} offen" + OSC)
        e("s_nop 7"); e("s_nop 7")
        p = AC2 + 4
        cvt_pk(p, p, p + 1); cvt_pk(p + 1, p + 2, p + 3)
        e(f"buffer_store_dwordx2 {vr(p,2)}, v14, s[16:19], s79 offen" + OSC)
        ts_end(15)
        e("s_branch K_END")
    def w7tail(bars):
        e("ds_read_b32 v29, v31"); e("s_waitcnt lgkmcnt(0)")
        e("v_cmp_ne_u32 vcc, 0, v29"); e("s_nop 4"); e("s_cbranch_vccnz FALLBACK")
        if bars:
            for rb in range(3): e(f"s_waitcnt vmcnt({4-2*rb})"); e("s_barrier")
        if "wb2" in VS:
            k = uid()
            e("s_lshr_b32 s29, s2, 3"); e("s_and_b32 s29, s29, 7"); e("s_cmp_eq_u32 s29, 0"); e(f"s_cbranch_scc0 NW{k}"); e("buffer_wbl2 sc1"); lab(f"NW{k}")
        ts_end(15)
        e("s_branch K_END")
    e("s_waitcnt vmcnt(0)")
    ts(7)
    st2(f"buffer_store_dwordx2 {vr(FD,2)}, v9, s[20:23], 0 offen")
    e("s_cmp_eq_u32 s96, 0"); e("s_cbranch_scc0 PB_GO")
    lab("PB_POLL")
    ld2(LDF)
    e("s_waitcnt vmcnt(0)")
    chk(FL)
    e("s_cbranch_vccz PB_GO")
    e("s_add_u32 s93, s93, 1"); e(f"s_cmp_lt_u32 s93, {LIMIT}"); e("s_cbranch_scc1 PB_POLL")
    e("s_mov_b32 s89, 1"); e("s_branch PB_ND")
    lab("PB_GO")
    ts(10)
    dl = []
    for rb in range(4):
        dl += [f"s_add_u32 m0, s34, {rb*16384}", "s_nop 0"]
        for hh in range(2): dl.append(f"buffer_load_dwordx4 v15, s[20:23], s{72+rb} offen offset:{1024*hh}")
    ld2(dl, " lds")
    lab("PB_ND")
    e("v_mov_b32 v29, s89"); e("ds_write_b32 v30, v29")
    e("s_waitcnt vmcnt(6) lgkmcnt(0)"); e("s_barrier")
    e("s_cmp_eq_u32 s27, 7"); e("s_cbranch_scc1 PB_W7")
    gemm("b", True)
    lab("PB_W7")
    w7tail(True)
    lab("P2_A")
    def ldpq():
        ld2([f"buffer_load_dwordx4 {vr(PQ+8*rb+4*hh,4)}, v15, s[20:23], s{72+rb} offen offset:{1024*hh}" for rb in range(4) for hh in range(2)])
    def ldkv():
        ld2([f"buffer_load_dwordx4 {vr(KV+4*k,4)}, v12, s[20:23], s44 offen offset:{1024*k}" for k in range(4)])
    e("s_and_b32 s44, s2, 7"); e("s_lshl_b32 s44, s44, 15"); e(f"s_add_u32 s44, s44, {WS_KVT}")
    e("s_cmp_eq_u32 s96, 0"); e("s_cbranch_scc0 PA_FB")
    e("s_cmp_lt_u32 s27, 4"); e("s_cbranch_scc1 PA_NF")
    e("s_waitcnt vmcnt(0)")
    ts(7)
    st2(f"buffer_store_dwordx2 {vr(FD,2)}, v9, s[20:23], 0 offen")
    lab("PA_NF")
    lab("PA_FP")
    ld2(LDF)
    e("s_waitcnt vmcnt(0)")
    chk(FL)
    e("s_cbranch_vccz PA_FOK")
    e("s_add_u32 s93, s93, 1"); e(f"s_cmp_lt_u32 s93, {LIMIT}"); e("s_cbranch_scc1 PA_FP")
    e("s_branch PA_FAIL")
    lab("PA_FOK")
    ldpq()
    ts(10)
    lab("PA_KL")
    ldkv()
    e("s_waitcnt vmcnt(0)")
    e(f"v_max3_u32 v6, v{KV}, v{KV+1}, v{KV+2}")
    for k in range(3, 15, 2): e(f"v_max3_u32 v6, v6, v{KV+k}, v{KV+k+1}")
    e(f"v_max_u32 v6, v6, v{KV+15}"); e("v_cmp_eq_u32 vcc, -1, v6"); e("s_nop 4")
    e("s_cbranch_vccz PA_GO")
    if SLP: e(f"s_sleep {SLP}")
    e("s_add_u32 s93, s93, 1"); e(f"s_cmp_lt_u32 s93, {LIMIT}"); e("s_cbranch_scc1 PA_KL")
    lab("PA_FAIL")
    e("s_mov_b32 s89, 1"); e("s_branch PA_ST")
    lab("PA_FB")
    ldpq()
    e("v_lshrrev_b32 v7, 2, v16"); e("v_and_b32 v6, 3, v16"); e("v_mul_u32_u24 v7, 3, v7"); e("v_add_u32 v7, v7, v6"); e("v_add_u32 v7, 64, v7")
    e("v_cmp_eq_u32 vcc, 3, v6"); e("v_mov_b32 v6, 76"); e("s_nop 0"); e("v_cndmask_b32 v7, v7, v6, vcc")
    e("v_lshl_add_u32 v7, v17, 4, v7"); e("v_lshlrev_b32 v7, 4, v7")
    e("s_lshr_b32 s35, s95, 1"); e("s_lshl_b32 s35, s35, 17"); e(f"s_add_u32 s35, s35, {WS_PRIV}"); e("s_lshl_b32 s29, s27, 13"); e("s_add_u32 s35, s35, s29")
    for half in range(2):
        for hh in range(2):
            e(f"s_add_u32 s36, s35, {65536*half+4096*hh}")
            for eb in range(2):
                for db in range(2):
                    e(f"buffer_load_dwordx4 {vr(80+32*half+16*hh+8*eb+4*db,4)}, v{7 if eb else 13}, s[20:23], s36 offen offset:{2048*db}" + SC)
    e("s_waitcnt vmcnt(0)")
    for k in range(16): e(f"v_pk_add_f32 {vr(80+2*k,2)}, {vr(80+2*k,2)}, {vr(112+2*k,2)}")
    for k in range(16): cvt_pk(KV + k, 80 + 2 * k, 81 + 2 * k)
    for k in range(4):
        for u in (2, 3): e(f"v_cndmask_b32 v{KV+4*k+u}, v{KV+4*k+u}, 0, s[66:67]")
    e("s_nop 1")
    lab("PA_GO")
    ts(17)
    items = [(rb, hh) for rb in range(4) for hh in range(2)]
    def s1valu(k):
        rb, hh = items[k]; a = S1 + 8 * (k & 3); o = PQ + 8 * rb + 4 * hh
        e(f"v_rcp_f32 v{a+7}, v{a+7}"); e("s_nop 0")
        for u in range(3): e(f"v_pk_mul_f32 {vr(a+2*u,2)}, {vr(a+2*u,2)}, {vr(a+6,2)} op_sel:[0,1] op_sel_hi:[1,1]")
        e(f"v_mul_f32 v{a+6}, v{a+6}, v{a+7}")
        for u in range(3): cvt_pk(o + u, a + 2 * u, a + 2 * u + 1)
        e(f"v_cvt_pk_bf16_f32 v{o+3}, v{a+6}, 0")
        e(f"ds_write_b128 v15, {vr(o,4)} offset:{rb*16384+1024*hh}")
    for k in range(10):
        if k < 8:
            rb, hh = items[k]; a = S1 + 8 * (k & 3)
            for eb in range(2):
                e(f"v_mfma_f32_16x16x32_bf16 {vr(a+4*eb,4)}, {vr(KV+8*hh+4*eb,4)}, {vr(PQ+8*rb+4*hh,4)}, {vr(ONES,4) if eb else 0}")
        else: e("s_nop 7")
        if k >= 2: s1valu(k - 2)
    lab("PA_ST")
    e("v_mov_b32 v29, s89"); e("ds_write_b32 v30, v29")
    e("s_waitcnt lgkmcnt(0)"); e("s_barrier")
    e("s_cmp_eq_u32 s27, 7"); e("s_cbranch_scc1 PA_W7")
    gemm("a", False)
    lab("PA_W7")
    w7tail(False)
    lab("FALLBACK")
    if "nofb" in VS:
        ts_end(15); e("s_branch K_END")
    for i in range(4): e(f"v_mov_b32 v{32+i}, 0")
    e("s_lshr_b32 s35, s95, 1"); e("s_lshl_b32 s35, s35, 17"); e(f"s_add_u32 s35, s35, {WS_PRIV}"); e("s_lshl_b32 s29, s27, 14"); e("s_add_u32 s35, s35, s29")
    e("s_cmp_eq_u32 s24, 0"); e("s_cbranch_scc0 FB_NZ")
    for k in range(16):
        e(f"buffer_store_dwordx4 v[32:35], v13, s[20:23], s35 offen offset:{1024*(k&3)}" + SC)
        if k & 3 == 3: e("s_add_u32 s35, s35, 4096")
    lab("FB_NZ")
    e("s_waitcnt vmcnt(0) lgkmcnt(0)"); e("s_barrier")
    e("s_mov_b32 s96, 1"); e("s_mov_b32 s97, 0"); e("s_add_u32 s2, s95, 2"); e("s_and_b32 s2, s2, 255")
    e("s_branch RESTART")
    lab("K_END")
    e("s_endpgm")

def main():
    hdr = open(f"cdna_kernels/{NAME}.s.ref").read().split("\n")
    top = [l for l in hdr if l.startswith(";") and "@launch" not in l]
    top.append(f"; @launch kernel={KN} grid=(256,1,1) block=(512,1,1) lds={LDS}")
    L.extend(top)
    L.append('.amdgcn_target "amdgcn-amd-amdhsa--gfx950"'); L.append(".text")
    gen()
    L.append('.section .rodata,"a"')
    L.append(kd(KN, 256, 256))
    open(OUT, "w").write("\n".join(L) + "\n")
main()
```

```python
import sys, os
VAR = os.environ.get("VAR", "")
VS = VAR.split("_")
NAME = "concat_heads__linear_attn_block__sliding_local_dilated__prompt"
OUT = os.environ.get("OUT", f"cdna_kernels/{NAME}.s")
L = []
def e(s=""): L.append("    " + s if s and not s.endswith(":") else s)
def lab(s): L.append(s + ":")

WS_PQA = 0
WS_OB = 0x200000
WS_KVP = 0x400000
WS_KVT = 0x600000
WS_F = 0x680000
WS_EA = 0x690000
WS_S = 0x694000
WS_GO = 0x698000
WS_TS = 0x800000
WS_WOF = 0x900000
WOG = 0x80000
WS_PRIV = 0x1000000
WS_END = WS_PRIV + 128 * 0x20000
LIMIT = int(os.environ.get("LIMIT", "4000"))
ROT = os.environ.get("ROT", "full2")
WFS = [int(x) for x in os.environ.get("WFS", "6,5,5").split(",")]
SLP = int(os.environ.get("SLP", "0"))
RSL = int(os.environ.get("RSL", "0"))
RSL0 = int(os.environ.get("RSL0", "0"))
MLO, MHI = 0x7f4a7c15 & ~15, 0x9e3779b9
SC = " sc0 sc1"
OSC = SC if "osc" in VS else ""
WFP = "" if "wfp" in VS else SC

def vr(a, n=1): return f"v{a}" if n == 1 else f"v[{a}:{a+n-1}]"
def srd(dst, ptr_lo, nbytes):
    e(f"s_mov_b32 s{dst}, s{ptr_lo}"); e(f"s_and_b32 s{dst+1}, s{ptr_lo+1}, 0xffff")
    e(f"s_mov_b32 s{dst+2}, {nbytes}"); e(f"s_mov_b32 s{dst+3}, 0x00020000")
def kd(name, nvgpr, accum, nsgpr=100):
    return f""".p2align 6
.amdhsa_kernel {name}
  .amdhsa_next_free_vgpr {nvgpr}
  .amdhsa_next_free_sgpr {nsgpr}
  .amdhsa_accum_offset {accum}
  .amdhsa_group_segment_fixed_size 0
  .amdhsa_kernarg_size 72
  .amdhsa_user_sgpr_count 2
  .amdhsa_user_sgpr_kernarg_segment_ptr 1
  .amdhsa_system_sgpr_workgroup_id_x 1
.end_amdhsa_kernel"""
def cvt(dst, a, b): return f"v_cvt_pk_bf16_f32 v{dst}, v{a}, v{b}"
def cvt_pk(dst, a, b): e(cvt(dst, a, b))
KN = NAME + "_kernel"
OOB = "0x7fff0000"
TSON = "ts" in VS
def ts(n):
    if not TSON: return
    e("s_memtime s[98:99]"); e("s_waitcnt lgkmcnt(0)"); e(f"v_writelane_b32 v255, s98, {n}")
    if n == 0:
        e("s_memrealtime s[98:99]"); e("s_waitcnt lgkmcnt(0)"); e("v_writelane_b32 v255, s98, 62")
def ts_dyn(base):
    if not (TSON and "tsl" in VS): return
    e("s_memtime s[98:99]"); e("s_waitcnt lgkmcnt(0)"); e(f"s_add_u32 m0, s39, {base}"); e("s_nop 3"); e("v_writelane_b32 v255, s98, m0")
def tsl(n):
    if "tsl" in VS: ts(n)
def ts_end(n):
    if not TSON: return
    ts(n); e("s_waitcnt vmcnt(0)"); ts(n + 1)
    e("s_memrealtime s[98:99]"); e("s_waitcnt lgkmcnt(0)"); e("v_writelane_b32 v255, s98, 63")
    e("v_and_b32 v254, 63, v0"); e("v_lshlrev_b32 v254, 2, v254"); e("s_lshl_b32 s98, s2, 11"); e("s_lshl_b32 s99, s27, 8")
    e("s_add_u32 s98, s98, s99"); e(f"s_add_u32 s98, s98, {WS_TS}")
    e("buffer_store_dword v255, v254, s[20:23], s98 offen")

class Q:
    def __init__(self, name, mx): self.q = []; self.name = name; self.mx = mx
    def issue(self, ins, tag=None): e(ins); self.q.append(tag)
    def wait(self, tag):
        if tag not in self.q: return
        i = len(self.q) - 1 - self.q[::-1].index(tag)
        n = len(self.q) - 1 - i
        e(f"s_waitcnt {self.name}({min(n, self.mx)})"); self.q = self.q[i + 1:]

XS = 144 * 128
WSr = 352
WH = 32 * WSr
STG = XS + 2 * WH
LDS = 4 * STG
SCR = 3 * STG
HX = SCR + 16384
STGA = 30720
WSA = 224; WHA = 32 * WSA
JK1 = 3 * STGA
WQ = 100352
MRG = WQ + 50176
JK2 = MRG + 8192
OB = WQ
ORB = 14336
ST = 162816
assert HX + 20480 <= ST and OB + 4 * ORB <= ST and JK2 + 1024 <= ST and ST + 256 <= LDS
_n = [0]
def uid(): _n[0] += 1; return _n[0]
def st2(ins):
    k = uid()
    e("s_cmp_eq_u32 s92, 0"); e(f"s_cbranch_scc1 SL{k}"); e(ins); e(f"s_branch SD{k}")
    lab(f"SL{k}"); e(ins + SC); lab(f"SD{k}")
T0 = 240; FD = 242
def bad(a, xcc=None):
    e(f"v_xor_b32 v{a}, {hex(MLO)}, v{a}"); e(f"v_xor_b32 v{a+1}, {hex(MHI)}, v{a+1}")
    if xcc is not None: e(f"v_and_b32 v{xcc}, 15, v{a}"); e(f"v_xor_b32 v{xcc}, s88, v{xcc}")
    e(f"v_sub_co_u32 v{a}, vcc, v{a}, v{T0}"); e("s_nop 1")
    e(f"v_subb_co_u32 v{a+1}, vcc, v{a+1}, v{T0+1}, vcc")
    e(f"v_lshrrev_b32 v{a}, 24, v{a}")
    if xcc is not None: e(f"v_or3_b32 v{a}, v{a}, v{a+1}, v{xcc}")
    else: e(f"v_or_b32 v{a}, v{a}, v{a+1}")
def chk(a, xcc=None, two=False):
    bad(a, xcc)
    if two:
        bad(a + 2, xcc); e(f"v_or_b32 v{a}, v{a}, v{a+2}")
    e(f"v_cmp_ne_u32 vcc, 0, v{a}"); e("s_nop 4")

F = [32, 72]; ACC = 112; WF = 176
CM = 168; CMP = 244; ONES = 248; PAR = 252
BIGN = "0xcfb2d05e"

def pre0():
    e("s_andn2_b32 s90, s86, 15"); e("s_sub_u32 s29, s90, 512"); e("s_subb_u32 s30, s87, 0")
    e(f"v_mov_b32 v{T0}, s29"); e(f"v_mov_b32 v{T0+1}, s30")
    e("s_or_b32 s90, s90, s88"); e(f"s_xor_b32 s90, s90, {hex(MLO)}"); e(f"s_xor_b32 s91, s87, {hex(MHI)}")
    e(f"v_mov_b32 v{FD}, s90"); e(f"v_mov_b32 v{FD+1}, s91")
LP0 = SC if "allsc" in VS else " sc1"
def ld2(inss, tail=""):
    if isinstance(inss, str): inss = [inss]
    k = uid()
    e("s_cmp_eq_u32 s92, 0"); e(f"s_cbranch_scc1 SL{k}")
    for x in inss: e(x + LP0 + tail if x.startswith("buffer") else x)
    e(f"s_branch SD{k}"); lab(f"SL{k}")
    for x in inss: e(x + SC + tail if x.startswith("buffer") else x)
    lab(f"SD{k}")

def phi_blk(a, o, t):
    r = []
    r.append([f"v_pk_mul_f32 {vr(t+2*u,2)}, {vr(a+2*u,2)}, s[68:69]" for u in range(2)])
    r.append([f"v_exp_f32 v{t+i}, v{t+i} clamp" for i in range(4)])
    r.append([f"v_max_f32 v{a+i}, 0x358637bd, v{a+i}" for i in range(4)])
    r.append([f"v_pk_add_f32 {vr(t+2*u,2)}, {vr(t+2*u,2)}, {vr(a+2*u,2)}" for u in range(2)])
    r.append([cvt(o + u, t + 2 * u, t + 2 * u + 1) for u in range(2)])
    return r
def phi2(blks):
    ps = [phi_blk(*b) for b in blks]
    out = []
    for s in range(5):
        for p in ps: out += p[s]
    return out

AV = 232; WP = 224
def pre2(A, ld):
    AK = A and not ld; AQ = A and ld
    if AK: e("s_and_b32 s40, s27, 1"); e("s_lshl_b32 s41, s27, 1"); e("s_and_b32 s41, s41, 4")
    elif AQ: e("s_mov_b32 s40, 0"); e("s_lshl_b32 s41, s38, 1")
    else:
        e("s_and_b32 s29, s27, 1"); e("s_bfe_u32 s40, s27, 0x10001"); e("s_lshl_b32 s41, s29, 1")
        if ld: e("s_add_u32 s41, s41, 4")
    e("v_lshrrev_b32 v6, 1, v16"); e("v_xor_b32 v6, v6, v17"); e("v_lshlrev_b32 v7, 7, v16"); e("v_lshl_add_u32 v6, v6, 4, v7"); e("v_xor_b32 v7, 64, v6")
    e("s_lshl_b32 s29, s41, 11")
    if not A: e("s_add_u32 s29, s29, 2048")
    e("v_add_u32 v2, s29, v6"); e("v_add_u32 v3, s29, v7")
    e("v_lshrrev_b32 v4, 2, v16"); e("v_lshl_add_u32 v4, v17, 2, v4"); e(f"v_mul_u32_u24 v4, {WSA if A else WSr}, v4"); e("v_and_b32 v8, 3, v16")
    e("v_lshl_add_u32 v4, v8, 3, v4"); e("s_mul_i32 s29, s40, 56"); e(f"s_add_u32 s29, s29, {16384 if AK else (WQ if AQ else XS)}"); e("v_add_u32 v4, s29, v4")
    if not AQ: e("s_mov_b32 s42, 0"); e("s_mov_b32 s39, 0")
    e("s_lshl_b32 s31, s26, 1"); e("s_add_u32 s31, s31, s40")
    if not AK:
        e("s_lshl_b32 s29, s25, 3"); e("s_add_u32 s29, s29, s41"); e("s_lshl_b32 s29, s29, 4"); e("s_add_u32 s29, s29, s31"); e("s_lshl_b32 s70, s29, 10")
        if not A: e(f"s_add_u32 s70, s70, {WS_OB}")
        e("s_lshl_b32 s29, s25, 3"); e("s_add_u32 s29, s29, s26"); e("s_lshl_b32 s29, s29, 7")
        e("s_lshl_b32 s30, s27, 3"); e("s_add_u32 s29, s29, s30"); e(f"s_add_u32 s29, s29, {WS_F + (0 if A else 16384)}")
        e("s_cmp_eq_u32 s96, 0"); e(f"s_cselect_b32 s29, s29, {OOB}")
        if "failf" in VS:
            e(f"s_cmp_eq_u32 s2, {100 if A else 37}"); e(f"s_cselect_b32 s29, {OOB}, s29")
        e(f"v_mov_b32 v9, {OOB}"); e("v_writelane_b32 v9, s29, 0")
    else:
        e("s_lshl_b32 s29, s41, 2"); e("s_add_u32 s29, s29, s31"); e("s_lshl_b32 s29, s29, 12")
        e("s_lshr_b32 s32, s95, 1"); e("s_lshl_b32 s32, s32, 17"); e(f"s_add_u32 s32, s32, {WS_PRIV}"); e("s_add_u32 s32, s32, s29")
        e("s_lshl_b32 s29, s31, 1"); e("s_lshr_b32 s30, s41, 2"); e("s_add_u32 s29, s29, s30"); e("s_lshl_b32 s29, s29, 10")
        e("s_lshl_b32 s30, s25, 15"); e(f"s_add_u32 s30, s30, {WS_KVP}"); e("s_add_u32 s30, s30, s29")
        e("s_cmp_eq_u32 s96, 0"); e("s_cselect_b32 s70, s30, s32")
    e("s_bfe_u32 s31, s2, 0x20001"); e("s_lshl_b32 s31, s31, 3"); e("s_add_u32 s31, s31, s26")
    e("s_lshr_b32 s29, s31, 1"); e("s_lshl_b32 s29, s29, 3"); e("s_add_u32 s29, s29, s27"); e("s_lshl_b32 s29, s29, 7")
    if A: e(f"s_add_u32 s29, s29, {WS_F + 32}")
    else: e("s_and_b32 s30, s31, 1"); e("s_lshl_b32 s30, s30, 5"); e("s_add_u32 s29, s29, s30"); e(f"s_add_u32 s29, s29, {WS_F + 16384}")
    e("v_and_b32 v10, 3, v5"); e("v_lshlrev_b32 v10, 3, v10"); e("v_add_u32 v10, s29, v10")
    e("s_lshl_b32 s29, s27, 12"); e("v_add_u32 v12, s29, v13")
    if AK: e(f"v_mov_b32 v9, {OOB}")
    if AQ:
        for p in range(7): e(f"v_mov_b32 v{WP+p}, v47")
    e("s_lshl_b32 s29, s27, 11"); e("v_add_u32 v15, s29, v13")
    e("s_lshl_b32 s72, s31, 16")
    if not A: e(f"s_add_u32 s72, s72, {WS_OB}")
    for rb in range(1, 4): e(f"s_add_u32 s{72+rb}, s72, {16384*rb}")
    e("s_bfe_u32 s32, s2, 0x20003")
    e("s_lshl_b32 s29, s31, 6"); e("v_add_u32 v14, s29, v16"); e("v_mul_u32_u24 v14, 1792, v14"); e("v_lshl_add_u32 v14, v17, 3, v14")
    e("s_lshl_b32 s29, s27, 5"); e("s_mul_i32 s30, s32, 224"); e("s_add_u32 s29, s29, s30")
    if not A: e("s_add_u32 s29, s29, 896")
    e("v_add_u32 v14, s29, v14")
    for rb in range(4): e(f"s_mov_b32 s{76+rb}, {rb*16*1792}")
    e("s_lshl_b32 s29, s27, 2"); e(f"s_add_u32 s29, s29, {ST}"); e("v_mov_b32 v30, s29")
    e("v_and_b32 v31, 7, v5"); e("v_lshlrev_b32 v31, 2, v31"); e(f"v_add_u32 v31, {ST}, v31")
    e("v_cmp_eq_u32 s[66:67], 3, v17")
    if not A:
        e("s_mul_i32 s29, s32, 7"); e("s_add_u32 s29, s29, s27"); e("s_lshl_b32 s29, s29, 14")
        if ld: e("s_cmp_eq_u32 s27, 7"); e(f"s_cselect_b32 s29, {OOB}, s29")
        e("v_add_u32 v18, s29, v13")
        e("s_and_b32 s29, s2, 7"); e("s_lshl_b32 s29, s29, 19"); e(f"s_add_u32 s71, s29, {WS_WOF}")
        for k in range(3): e(f"s_add_u32 s{82+k}, s71, {4096*(k+1)}")
        e("v_lshlrev_b32 v8, 2, v17"); e("v_sub_u32 v8, v16, v8"); e("v_add_u32 v8, 16, v8")
        e(f"v_mov_b32 v1, {BIGN}")
        for sl in range(8):
            kb, i = sl >> 2, sl & 3
            e(f"v_subrev_u32 v{CM+sl}, {16*kb+i}, v8"); e(f"v_alignbit_b32 v{CM+sl}, v{CM+sl}, v{CM+sl}, 1")
        for sl in range(8):
            e(f"v_cmp_ge_u32 vcc, 7, v{CM+sl}"); e("s_nop 1"); e(f"v_cndmask_b32 v{CM+sl}, v1, 0, vcc")
        e("s_add_u32 s30, s25, s41"); e("s_cmp_eq_u32 s30, 0"); e("s_cselect_b64 vcc, -1, 0")
        for sl in range(4): e(f"v_cndmask_b32 v{CMP+sl}, v{CM+sl}, v1, vcc")
        e("v_and_b32 v8, 1, v16"); e("v_cmp_eq_u32 s[64:65], 1, v8")
        e("v_mov_b32 v8, 0xffff"); e("v_mov_b32 v1, 0xffff0000"); e(f"v_cndmask_b32 v{PAR}, v8, v1, s[64:65]")
        for i in range(4): e(f"v_mov_b32 v{ONES+i}, 0x3f803f80")
        e("s_mov_b32 s68, 0x3e8b97f6"); e("s_mov_b32 s69, 0x3e8b97f6")
        e("s_mul_i32 s29, s40, 10240"); e(f"s_add_u32 s29, s29, {HX}"); e("v_add_u32 v8, s29, v13")
        e("s_lshl_b32 s29, s41, 10"); e("v_add_u32 v19, s29, v8")
        e("s_lshl_b32 s29, s38, 5"); e("s_lshr_b32 s30, s2, 3"); e("s_add_u32 s85, s29, s30"); e("s_min_u32 s29, s85, 111")
        e("s_and_b32 s30, s29, 15"); e(f"s_mul_i32 s30, s30, {28*896}"); e("s_lshr_b32 s29, s29, 4"); e("s_lshl_b32 s29, s29, 7"); e("s_add_u32 s63, s29, s30")
        e("s_add_u32 s90, s10, s63"); e("s_addc_u32 s91, s11, 0")
        return
    e("s_mov_b32 s68, 0x3fb8aa3b"); e("s_mov_b32 s69, 0x3fb8aa3b")
    for i in range(3): e(f"v_mov_b32 v{ONES+i}, 0")
    e(f"v_mov_b32 v{ONES+3}, 0x358637bd")
    e(f"v_add_u32 v11, {OB}, v13")
    e("v_lshlrev_b32 v1, 1, v16"); e("v_and_b32 v1, 24, v1")
    e("s_lshl_b32 s29, s27, 5"); e("v_lshl_add_u32 v18, v8, 3, s29")
    e("v_mul_u32_u24 v8, 672, v17"); e("v_add_u32 v8, v8, v18"); e("v_mul_u32_u24 v19, 224, v17"); e("v_add_u32 v18, v19, v8"); e("s_movk_i32 s30, 224")
    for i0, tb in enumerate(((0, 1, 2, 3), (16, 17, 18, 44), (45, 46, 101, 102))):
        c = sum(tb[m] << (8 * m) for m in range(4))
        a = AV + i0
        e(f"s_mov_b32 s29, {hex(c)}"); e(f"v_bfe_u32 v{a}, s29, v1, 8")
        e(f"v_mad_u32_u24 v{a}, v{a}, s30, v{8 if i0 else 18}"); e(f"v_add_u32 v{a+3}, 50176, v{a}")
    if AK:
        e("v_cmp_le_u32 s[64:65], 12, v16"); e(f"v_mov_b32 v{PAR}, 0x3f803f80")
        e("s_mul_i32 s30, s32, 224")
        for p in range(7):
            a = WP + p
            e(f"v_add_u32 v1, {64*p}, v5"); e("v_mul_u32_u24 v8, 4682, v1"); e("v_lshrrev_b32 v8, 16, v8")
            e(f"v_mul_u32_u24 v8, {896-224}, v8"); e(f"v_lshl_add_u32 v{a}, v1, 4, v8"); e(f"v_add_u32 v{a}, s30, v{a}")
        e("s_mov_b32 s45, s27")
        e("s_lshr_b32 s47, s2, 4"); e("s_sub_u32 s29, s47, 14"); e("s_cselect_b32 s47, s47, s29")
        e("s_lshl_b32 s29, s26, 2"); e("s_add_u32 s29, s29, s32")
        e("s_lshl_b32 s30, s29, 10"); e("s_lshl_b32 s31, s27, 8"); e("s_add_u32 s30, s30, s31"); e(f"s_add_u32 s30, s30, {WS_KVP}")
        e("s_and_b32 s31, s32, 1"); e("s_lshl_b32 s31, s31, 2"); e("s_add_u32 s31, s31, s27"); e("s_cmp_eq_u32 s31, 7"); e(f"s_cselect_b32 s30, {OOB}, s30")
        e("v_lshlrev_b32 v244, 15, v17"); e("v_lshl_add_u32 v244, v16, 4, v244"); e("v_add_u32 v244, s30, v244")
        e("v_mul_u32_u24 v1, 11, v16"); e("v_lshrrev_b32 v1, 5, v1"); e("v_add_u32 v1, v1, v16")
        e("v_lshlrev_b32 v8, 2, v16"); e("v_subrev_u32 v8, 45, v8"); e("v_cndmask_b32 v1, v1, v8, s[64:65]"); e("v_add_u32 v1, 64, v1")
        e("v_cmp_lt_u32 vcc, 1, v17"); e("v_and_b32 v8, 1, v17"); e("s_lshr_b32 s30, s29, 1"); e("v_cndmask_b32 v1, v16, v1, vcc")
        e("v_lshlrev_b32 v1, 4, v1"); e("v_lshl_add_u32 v1, v8, 2, v1")
        e("s_lshl_b32 s30, s30, 11"); e("s_and_b32 s31, s29, 1"); e("s_lshl_b32 s31, s31, 3"); e("s_add_u32 s30, s30, s31"); e("s_lshl_b32 s31, s27, 8"); e("s_add_u32 s30, s30, s31")
        e("s_and_b32 s31, s2, 7"); e("s_lshl_b32 s31, s31, 15"); e("s_add_u32 s30, s30, s31"); e(f"s_add_u32 s30, s30, {WS_KVT}")
        e("v_add_u32 v245, s30, v1")
        e("v_mov_b32 v246, 0x3f80"); e("v_mov_b32 v247, 0x3f800000")
        e("s_lshl_b32 s29, s27, 11"); e(f"s_add_u32 s29, s29, {MRG}"); e("v_add_u32 v8, s29, v13"); e("s_xor_b32 s29, s27, 2"); e("s_lshl_b32 s29, s29, 11"); e(f"s_add_u32 s29, s29, {MRG}"); e("v_add_u32 v19, s29, v13")
    e("v_mov_b32 v1, 0"); e("v_mov_b32 v18, 127")
    e("ds_write_b32 v30, v1 offset:96")
    if AK:
        e("s_cmp_eq_u32 s96, 0"); e("s_cselect_b32 s29, 127, 1"); e("v_mov_b32 v20, s29"); e(f"v_mov_b32 v21, {ST+64}"); e("ds_write_b32 v21, v20")
        e(f"s_mov_b32 s31, {WS_EA}"); e("s_cmp_eq_u32 s94, 0"); e(f"s_cselect_b32 s30, s31, {OOB}"); e("v_add_u32 v104, s30, v13")
    e(f"ds_write2_b32 v30, v{18 if AK else 1}, v{1 if AK else 18} offset0:32 offset1:40")

DORD = tuple(int(x) for x in os.environ.get("DORD", "0,1,2,3,6,7,8,9,4,5").split(","))
SPM = int(os.environ.get("SPM", "23"))
NA = int(os.environ.get("NA", "7"))
WGI = int(os.environ.get("WGI", "4"))
VTT = int(os.environ.get("VTT", "9"))
WGR = int(os.environ.get("WGR", "1"))
WGF = int(os.environ.get("WGF", "1"))
def dma_i(i):
    sr, so = ("s[12:15]", 35) if i < 4 else (("s[44:47]", 37) if i < 6 else ("s[16:19]", 36))
    return f"buffer_load_dwordx4 v{20+i}, {sr}, s{so} offen lds"
KOFF = ["s_lshl_b32 s35, s34, 7", f"s_mul_i32 s36, s34, {64*2688}", "s_cmp_eq_u32 s38, 3", "s_cselect_b32 s37, s35, s36",
        "s_add_u32 s34, s34, 1", "s_cmp_eq_u32 s34, 7", "s_cselect_b32 s34, 0, s34"]
def gl_half(h):
    idx = DORD[:NA] if h == 0 else DORD[NA:]
    grp = [list(KOFF) if h == 0 else []]
    for i in idx:
        grp[-1].append(f"s_add_u32 m0, s{52+i}, s62")
        grp.append([dma_i(i)])
    return grp
def gl_now(halves):
    for h in halves:
        for g in gl_half(h):
            for x in g:
                if x.startswith("buffer"): e("s_nop 0")
                e(x)
AORD = tuple(int(x) for x in os.environ.get("AORD", "4,5,6,7,0,1,2,3").split(","))
NAA = int(os.environ.get("NAA", "4"))
def al(t, h):
    if h == 0:
        for x in KOFF: e(x)
    for i in (AORD[:NAA] if h == 0 else AORD[NAA:]):
        sr, so = ("s[12:15]", 35) if i < 4 else (("s[16:19]", 36) if i < 6 else ("s[44:47]", 37))
        e(f"s_add_u32 m0, s{52+i}, {(t % 3) * STGA}"); e("s_nop 0")
        e(f"buffer_load_dwordx4 v{20+i}, {sr}, s{so} offen lds")
def k0(r):
    e(f"s_lshl_b32 s{r}, s25, 1"); e(f"s_add_u32 s{r}, s{r}, s26")
    e(f"s_mul_i32 s30, s{r}, 37"); e("s_lshr_b32 s30, s30, 8"); e("s_mul_i32 s30, s30, 7"); e(f"s_sub_u32 s{r}, s{r}, s30")
def wo_group():
    if "norot" in VS: e("s_mov_b32 s30, s45")
    else: e("s_add_u32 s30, s45, s47"); e("s_sub_u32 s29, s30, 14"); e("s_cselect_b32 s30, s30, s29")
    e("s_mul_i32 s29, s30, 7168"); e(f"s_mul_i32 s30, s30, {32*896}"); e("s_add_u32 s45, s45, 4")
    for p in range(7):
        e(f"s_add_u32 m0, s29, {1024*p}"); e("s_nop 0")
        e(f"buffer_load_dwordx4 v{WP+p}, s[48:51], s30 offen lds")
def wo_rest(tag):
    lab(f"WR_{tag}")
    e("s_cmp_lt_u32 s45, 14"); e(f"s_cbranch_scc0 WRD_{tag}")
    wo_group()
    e(f"s_branch WR_{tag}")
    lab(f"WRD_{tag}")
QB = [int(x) for x in os.environ.get("QB", "2,4,6,7").split(",")]
WQ1 = int(os.environ.get("WQ1", "2")); WQ2 = int(os.environ.get("WQ2", "7"))
def gen():
    L.append(".p2align 8"); L.append(f".globl {KN}"); L.append(f".type {KN},@function"); lab(KN)
    e("s_cmp_ge_u32 s2, 256"); e("s_cbranch_scc1 K_END")
    e("s_memrealtime s[86:87]")
    e("s_getreg_b32 s88, hwreg(HW_REG_XCC_ID)"); e("s_and_b32 s88, s88, 15")
    e("s_mov_b32 s95, s2"); e("s_mov_b32 s96, 0"); e("s_mov_b32 s97, 0")
    ts(0)
    lab("RESTART")
    e("s_and_b32 s24, s2, 1"); e("s_mul_i32 s29, s24, 24"); e("s_add_u32 s30, s0, s29"); e("s_addc_u32 s31, s1, 0")
    e("s_load_dwordx4 s[4:7], s[30:31], 0"); e("s_load_dwordx2 s[8:9], s[0:1], 64"); e("s_load_dwordx2 s[10:11], s[30:31], 16"); e("s_load_dwordx2 s[80:81], s[0:1], 48")
    e("v_lshrrev_b32 v1, 6, v0"); e("s_bfe_u32 s25, s2, 0x20001"); e("v_readfirstlane_b32 s27, v1")
    e("s_lshl_b32 s25, s25, 2"); e("s_bfe_u32 s26, s2, 0x20003"); e("s_add_u32 s25, s25, s26"); e("s_lshr_b32 s26, s2, 5")
    e("s_lshl_b32 s28, s25, 7"); e("s_mov_b32 s89, 0")
    e("v_and_b32 v5, 63, v0"); e("v_lshlrev_b32 v13, 4, v5")
    e("v_and_b32 v16, 15, v0"); e("v_bfe_u32 v17, v0, 4, 2")
    e("s_and_b32 s38, s27, 3")
    e("s_cmp_lt_u32 s27, 4"); e("s_cbranch_scc1 CW_PRO")
    e("v_lshrrev_b32 v6, 3, v5"); e("v_and_b32 v7, 7, v5")
    e("s_mul_i32 s32, s26, 112"); e(f"v_mov_b32 v47, {OOB}")
    k0(34)
    e("s_cmp_eq_u32 s24, 0"); e("s_cbranch_scc0 LD_B")
    def kperm(dst, r):
        e(f"v_bfe_u32 v45, v{r}, 2, 2"); e(f"v_bfe_u32 v46, v{r}, 4, 1"); e(f"v_and_b32 v{dst}, 35, v{r}")
        e(f"v_lshl_add_u32 v{dst}, v45, 3, v{dst}"); e(f"v_lshl_add_u32 v{dst}, v46, 2, v{dst}")
    def wkv(dst, add):
        e(f"s_add_u32 s30, s38, {add}"); e("s_lshl_b32 s30, s30, 6"); e("v_add_u32 v40, s30, v5")
        e("v_mul_u32_u24 v41, 4682, v40"); e("v_lshrrev_b32 v41, 16, v41")
        e("v_mul_u32_u24 v42, 14, v41"); e("v_sub_u32 v42, v40, v42")
        e("v_cmp_lt_u32 vcc, 6, v42"); kperm(41, 41)
        e("v_cndmask_b32 v43, v48, v49, vcc")
        e(f"v_mul_u32_u24 v{dst}, 2688, v41"); e(f"v_lshl_add_u32 v{dst}, v42, 4, v{dst}")
        e(f"v_add3_u32 v{dst}, v{dst}, v43, s32"); e(f"v_add_u32 v{dst+1}, {32*2688}, v{dst}")
    e("v_mov_b32 v48, 896"); e(f"v_mov_b32 v49, {1792-112}")
    wkv(24, 0); wkv(26, 4)
    e("s_cmp_eq_u32 s38, 3"); e("s_cselect_b32 s31, 1, 0"); e("s_lshl_b32 s29, s38, 2"); e("s_sub_u32 s29, s29, s31"); e("s_lshl_b32 s52, s29, 10")
    e("s_lshl_b32 s29, s29, 3"); e("s_add_u32 s29, s29, s28"); e("s_lshl_b32 s31, s31, 2")
    e("v_xor_b32 v7, v7, v17"); e("v_xor_b32 v7, s31, v7")
    e("v_add_u32 v6, s29, v6"); e("v_mul_u32_u24 v6, 896, v6")
    e("v_lshl_add_u32 v20, v7, 4, v6"); e("v_xor_b32 v7, 4, v7"); e("v_lshl_add_u32 v21, v7, 4, v6"); e("v_add_u32 v21, 7168, v21")
    e("v_add_u32 v22, 14336, v20"); e("v_add_u32 v23, 14336, v21"); e("v_add_u32 v40, 28672, v20")
    for i in range(1, 4): e(f"s_add_u32 s{52+i}, s52, {1024*i}")
    e("s_lshl_b32 s56, s38, 10"); e("s_add_u32 s60, s56, %d" % WQ); e("s_add_u32 s56, s56, 16384"); e(f"s_add_u32 s57, s56, {WHA}")
    e("s_add_u32 s58, s56, 4096"); e("s_add_u32 s59, s57, 4096"); e("s_add_u32 s61, s60, 4096")
    e("s_cmp_eq_u32 s38, 2"); e("s_cselect_b64 vcc, -1, 0"); e(f"s_cselect_b32 s55, {JK1}, s55"); e("v_cndmask_b32 v23, v23, v47, vcc")
    e("s_cmp_eq_u32 s38, 3"); e("s_cselect_b64 vcc, -1, 0"); e("s_cselect_b32 s58, 15360, s58"); e(f"s_cselect_b32 s59, {JK1}, s59")
    e("v_cndmask_b32 v26, v26, v40, vcc"); e("v_cndmask_b32 v27, v27, v47, vcc")
    e(f"s_cselect_b32 s61, {JK2}, s61"); e("s_cselect_b32 s85, 0, 7168")
    e("s_waitcnt lgkmcnt(0)")
    srd(12, 4, 1835008); srd(16, 6, 448 * 2688)
    e("s_cmp_eq_u32 s38, 3")
    for i in range(4): e(f"s_cselect_b32 s{44+i}, s{12+i}, s{16+i}")
    ts(1)
    al(0, 0); al(0, 1)
    srd(20, 8, WS_END)
    pre0()
    e("v_mov_b32 v48, 0"); e(f"v_mov_b32 v49, {32*2688-112}")
    wkv(28, 0); wkv(29, 4)
    e("s_cmp_eq_u32 s38, 3"); e("s_cselect_b64 vcc, -1, 0"); e("v_cndmask_b32 v29, v29, v47, vcc")
    pre2(True, True)
    e("s_lshl_b32 s29, s38, 5"); e("s_lshr_b32 s30, s2, 3"); e("s_add_u32 s29, s29, s30"); e("s_min_u32 s29, s29, 111")
    e(f"s_mul_i32 s30, s29, {4*2688}"); e("s_add_u32 s90, s6, s30"); e("s_addc_u32 s91, s7, 0")
    e(f"s_mul_i32 s30, s29, {4*896}"); e("s_add_u32 s82, s10, s30"); e("s_addc_u32 s83, s11, 0")
    if VTT < 7:
        e("s_lshr_b32 s29, s2, 3"); e("s_lshl_b32 s29, s29, 1"); e("s_and_b32 s30, s38, 1"); e("s_add_u32 s29, s29, s30"); e("s_mul_i32 s29, s29, 7")
        e("v_mul_u32_u24 v41, 9363, v5"); e("v_lshrrev_b32 v41, 16, v41"); e("v_mul_u32_u24 v42, 7, v41"); e("v_sub_u32 v42, v5, v42")
        e("v_add_u32 v41, s29, v41"); e("s_cmp_lt_u32 s38, 2"); e("s_cselect_b32 s30, s6, s10"); e("s_cselect_b32 s31, s7, s11")
        srd(48, 30, 448 * 896)
        e("s_movk_i32 s29, 896"); e("s_cmp_lt_u32 s38, 2"); e("s_cselect_b32 s29, 2688, s29"); e(f"s_cselect_b32 s50, {448*2688}, s50")
        e("v_mul_u32_u24 v41, s29, v41"); e("v_lshl_add_u32 v231, v42, 7, v41"); e("v_cmp_lt_u32 vcc, 48, v5"); e("s_nop 1"); e("v_cndmask_b32 v231, v231, v47, vcc")
    al(1, 0)
    ts(2)
    e(f"s_waitcnt vmcnt({NAA}) lgkmcnt(0)"); e("s_barrier")
    ts(3)
    XQ = 112; QA = 64
    wqn = [0]
    def wq(n):
        for _ in range(n):
            wqn[0] += 1
            e(KOFF[1]); e("s_mov_b32 m0, s60"); e("s_add_u32 s60, s60, 7168")
            e("buffer_load_dwordx4 v28, s[16:19], s36 offen lds")
            e("s_mov_b32 m0, s61"); e("s_add_u32 s61, s61, s85")
            e("buffer_load_dwordx4 v29, s[16:19], s36 offen lds")
            for x in KOFF[4:]: e(x)
    PFT = [int(x) for x in os.environ.get("PFT", "9").split(",")]
    for t in range(7):
        for sub in range(2):
            for a in range(2): e(f"ds_read_b128 {vr(XQ+16*t+8*sub+4*a,4)}, v{2+sub} offset:{(t%3)*STGA+a*2048}")
        n = 0
        if t + 1 <= 6: al(t + 1, 1)
        if t == VTT: e("buffer_load_dword v239, v231, s[48:51], 0 offen")
        if t + 2 <= 6: al(t + 2, 0); n = NAA
        if t == 5:
            wq(WQ1); n = 2 * WQ1
        if t == 6: wq(WQ2 - WQ1)
        e("s_waitcnt lgkmcnt(0)")
        if t in PFT:
            k = PFT.index(t)
            for i in range(14):
                if k < 2: e(f"s_load_dwordx2 s[98:99], s[90:91], {(2*k + i//7)*2688 + (i%7)*128 + 60}")
                else: e(f"s_load_dwordx2 s[98:99], s[82:83], {(14*(k-2)+i)*128 + 60}")
        if t < 6: e(f"s_waitcnt vmcnt({n})"); e("s_barrier")
        else: e("ds_write_b32 v30, v18 offset:96")
        if min(PFT) > 6: tsl(20 + t)
    wq(7 - WQ2)
    WB = [32, 48, 96]
    qcb = [0, 32, 56, 88]
    Lq = Q("lgkmcnt", 15)
    def qreads(ks):
        return [(f"ds_read_b64_tr_b16 {vr(WB[ks%3]+4*c+2*h,2)}, v4 offset:{(ks>>1)*7168+h*3584+(ks&1)*112+qcb[c]}", ks) for c in range(4) for h in range(2)]
    def qsync(b):
        e(f"s_waitcnt vmcnt({2*(7-QB[b])})"); e(f"v_mov_b32 v1, {b+1}"); e("ds_write_b32 v30, v1 offset:128")
        lab(f"QS{b}")
        e("ds_read_b32 v1, v31 offset:128"); e("s_waitcnt lgkmcnt(0)"); e(f"v_cmp_gt_u32 vcc, {b+1}, v1"); e("s_nop 4"); e(f"s_cbranch_vccnz QS{b}")
        Lq.q = []
        if b < 3: ts(28 + b)
    def qm(ks, a, c):
        d = vr(QA + 16 * a + 4 * c, 4)
        return f"v_mfma_f32_16x16x32_bf16 {d}, {vr(WB[ks%3]+4*c,4)}, {vr(XQ+8*ks+4*a,4)}, {d if ks else 0}"
    starts = {2 * t: b + 1 for b, t in enumerate(QB[:-1])}
    qsync(0)
    for ks in range(2):
        for x in qreads(ks): Lq.issue(*x)
    for ks in range(14):
        nxt = qreads(ks + 2) if ks + 2 < 14 else []
        Lq.wait(ks)
        late = ks + 2 in starts
        per = 2 if ks >= 11 else 1
        for a in range(2 if ks < 11 else 1):
            for c in range(4):
                e(qm(ks, a, c))
                for _ in range(per):
                    if nxt and not late: Lq.issue(*nxt.pop(0))
        if late: qsync(starts[ks + 2])
        for x in nxt: Lq.issue(*x)
    e(f"v_mov_b32 v1, {ST+64}"); e("ds_read_b32 v22, v1")
    def qphi(a): return phi2([(QA + 16 * a + 4 * c, 128 + 8 * a + 2 * c, 112 + 4 * c) for c in range(4)])
    def qst(a):
        for hh in range(2):
            o = 128 + 8 * a + 4 * hh
            e(f"v_cndmask_b32 v{o+2}, v{o+2}, 0, s[66:67]"); e(f"v_cndmask_b32 v{o+3}, v{o+3}, 0, s[66:67]")
        k = uid()
        sts = [f"buffer_store_dwordx4 {vr(128+8*a+4*hh,4)}, v13, s[20:23], s70 offen offset:{1024*hh}" for hh in range(2)]
        e("s_cmp_eq_u32 s92, 0"); e(f"s_cbranch_scc1 SL{k}")
        for x in sts: e(x)
        e(f"s_branch SD{k}"); lab(f"SL{k}")
        for x in sts: e(x + SC)
        lab(f"SD{k}")
    ph = qphi(0)
    for mi, (ks, c) in enumerate((ks, c) for ks in (11, 12, 13) for c in range(4)):
        e(qm(ks, 1, c))
        if mi >= 3:
            for _ in range(3): e(ph.pop(0))
    ts(4)
    for x in ph: e(x)
    lab("QP_W")
    e("s_waitcnt lgkmcnt(0)"); e("v_readfirstlane_b32 s92, v22"); e("ds_read_b32 v22, v1"); e("s_cmp_gt_u32 s92, 1"); e("s_cbranch_scc1 QP_W")
    qst(0)
    e("s_add_u32 s70, s70, 16384")
    for x in qphi(1): e(x)
    qst(1)
    e("s_branch P2")
    lab("LD_B")
    e("v_mul_u32_u24 v199, 896, v6"); e("v_lshl_add_u32 v199, v7, 4, v199"); e("v_xor_b32 v7, v7, v17")
    e("s_lshl_b32 s29, s38, 5"); e("s_add_u32 s29, s29, s28"); e("s_sub_u32 s29, s29, 16")
    e("v_add_u32 v6, s29, v6"); e("s_movk_i32 s31, 896"); e("v_mul_lo_u32 v6, v6, s31")
    e("v_lshl_add_u32 v20, v7, 4, v6"); e("v_xor_b32 v7, 4, v7"); e("v_lshl_add_u32 v21, v7, 4, v6"); e("v_add_u32 v21, 7168, v21")
    e("v_add_u32 v22, 14336, v20"); e("v_add_u32 v23, 14336, v21")
    def wvoff(dst, add):
        e(f"s_add_u32 s30, s38, {add}"); e("s_lshl_b32 s30, s30, 6"); e("v_add_u32 v40, s30, v5")
        e("s_mov_b32 s31, 0xba2e8bb"); e("v_mul_hi_u32 v41, v40, s31")
        e("v_mul_u32_u24 v42, 22, v41"); e("v_sub_u32 v42, v40, v42")
        e("v_mul_u32_u24 v43, 37, v42"); e("v_lshrrev_b32 v43, 8, v43")
        e("v_mul_u32_u24 v44, 7, v43"); e("v_sub_u32 v44, v42, v44")
        kperm(41, 41)
        e(f"v_mul_u32_u24 v{dst}, 2688, v41"); e("v_mul_u32_u24 v43, 896, v43"); e(f"v_add3_u32 v{dst}, v{dst}, v43, s32")
        e("v_cmp_eq_u32 vcc, 21, v42"); e(f"v_lshl_add_u32 v{dst}, v44, 4, v{dst}"); e(f"v_add_u32 v{dst+1}, {32*2688}, v{dst}")
        e(f"v_cndmask_b32 v{dst}, v{dst}, v47, vcc"); e(f"v_cndmask_b32 v{dst+1}, v{dst+1}, v47, vcc")
    wvoff(26, 0); wvoff(28, 4)
    e("v_add_u32 v24, 28672, v20"); e("v_add_u32 v25, 28672, v21")
    e("s_cmp_eq_u32 s38, 3"); e("s_cbranch_scc1 LD_R3")
    wvoff(24, 8)
    lab("LD_R3")
    e("s_lshl_b32 s52, s38, 12")
    for i in range(1, 4): e(f"s_add_u32 s{52+i}, s52, {1024*i}")
    e("s_lshl_b32 s58, s38, 10"); e(f"s_add_u32 s58, s58, {XS}"); e(f"s_add_u32 s59, s58, {WH}")
    e("s_add_u32 s60, s58, 4096"); e("s_add_u32 s61, s59, 4096")
    e("s_add_u32 s56, s58, 8192"); e("s_add_u32 s57, s59, 8192")
    e("s_cmp_eq_u32 s38, 3"); e("s_cselect_b32 s56, 16384, s56"); e("s_cselect_b32 s57, 17408, s57")
    e("s_mov_b32 s62, 0")
    e("s_waitcnt lgkmcnt(0)")
    srd(12, 4, 1835008); srd(16, 6, 448 * 2688)
    e("s_cmp_eq_u32 s38, 3")
    for i in range(4): e(f"s_cselect_b32 s{44+i}, s{12+i}, s{16+i}")
    ts(1)
    gl_now((0, 1))
    srd(48, 10, 448 * 896); srd(20, 8, WS_END)
    pre0()
    pre2(False, True)
    for i in range(48): e(f"v_mov_b32 v{ACC+i}, 0")
    e("v_lshrrev_b32 v1, 2, v16"); e("v_lshl_add_u32 v192, v17, 2, v1")
    e("v_min_u32 v193, 2, v17"); e("v_lshl_add_u32 v193, v193, 2, v1")
    e("v_add_u32 v193, 16, v193")
    e("v_and_b32 v1, 3, v16"); e("v_lshlrev_b32 v1, 3, v1"); e(f"s_add_u32 s29, s52, {SCR}"); e("v_add_u32 v1, s29, v1")
    e("v_lshl_add_u32 v192, v192, 7, v1"); e("v_lshl_add_u32 v193, v193, 7, v1")
    e("s_and_b32 s29, s2, 7"); e("s_lshl_b32 s30, s29, 10")
    e("v_min_u32 v166, 55, v5"); e("v_lshlrev_b32 v166, 4, v166"); e(f"s_add_u32 s31, s30, {WS_GO}")
    e("s_or_b32 s32, s38, s96"); e("s_cmp_eq_u32 s32, 0"); e(f"s_cselect_b32 s32, s31, {OOB}"); e("v_add_u32 v166, s32, v166")
    e("s_lshl_b32 s32, s85, 3"); e("s_add_u32 s31, s31, s32"); e("s_cmp_lt_u32 s85, 112"); e(f"s_cselect_b32 s31, s31, {OOB}"); e("s_cmp_eq_u32 s96, 0"); e(f"s_cselect_b32 s31, s31, {OOB}")
    if "failo" in VS:
        e("s_cmp_eq_u32 s2, 43"); e(f"s_cselect_b32 s31, {OOB}, s31")
    e(f"v_mov_b32 v167, {OOB}"); e("v_writelane_b32 v167, s31, 0")
    e("s_lshl_b32 s30, s29, 8"); e(f"s_add_u32 s30, s30, {WS_S}"); e("v_and_b32 v200, 31, v5"); e("v_lshlrev_b32 v200, 3, v200"); e("v_add_u32 v200, s30, v200")
    e("s_lshr_b32 s30, s85, 4"); e("s_lshl_b32 s30, s30, 16"); e("s_and_b32 s31, s85, 15"); e("s_lshl_b32 s31, s31, 10"); e("s_add_u32 s33, s30, s31"); e("s_add_u32 s33, s33, s71")
    e("s_cmp_lt_u32 s85, 112"); e("s_cselect_b64 vcc, -1, 0"); e("v_cndmask_b32 v194, v47, v13, vcc"); e("v_cndmask_b32 v199, v47, v199, vcc")
    e("buffer_load_dwordx4 v[160:163], v166, s[20:23], 0 offen")
    e(f"s_mov_b32 s62, {STG}")
    gl_now((0,))
    ts(2)
    e(f"s_waitcnt vmcnt({1+NA})")
    e("s_branch R_BL")
    lab("CW_PRO")
    e("s_and_b32 s29, s2, 7")
    e(f"v_mov_b32 v96, {OOB}"); e("v_writelane_b32 v96, 0, 0")
    e("s_or_b32 s94, s27, s96")
    e("s_cmp_eq_u32 s24, 0"); e("s_cbranch_scc0 CW_B")
    e("s_lshl_b32 s35, s25, 15"); e("s_lshl_b32 s30, s26, 12"); e("s_add_u32 s35, s35, s30"); e(f"s_add_u32 s35, s35, {WS_KVP}")
    e("s_lshl_b32 s36, s29, 15"); e("s_lshr_b32 s30, s2, 4"); e("s_lshl_b32 s30, s30, 11"); e("s_add_u32 s36, s36, s30"); e("s_and_b32 s30, s2, 8"); e("s_add_u32 s36, s36, s30"); e(f"s_add_u32 s36, s36, {WS_KVT}")
    e("s_lshl_b32 s37, s26, 7"); e("s_lshl_b32 s30, s25, 3"); e("s_add_u32 s37, s37, s30"); e(f"s_add_u32 s37, s37, {WS_EA}")
    for i in range(4): e(f"v_mov_b32 v{92+i}, -1")
    e("s_waitcnt lgkmcnt(0)")
    srd(20, 8, WS_END)
    e("s_cmp_eq_u32 s94, 0"); e("s_cbranch_scc0 CW_NE")
    for k in range(4): e(f"buffer_store_dwordx4 v[92:95], v13, s[20:23], s35 offen offset:{1024*k}" + SC)
    for k in range(2): e(f"buffer_store_dwordx2 v[92:93], v13, s[20:23], s36 offen offset:{1024*k}" + SC)
    lab("CW_NE")
    srd(48, 10, 448 * 896)
    pre0()
    pre2(True, False)
    for i in range(64): e(f"v_mov_b32 v{ACC+i}, 0")
    e("s_cmp_eq_u32 s94, 0"); e("s_cbranch_scc0 R_AK")
    ts(28)
    e("s_waitcnt vmcnt(0)")
    ts(29)
    if "faile" in VS:
        e("s_cmp_eq_u32 s2, 70"); e("s_cbranch_scc1 R_AK")
    e(f"buffer_store_dwordx2 {vr(FD,2)}, v96, s[20:23], s37 offen" + SC)
    e("s_branch R_AK")
    lab("CW_B")
    e("s_lshl_b32 s34, s29, 8"); e("s_lshr_b32 s30, s2, 3"); e("s_lshl_b32 s30, s30, 3"); e("s_add_u32 s34, s34, s30"); e(f"s_add_u32 s34, s34, {WS_S}")
    e("s_waitcnt lgkmcnt(0)")
    srd(20, 8, WS_END)
    pre0()
    e("s_cmp_eq_u32 s94, 0"); e("s_cbranch_scc0 CW_NS")
    e("buffer_load_dword v253, v96, s[20:23], s34 offen")
    e(f"buffer_store_dwordx2 {vr(FD,2)}, v96, s[20:23], s34 offen")
    lab("CW_NS")
    pre2(False, False)
    for i in range(56): e(f"v_mov_b32 v{ACC+i}, 0")
    e("s_bitcmp1_b32 s27, 0"); e("s_cbranch_scc1 R_BV")
    e("s_branch R_BK")
    def role(name):
        loader = name == "BL"
        isA = name[0] == "A"
        nx = 4 if isA else 2
        wcols = [0, 32, 112, 144] if isA else [0, 32, 112, 144, 224, 256]
        stg, wh, wsr = (STGA, WHA, WSA) if isA else (STG, WH, WSr)
        halo = {"BK": (2, 3), "BV": (4, 5)}.get(name)
        WO = 16 if isA else 12
        def freads(sub, f):
            b = F[f]; r = []
            for a in range(nx): r.append(f"ds_read_b128 {vr(b+4*a,4)}, v{2+sub} offset:{a*2048}")
            for c, cb in enumerate(wcols):
                for h in range(2): r.append(f"ds_read_b64_tr_b16 {vr(b+WO+4*c+2*h,2)}, v4 offset:{sub*wh+h*16*wsr+cb}")
            if halo: r.append(f"ds_read_b128 {vr(b+8,4)}, v{6+sub}")
            return r
        def swapped(c): return name == "AK" or (not isA and c >= 4)
        def acc(a, c):
            if name == "AK": return ACC + 32 * (c >> 1) + 4 * (2 * a + (c & 1))
            return ACC + 16 * (c >> 1) + 4 * (2 * a + (c & 1))
        def mf(f, a, c, hal=False):
            b = F[f]; x = vr(b + (8 if hal else 4 * a), 4); w = vr(b + WO + 4 * c, 4)
            d = vr(ACC + 48 + 4 * (c & 1), 4) if hal else vr(acc(a, c), 4)
            p, q = (x, w) if swapped(c) else (w, x)
            return f"v_mfma_f32_16x16x32_bf16 {d}, {p}, {q}, {d}"
        def mfmas(f, last=False):
            if not last:
                r = [mf(f, a, c) for c in range(len(wcols)) for a in range(nx)]
                if halo: r += [mf(f, 0, c, True) for c in halo]
                return r
            r = [mf(f, 1, c) for c in (2, 3, 4, 5)]
            if halo: r += [mf(f, 0, c, True) for c in halo]
            r += [mf(f, 0, c) for c in (2, 3)] + [mf(f, 1, c) for c in (0, 1)] + [mf(f, 0, c) for c in (0, 1, 4, 5)]
            return r
        bump = ["s_mov_b32 s43, %d" % stg, "s_cmp_eq_u32 s42, %d" % (2 * stg), "s_cselect_b32 s43, %d, s43" % (-2 * stg), "v_add_u32 v2, s43, v2", "v_add_u32 v3, s43, v3", "v_add_u32 v4, s43, v4"]
        if halo: bump += ["v_add_u32 v6, s43, v6", "v_add_u32 v7, s43, v7"]
        def chunk(ms, rds, groups=(), tail=()):
            rds = list(rds); groups = list(groups); n = len(ms)
            if "nofr" in VS: rds = [x for x in rds if "b32" in x]
            if "nofx" in VS: rds = [x for x in rds if "b128" not in x]
            if "nofw" in VS: rds = [x for x in rds if "_tr_" not in x]
            if "nogl" in VS: groups = [[x for x in g if " lds" not in x] or ["s_nop 0"] for g in groups]
            if "nomf" in VS: ms = ["s_nop 0"] * n
            per = -(-len(rds) // max(1, n - 2))
            for mi, ins in enumerate(ms):
                e(ins)
                for _ in range(per):
                    if rds: e(rds.pop(0))
                k = -(-len(groups) // (n - mi))
                for _ in range(k):
                    for x in groups.pop(0): e(x)
                    if k > 1 and groups and groups[0][0].startswith("buffer"): e("s_nop 0")
            assert not rds and not groups
            for x in tail: e(x)
        wfi = [0]
        def wfl(n):
            r = []
            for _ in range(n):
                h = wfi[0]; wfi[0] += 1
                r.append([f"buffer_load_dwordx4 {vr(WF+4*h,4)}, v18, s[20:23], s{(71,82,83,84)[h>>2]} offen offset:{1024*(h&3)}" + WFP])
            return r
        lab(f"R_{name}")
        e("s_waitcnt lgkmcnt(0)"); e("s_barrier")
        ts(3)
        for x in freads(0, 0): e(x)
        if not isA and "nopf" not in VS:
            e("s_waitcnt lgkmcnt(0)")
            for i in range(14): e(f"s_load_dword s93, s[90:91], {896*(i + (14 if loader else 0))}")
        if loader:
            gl_now((1,))
            e("buffer_load_dwordx2 v[196:197], v200, s[20:23], 0 offen sc1")
            e(f"s_mov_b32 s62, {2*STG}")
        if isA or "nopf" in VS: e("s_waitcnt lgkmcnt(0)")
        lab(f"LP_{name}")
        chunk(mfmas(0), freads(1, 1), groups=gl_half(0) if loader else (), tail=bump)
        e("s_waitcnt lgkmcnt(0)" + (f" vmcnt({NA})" if loader else "")); e("s_barrier")
        ts_dyn(20)
        if loader:
            e(f"s_bitcmp1_b32 {SPM}, s39"); e(f"s_cbranch_scc1 SP_{name}")
            lab(f"SR_{name}")
        chunk(mfmas(1), freads(0, 0), groups=gl_half(1) if loader else (), tail=(["s_mov_b32 s62, s42"] if loader else []) + ["s_add_u32 s42, s42, s43", "s_add_u32 s39, s39, 1", f"s_cmp_lt_u32 s39, {6 if isA else 5}"])
        e("s_waitcnt lgkmcnt(0)")
        e(f"s_cbranch_scc1 LP_{name}")
        if not isA:
            chunk(mfmas(0), freads(1, 1), tail=bump)
            if loader:
                e("s_waitcnt vmcnt(0)")
                e("s_or_b32 s29, s38, s96"); e("s_cmp_eq_u32 s29, 0"); e(f"s_cbranch_scc1 GC_{name}")
                lab(f"GO_OK{name}")
            e("s_waitcnt lgkmcnt(0)"); e("s_barrier")
            tsl(25)
            chunk(mfmas(1), freads(0, 0), groups=wfl(WFS[0]))
            e("s_waitcnt lgkmcnt(0)")
            e(f"v_mov_b32 v1, {ST+64}")
            chunk(mfmas(0), freads(1, 1) + ["ds_read_b32 v22, v1"], groups=wfl(WFS[1]))
            e("s_waitcnt lgkmcnt(0)"); e("s_barrier")
            tsl(26)
            e("v_readfirstlane_b32 s92, v22")
            ms = mfmas(1, True)
            lastwf = wfl(WFS[2]); assert wfi[0] == 16
        if name == "AK":
            PK, VV, TM = 176, 192, 208
            PKo = lambda a, u: PK + 8 * (a >> 1) + 4 * u + 2 * (a & 1)
            VVo = lambda a, u: VV + 8 * (a >> 1) + 4 * u + 2 * (a & 1)
            KA = 72
            kvs = lambda f, kv: [mf(f, a, c) for a in range(4) for c in (2 * kv, 2 * kv + 1)]
            e("s_setprio 3")
            LEA = "buffer_load_dwordx4 v[108:111], v104, s[20:23], 0 offen" + SC
            e(LEA)
            chunk(kvs(0, 0), freads(1, 1))
            e("s_waitcnt lgkmcnt(0)")
            tsl(26)
            v0l = phi2([(acc(a, u), PKo(a, u), TM + 4 * (2 * a + u)) for a in range(2) for u in range(2)])
            for mi, ins in enumerate(kvs(1, 0) + kvs(0, 1) + kvs(1, 1)):
                e(ins)
                if mi >= 6:
                    for _ in range(3):
                        if v0l: e(v0l.pop(0))
            for x in v0l: e(x)
            e("s_nop 3")
            def vcv(t):
                for a in (2 * t, 2 * t + 1):
                    for u in range(2):
                        s = acc(a, 2 + u); o = VVo(a, u)
                        cvt_pk(o, s, s + 1); cvt_pk(o + 1, s + 2, s + 3)
                for i in range(4): e(f"v_cndmask_b32 v{VV+8*t+4+i}, v{VV+8*t+4+i}, v{PAR}, s[64:65]")
            def kvm(t):
                for ud in range(2):
                    for ue in range(2):
                        d = vr(KA + 8 * ud + 4 * ue, 4)
                        e(f"v_mfma_f32_16x16x32_bf16 {d}, {vr(PK+8*t+4*ud,4)}, {vr(VV+8*t+4*ue,4)}, {d if t else 0}")
            vcv(0); e("s_nop 1"); kvm(0)
            for x in phi2([(acc(a, u), PKo(a, u), TM + 4 * (2 * (a - 2) + u)) for a in (2, 3) for u in range(2)]): e(x)
            vcv(1); e("s_mov_b32 s92, 1"); e(f"v_mov_b32 v1, {ST+64}"); kvm(1)
            ts(4)
            e("s_cmp_eq_u32 s96, 0"); e("s_cbranch_scc1 AK_1")
            for k in range(4): e(f"buffer_load_dwordx4 {vr(88+4*k,4)}, v13, s[20:23], s70 offen offset:{1024*k}" + SC)
            e("s_waitcnt vmcnt(0)")
            for k in range(8): e(f"v_pk_add_f32 {vr(KA+2*k,2)}, {vr(KA+2*k,2)}, {vr(88+2*k,2)}")
            for k in range(4): e(f"buffer_store_dwordx4 {vr(KA+4*k,4)}, v13, s[20:23], s70 offen offset:{1024*k}" + SC)
            e("s_branch P2")
            lab("AK_1")
            e("s_bitcmp1_b32 s27, 1"); e("s_cbranch_scc1 AK_H1")
            e("s_nop 7"); e("s_nop 1")
            for ue in range(2): e(f"ds_write_b128 v8, {vr(KA+8+4*ue,4)} offset:{1024*ue}")
            e("s_branch AK_HD")
            lab("AK_H1")
            e("s_nop 3")
            for ue in range(2): e(f"ds_write_b128 v8, {vr(KA+4*ue,4)} offset:{1024*ue}")
            e("s_nop 3")
            for k in range(4): e(f"v_pk_mov_b32 {vr(KA+2*k,2)}, {vr(KA+8+2*k,2)}, {vr(KA+8+2*k,2)} op_sel:[0,1]")
            lab("AK_HD")
            e("ds_write_b32 v30, v18 offset:96")
            lab("AK_SP")
            e("ds_read_b32 v21, v31 offset:96")
            for ue in range(2): e(f"ds_read_b128 {vr(88+4*ue,4)}, v19 offset:{1024*ue}")
            e("s_waitcnt lgkmcnt(2)"); e("v_cmp_eq_u32 vcc, 0, v21"); e("s_nop 3"); e("s_waitcnt lgkmcnt(0)"); e("s_cbranch_vccnz AK_SP")
            for k in range(4): e(f"v_pk_add_f32 {vr(KA+2*k,2)}, {vr(KA+2*k,2)}, {vr(88+2*k,2)}")
            for k in range(4): cvt_pk(KA + k, KA + 2 * k, KA + 2 * k + 1)
            if "failk" in VS:
                e("s_cmp_eq_u32 s2, 66"); e(f"s_cselect_b32 s70, {WS_TS}, s70")
            e(f"buffer_store_dwordx4 {vr(KA,4)}, v13, s[20:23], s70 offen" + SC)
            ts(5)
            e("s_mov_b32 s93, 0")
            e("s_cmp_eq_u32 s27, 0"); e("s_cbranch_scc0 EA_D")
            e("s_and_b32 s29, s2, 6"); e("s_lshl_b32 s29, 0x03030303, s29")
            e("s_waitcnt vmcnt(1)")
            lab("EA_L")
            e("v_xor_b32 v105, s88, v108"); e("v_xor_b32 v106, s88, v110"); e("v_or_b32 v105, v105, v106"); e("v_and_b32 v105, 15, v105"); e("v_cmp_ne_u32 vcc, 0, v105")
            e("s_nop 4"); e("s_or_b32 s30, vcc_lo, vcc_hi"); e("s_and_b32 s30, s30, s29"); e("s_cselect_b32 s92, 0, 1")
            if "remote" in VS: e("s_mov_b32 s92, 0")
            chk(108, two=True)
            if "lateea" in VS:
                e("s_cmp_eq_u32 s93, 0"); e("s_cbranch_scc1 EA_X")
            e("s_cbranch_vccz EA_W")
            lab("EA_X")
            e(LEA); e("s_waitcnt vmcnt(0)")
            e("s_add_u32 s93, s93, 1"); e(f"s_cmp_lt_u32 s93, {LIMIT}"); e("s_cbranch_scc1 EA_L")
            e("s_mov_b32 s94, 1"); e("s_mov_b32 s92, 0")
            lab("EA_W")
            e("v_mov_b32 v22, s92"); e("v_mov_b32 v23, s94"); e("ds_write_b64 v1, v[22:23]")
            lab("EA_D")
            RP = 112; RS = 128
            e("s_mov_b32 s93, 0")
            for n in range(1, 4): e(f"s_mov_b32 s{34+n}, {131072*n}")
            if "latewo" in VS: e("s_sleep 40")
            if WGI >= 4: wo_rest("k")
            else:
                for _ in range(WGI): wo_group()
            lab("AK_PW")
            e("ds_read_b64 v[22:23], v1"); e("s_waitcnt lgkmcnt(0)"); e("v_readfirstlane_b32 s92, v22"); e("v_readfirstlane_b32 s94, v23")
            e("s_cmp_gt_u32 s92, 1"); e("s_cbranch_scc1 AK_PW")
            e("s_or_b32 s89, s89, s94")
            e("s_cmp_eq_u32 s94, 0"); e("s_cbranch_scc0 P2")
            if RSL0: e(f"s_sleep {RSL0}")
            lab("RD_RL")
            for n in range(4): e(f"buffer_load_dwordx4 {vr(RP+4*n,4)}, v244, s[20:23], {'s%d' % (34+n) if n else 0} offen" + SC)
            e("s_cmp_lt_u32 s45, 14"); e("s_cbranch_scc0 RD_ND")
            wo_group()
            if WGR > 1:
                e("s_cmp_lt_u32 s45, 14"); e("s_cbranch_scc0 RD_N1")
                wo_group()
                e("s_waitcnt vmcnt(14)"); e("s_branch RD_C")
                lab("RD_N1")
            e("s_waitcnt vmcnt(7)"); e("s_branch RD_C")
            lab("RD_ND")
            e("s_waitcnt vmcnt(0)")
            e("ds_write_b32 v30, v18 offset:160")
            lab("RD_C")
            for n in range(4):
                for w in range(4):
                    for p in range(2):
                        d = RS + 2 * w + p
                        e(f"v_dot2_f32_bf16 v{d}, v{RP+4*n+w}, v{246+p}, {'v%d' % d if n else 0}")
            e("s_nop 1")
            for a in range(4): e(f"v_permlane32_swap_b32 v{RS+a}, v{RS+4+a}")
            e("s_nop 0")
            for u in range(2): e(f"v_pk_add_f32 {vr(RS+2*u,2)}, {vr(RS+2*u,2)}, {vr(RS+4+2*u,2)}")
            e("s_nop 1")
            for a in range(2): e(f"v_permlane16_swap_b32 v{RS+a}, v{RS+2+a}")
            e("s_nop 0")
            e(f"v_pk_add_f32 {vr(RS,2)}, {vr(RS,2)}, {vr(RS+2,2)}")
            e(f"v_cmp_u_f32 vcc, v{RS}, v{RS+1}")
            cvt_pk(RS, RS, RS + 1); e("s_nop 3")
            e("s_cbranch_vccz RD_RS")
            if RSL: e(f"s_sleep {RSL}")
            e("s_add_u32 s93, s93, 1"); e(f"s_cmp_lt_u32 s93, {LIMIT}"); e("s_cbranch_scc1 RD_RL")
            e("s_branch P2")
            lab("RD_RS")
            st2(f"buffer_store_dword v{RS}, v245, s[20:23], 0 offen")
            ts(18)
            e("s_branch P2")
        else:
            def cv2(o, s): return [cvt(o, s, s + 1), cvt(o + 1, s + 2, s + 3)]
            nh = 2 if halo else 0
            dl = []
            dl.append((5, cv2(48, acc(1, 2)) + cv2(50, acc(1, 3)) + ["ds_write_b128 v19, v[48:51] offset:2048"]))
            dl.append((7, cv2(56, acc(1, 4)) + cv2(62, acc(1, 5)) + ["ds_write_b64 v19, v[56:57] offset:3072", "ds_write_b64 v19, v[62:63] offset:3080"]))
            if halo:
                dl.append((9, cv2(64, ACC + 48) + cv2(66, ACC + 52) + [f"ds_write_b128 v8, v[64:67] offset:{0 if name == 'BK' else 1024}"]))
            dl.append((9 + nh, cv2(44, acc(0, 2)) + cv2(46, acc(0, 3))))
            dl.append((11 + nh, cv2(36, acc(1, 0)) + cv2(38, acc(1, 1)) + ["v_cndmask_b32 v38, v38, 0, s[66:67]", "v_cndmask_b32 v39, v39, 0, s[66:67]"]))
            for mi, ins in enumerate(ms):
                e(ins)
                if lastwf:
                    for x in lastwf.pop(0): e(x)
                while dl and dl[0][0] <= mi:
                    for x in dl.pop(0)[1]: e(x)
            assert not dl
            if name != "BL": e("s_branch B_EPI")
    def special(name):
        lab(f"SP_{name}")
        e("s_cmp_eq_u32 s39, 0"); e(f"s_cbranch_scc0 SP1_{name}")
        e(f"s_add_u32 s30, s52, {SCR}")
        for i in range(4):
            if i == 3: e("s_mov_b32 exec_hi, 0")
            e(f"s_add_u32 m0, s30, {1024*i}"); e("s_nop 0")
            e("buffer_load_dwordx4 v199, s[48:51], s63 offen lds")
            if i < 3: e("s_add_u32 s63, s63, 7168")
        e("s_mov_b32 exec_hi, -1")
        chk(196, xcc=198)
        e("s_cmp_eq_u64 vcc, 0"); e("s_cselect_b32 s92, 1, 0")
        if "remote" in VS: e("s_mov_b32 s92, 0")
        e("s_or_b32 s92, s92, s96")
        e("v_mov_b32 v196, s92"); e(f"v_mov_b32 v198, {ST+64}")
        e("s_cmp_eq_u32 s38, 0"); e(f"s_cbranch_scc0 SR_{name}")
        e("ds_write_b32 v198, v196")
        e(f"s_branch SR_{name}")
        lab(f"SP1_{name}")
        e("s_cmp_eq_u32 s39, 1"); e(f"s_cbranch_scc0 SP2_{name}")
        for c in range(4):
            for u in range(2): e(f"ds_read_b64_tr_b16 {vr(176+4*c+2*u,2)}, v{192+u} offset:{32*c}")
        e("s_add_u32 s29, s33, 16384"); e("s_add_u32 s30, s33, 32768"); e("s_add_u32 s31, s33, 49152")
        e("s_cmp_eq_u32 s92, 0"); e(f"s_cbranch_scc1 SP1R_{name}")
        for pol, lb in (("", None), (SC, f"SP1R_{name}")):
            if lb: lab(lb)
            for c in range(4):
                e(f"s_waitcnt lgkmcnt({6-2*c})")
                e(f"buffer_store_dwordx4 {vr(176+4*c,4)}, v194, s[20:23], s{(33,29,30,31)[c]} offen" + pol)
            e(f"s_branch SR_{name}")
        lab(f"SP2_{name}")
        e("s_cmp_eq_u32 s39, 2"); e(f"s_cbranch_scc0 SP3_{name}")
        st2(f"buffer_store_dwordx2 {vr(FD,2)}, v167, s[20:23], 0 offen")
        e(f"s_branch SR_{name}")
        lab(f"SP3_{name}")
        ld2("buffer_load_dwordx4 v[160:163], v166, s[20:23], 0 offen")
        e(f"s_branch SR_{name}")
        lab(f"GC_{name}")
        e("s_mov_b32 s93, 0")
        lab(f"GO_P{name}")
        chk(160, two=True)
        e(f"s_cbranch_vccz GO_OK{name}")
        ld2("buffer_load_dwordx4 v[160:163], v166, s[20:23], 0 offen"); e("s_waitcnt vmcnt(0)")
        e("s_add_u32 s93, s93, 1"); e(f"s_cmp_lt_u32 s93, {LIMIT}"); e(f"s_cbranch_scc1 GO_P{name}")
        e("s_mov_b32 s89, 1")
        e(f"s_branch GO_OK{name}")
    special("BL")
    role("AK"); role("BK"); role("BV"); role("BL")
    lab("B_EPI")
    accB = lambda a, c: ACC + 16 * (c >> 1) + 4 * (2 * a + (c & 1))
    R = [72 - 20, 92 - 20]
    e("s_waitcnt lgkmcnt(0)"); e("s_barrier")
    ts(4)
    e("ds_read_b128 v[40:43], v19"); e("ds_read_b64 v[52:53], v19 offset:1024"); e("ds_read_b64 v[58:59], v19 offset:1032")
    b = R[1]
    e(f"v_mfma_f32_16x16x32_bf16 {vr(b+20,4)}, v[44:47], v[36:39], {vr(CM,4)}")
    e(f"v_mfma_f32_16x16x32_bf16 {vr(b+24,4)}, v[48:51], v[36:39], {vr(CM+4,4)}")
    for u in range(2):
        s = accB(0, u); cvt_pk(32 + 2 * u, s, s + 1); cvt_pk(33 + 2 * u, s + 2, s + 3)
    e("v_cndmask_b32 v34, v34, 0, s[66:67]"); e("v_cndmask_b32 v35, v35, 0, s[66:67]")
    for u in range(2):
        s = accB(0, 4 + u); cvt_pk(54 + 6 * u, s, s + 1); cvt_pk(55 + 6 * u, s + 2, s + 3)
    b = R[0]
    e(f"v_mfma_f32_16x16x32_bf16 {vr(b+24,4)}, v[44:47], v[32:35], {vr(CM+4,4)}")
    e("s_waitcnt lgkmcnt(2)")
    e(f"v_mfma_f32_16x16x32_bf16 {vr(b+20,4)}, v[40:43], v[32:35], {vr(CMP,4)}")
    order = [1, 0]
    def both(f):
        for a in order: f(R[a])
    b = R[1]
    for i in range(4): e(f"v_cndmask_b32 v{b+28+i}, v{b+20+2*i}, v{b+21+2*i}, s[64:65]")
    e(f"v_max3_f32 v{b+32}, v{b+28}, v{b+29}, v{b+30}"); e(f"v_max_f32 v{b+32}, v{b+32}, v{b+31}")
    e("s_nop 3")
    b = R[0]
    for i in (2, 3, 0, 1): e(f"v_cndmask_b32 v{b+28+i}, v{b+20+2*i}, v{b+21+2*i}, s[64:65]")
    e(f"v_max3_f32 v{b+32}, v{b+28}, v{b+29}, v{b+30}"); e(f"v_max_f32 v{b+32}, v{b+32}, v{b+31}")
    for pl in ("v_permlane32_swap_b32", "v_permlane16_swap_b32"):
        both(lambda b: e(f"v_mov_b32 v{b+33}, v{b+32}")); e("s_nop 0")
        both(lambda b: e(f"{pl} v{b+32}, v{b+33}")); e("s_nop 0")
        both(lambda b: e(f"v_max_f32 v{b+32}, v{b+32}, v{b+33}"))
    both(lambda b: e(f"v_mul_f32 v{b+32}, s68, v{b+32}"))
    for u in range(2):
        both(lambda b: e(f"v_pk_fma_f32 {vr(b+28+2*u,2)}, {vr(b+28+2*u,2)}, s[68:69], {vr(b+32,2)} op_sel_hi:[1,1,0] neg_lo:[0,0,1] neg_hi:[0,0,1]"))
    for a in order:
        b = R[a]
        for i in range(4): e(f"v_exp_f32 v{b+28+i}, v{b+28+i}")
    for a in order:
        b = R[a]
        for i in range(4): cvt_pk(b + 28 + i, b + 28 + i, b + 28 + i)
        for i in range(4): e(f"v_and_b32 v{b+28+i}, v{PAR}, v{b+28+i}")
        e("s_waitcnt lgkmcnt(0)"); e("s_nop 1")
        e(f"v_mfma_f32_16x16x32_bf16 {vr(b+36,4)}, {vr(ONES,4)}, {vr(b+28,4)}, 0")
        for u in range(2):
            e(f"v_mfma_f32_16x16x32_bf16 {vr(b+20+4*u,4)}, {vr(52+6*u+2*a,4)}, {vr(b+28,4)}, 0")
    e("s_add_u32 s29, s70, 16384")
    e("s_nop 2")
    e(f"v_rcp_f32 v{R[1]+36}, v{R[1]+36}")
    e("s_nop 7")
    e(f"v_rcp_f32 v{R[0]+36}, v{R[0]+36}")
    for k, a in enumerate(order):
        b = R[a]; o = 32 + 4 * a
        if k: e("s_nop 1")
        for i in range(4): e(f"v_pk_mul_f32 {vr(b+20+2*i,2)}, {vr(b+20+2*i,2)}, {vr(b+36,2)} op_sel_hi:[1,0]")
        for u in range(2):
            cvt_pk(o + 2 * u, b + 20 + 4 * u, b + 21 + 4 * u); cvt_pk(o + 2 * u + 1, b + 22 + 4 * u, b + 23 + 4 * u)
        e(f"v_cndmask_b32 v{o+2}, v{o+2}, 0, s[66:67]"); e(f"v_cndmask_b32 v{o+3}, v{o+3}, 0, s[66:67]")
        st2(f"buffer_store_dwordx4 {vr(o,4)}, v13, s[20:23], s{29 if a else 70} offen")
    lab("P2")
    e("s_setprio 0")
    ts(6)
    e("s_cmp_eq_u32 s96, 0"); e("s_cbranch_scc1 P2N")
    e("s_waitcnt vmcnt(0) lgkmcnt(0)"); e("s_barrier")
    e("s_add_u32 s97, s97, 1"); e("s_cmp_eq_u32 s97, 128"); e("s_cbranch_scc1 P2N")
    e("s_add_u32 s2, s2, 2"); e("s_and_b32 s2, s2, 255")
    e("s_branch RESTART")
    lab("P2N")
    AC2 = 160
    FL, EF = 20, 22
    PQ, KV, S1 = 32, 64, 80
    LDF = f"buffer_load_dwordx2 {vr(FL,2)}, v10, s[20:23], 0 offen"
    srd(16, 80, 2048 * 1792)
    e("s_lshl_b32 s34, s27, 11")
    e("s_mov_b32 s93, 0")
    e("s_cmp_eq_u32 s24, 0"); e("s_cbranch_scc1 P2_A")
    AFS = [32, 96]
    def gemm(tag, bars):
        Lq = Q("lgkmcnt", 15)
        Lq.issue("ds_read_b32 v29, v31", "st")
        nk, av, rs = (16, 13, 16384) if bars else (14, 11, ORB)
        def rd(rb, k): Lq.issue(f"ds_read_b128 {vr(AFS[rb&1]+4*k,4)}, v{av} offset:{rb*rs+1024*k}", f"a{rb}_{k}")
        for k in range(nk): rd(0, k)
        Lq.wait("st")
        e("v_cmp_ne_u32 vcc, 0, v29"); e("s_nop 4"); e("s_cbranch_vccnz FALLBACK")
        for rb in range(4):
            if bars and rb < 3:
                e(f"s_waitcnt vmcnt({4-2*rb+max(0,rb-1)})"); e("s_barrier")
            ts(11 + rb)
            a = AC2 + 4 * (rb & 1)
            for k in range(nk):
                Lq.wait(f"a{rb}_{k}")
                e(f"v_mfma_f32_16x16x32_bf16 {vr(a,4)}, {vr(WF+4*k,4)}, {vr(AFS[rb&1]+4*k,4)}, {vr(a,4) if k else 0}")
                if rb < 3: rd(rb + 1, k)
                if rb and k == 3:
                    p = AC2 + 4 * ((rb - 1) & 1)
                    cvt_pk(p, p, p + 1); cvt_pk(p + 1, p + 2, p + 3)
                    e(f"buffer_store_dwordx2 {vr(p,2)}, v14, s[16:19], s{76+rb-1} offen" + OSC)
        e("s_nop 7"); e("s_nop 7")
        p = AC2 + 4
        cvt_pk(p, p, p + 1); cvt_pk(p + 1, p + 2, p + 3)
        e(f"buffer_store_dwordx2 {vr(p,2)}, v14, s[16:19], s79 offen" + OSC)
        ts_end(15)
        e("s_branch K_END")
    def w7tail(bars):
        e("ds_read_b32 v29, v31"); e("s_waitcnt lgkmcnt(0)")
        e("v_cmp_ne_u32 vcc, 0, v29"); e("s_nop 4"); e("s_cbranch_vccnz FALLBACK")
        if bars:
            for rb in range(3): e(f"s_waitcnt vmcnt({4-2*rb})"); e("s_barrier")
        if "wb2" in VS:
            k = uid()
            e("s_lshr_b32 s29, s2, 3"); e("s_and_b32 s29, s29, 7"); e("s_cmp_eq_u32 s29, 0"); e(f"s_cbranch_scc0 NW{k}"); e("buffer_wbl2 sc1"); lab(f"NW{k}")
        ts_end(15)
        e("s_branch K_END")
    e("s_waitcnt vmcnt(0)")
    ts(7)
    st2(f"buffer_store_dwordx2 {vr(FD,2)}, v9, s[20:23], 0 offen")
    e("s_cmp_eq_u32 s96, 0"); e("s_cbranch_scc0 PB_GO")
    lab("PB_POLL")
    ld2(LDF)
    e("s_waitcnt vmcnt(0)")
    chk(FL)
    e("s_cbranch_vccz PB_GO")
    e("s_add_u32 s93, s93, 1"); e(f"s_cmp_lt_u32 s93, {LIMIT}"); e("s_cbranch_scc1 PB_POLL")
    e("s_mov_b32 s89, 1"); e("s_branch PB_ND")
    lab("PB_GO")
    ts(10)
    dl = []
    for rb in range(4):
        dl += [f"s_add_u32 m0, s34, {rb*16384}", "s_nop 0"]
        for hh in range(2): dl.append(f"buffer_load_dwordx4 v15, s[20:23], s{72+rb} offen offset:{1024*hh}")
    ld2(dl, " lds")
    lab("PB_ND")
    e("v_mov_b32 v29, s89"); e("ds_write_b32 v30, v29")
    e("s_waitcnt vmcnt(6) lgkmcnt(0)"); e("s_barrier")
    e("s_cmp_eq_u32 s27, 7"); e("s_cbranch_scc1 PB_W7")
    gemm("b", True)
    lab("PB_W7")
    w7tail(True)
    lab("P2_A")
    def ldpq():
        ld2([f"buffer_load_dwordx4 {vr(PQ+8*rb+4*hh,4)}, v15, s[20:23], s{72+rb} offen offset:{1024*hh}" for rb in range(4) for hh in range(2)])
    def ldkv():
        ld2([f"buffer_load_dwordx4 {vr(KV+4*k,4)}, v12, s[20:23], s44 offen offset:{1024*k}" for k in range(4)])
    def wfrd():
        r = []
        for k in range(14):
            for hf in range(2):
                if k < 8: p, n, st = 0, 2 * k + hf, 6272
                elif k < 12: p, n, st = 1, 2 * (k - 8) + hf, 12544
                else: p, n, st = 2, 2 * (k - 12) + hf, 25088
                o = n * st
                if o >= 50176: o -= 50176; p += 3
                r.append(f"ds_read_b64_tr_b16 {vr(WF+4*k+2*hf,2)}, v{AV+p} offset:{o}")
        return r
    def trywf(k):
        e(f"s_mov_b32 s43, {k}")
        e("s_cmp_eq_u32 s46, 0"); e("s_cbranch_scc1 WFT")
        lab(f"WFR{k}")
    e("s_and_b32 s44, s2, 7"); e("s_lshl_b32 s44, s44, 15"); e(f"s_add_u32 s44, s44, {WS_KVT}")
    e("s_cmp_eq_u32 s27, 7"); e("s_cselect_b32 s46, 1, 0")
    srd(48, 10, 448 * 896)
    e("s_lshl_b32 s29, s27, 10"); e("v_add_u32 v2, s29, v11")
    e("s_lshr_b32 s29, s27, 1"); e("s_lshl_b32 s29, s29, 10"); e("s_and_b32 s30, s27, 1"); e("s_lshl_b32 s30, s30, 3"); e("s_add_u32 s29, s29, s30"); e("s_add_u32 s29, s29, 8192"); e("v_add_u32 v3, s29, v11")
    e("s_lshr_b32 s29, s27, 2"); e("s_lshl_b32 s29, s29, 10"); e("s_lshl_b32 s30, s38, 2"); e("s_add_u32 s29, s29, s30"); e("s_add_u32 s29, s29, 12288"); e("v_add_u32 v4, s29, v11")
    e("v_mov_b32 v18, 127")
    e("s_cmp_lt_u32 s27, 4"); e("s_cselect_b32 s45, s45, 14")
    e("s_cmp_eq_u32 s96, 0"); e("s_cbranch_scc0 PA_FB")
    e("s_cmp_lt_u32 s27, 4"); e("s_cbranch_scc1 PA_FP")
    trywf(2)
    e("s_waitcnt vmcnt(0)")
    ts(7)
    st2(f"buffer_store_dwordx2 {vr(FD,2)}, v9, s[20:23], 0 offen")
    lab("PA_FP")
    ld2(LDF)
    if WGF:
        e("s_cmp_lt_u32 s45, 14"); e("s_cbranch_scc0 PA_F0")
        wo_group()
        e("s_waitcnt vmcnt(7)"); e("s_branch PA_FC")
    lab("PA_F0")
    trywf(0)
    e("s_waitcnt vmcnt(0)")
    if WGF: e("ds_write_b32 v30, v18 offset:160")
    lab("PA_FC")
    chk(FL)
    e("s_cbranch_vccz PA_FOK")
    e("s_add_u32 s93, s93, 1"); e(f"s_cmp_lt_u32 s93, {LIMIT}"); e("s_cbranch_scc1 PA_FP")
    e("s_branch PA_FAIL")
    lab("PA_FOK")
    ldpq()
    ts(10)
    wo_rest("n")
    lab("PA_KL")
    ldkv()
    trywf(1)
    e("s_waitcnt vmcnt(0)")
    e("ds_write_b32 v30, v18 offset:160")
    e(f"v_max3_u32 v6, v{KV}, v{KV+1}, v{KV+2}")
    for k in range(3, 15, 2): e(f"v_max3_u32 v6, v6, v{KV+k}, v{KV+k+1}")
    e(f"v_max_u32 v6, v6, v{KV+15}"); e("v_cmp_eq_u32 vcc, -1, v6"); e("s_nop 4")
    e("s_cbranch_vccz PA_GO")
    if SLP: e(f"s_sleep {SLP}")
    e("s_add_u32 s93, s93, 1"); e(f"s_cmp_lt_u32 s93, {LIMIT}"); e("s_cbranch_scc1 PA_KL")
    lab("PA_FAIL")
    e("s_mov_b32 s89, 1"); e("s_barrier"); e("s_branch PA_ST")
    lab("WFT")
    e("ds_read_b32 v1, v31 offset:160"); e("s_waitcnt lgkmcnt(0)"); e("v_cmp_eq_u32 vcc, 0, v1"); e("s_nop 4"); e("s_cbranch_vccnz WFX")
    for x in wfrd(): e(x)
    e("s_mov_b32 s46, 1")
    ts(19)
    lab("WFX")
    e("s_cmp_eq_u32 s43, 0"); e("s_cbranch_scc1 WFR0"); e("s_cmp_eq_u32 s43, 1"); e("s_cbranch_scc1 WFR1"); e("s_branch WFR2")
    lab("PA_FB")
    wo_rest("f")
    ldpq()
    e("v_lshrrev_b32 v7, 2, v16"); e("v_and_b32 v6, 3, v16"); e("v_mul_u32_u24 v7, 3, v7"); e("v_add_u32 v7, v7, v6"); e("v_add_u32 v7, 64, v7")
    e("v_cmp_eq_u32 vcc, 3, v6"); e("v_mov_b32 v6, 76"); e("s_nop 0"); e("v_cndmask_b32 v7, v7, v6, vcc")
    e("v_lshl_add_u32 v7, v17, 4, v7"); e("v_lshlrev_b32 v7, 4, v7")
    e("s_lshr_b32 s35, s95, 1"); e("s_lshl_b32 s35, s35, 17"); e(f"s_add_u32 s35, s35, {WS_PRIV}"); e("s_lshl_b32 s29, s27, 13"); e("s_add_u32 s35, s35, s29")
    for half in range(2):
        for hh in range(2):
            e(f"s_add_u32 s36, s35, {65536*half+4096*hh}")
            for eb in range(2):
                for db in range(2):
                    e(f"buffer_load_dwordx4 {vr(80+32*half+16*hh+8*eb+4*db,4)}, v{7 if eb else 13}, s[20:23], s36 offen offset:{2048*db}" + SC)
    e("s_waitcnt vmcnt(0)")
    for k in range(16): e(f"v_pk_add_f32 {vr(80+2*k,2)}, {vr(80+2*k,2)}, {vr(112+2*k,2)}")
    for k in range(16): cvt_pk(KV + k, 80 + 2 * k, 81 + 2 * k)
    for k in range(4):
        for u in (2, 3): e(f"v_cndmask_b32 v{KV+4*k+u}, v{KV+4*k+u}, 0, s[66:67]")
    e("s_nop 1")
    lab("PA_GO")
    ts(17)
    items = [(rb, hh) for rb in range(4) for hh in range(2)]
    def s1valu(k):
        rb, hh = items[k]; a = S1 + 8 * (k & 3); o = PQ + 8 * rb
        e(f"v_rcp_f32 v{a+7}, v{a+7}"); e("s_nop 0")
        for u in range(3): e(f"v_pk_mul_f32 {vr(a+2*u,2)}, {vr(a+2*u,2)}, {vr(a+6,2)} op_sel:[0,1] op_sel_hi:[1,1]")
        e(f"v_mul_f32 v{a+6}, v{a+6}, v{a+7}")
        for u in range(2): cvt_pk(o + 2 * hh + u, a + 2 * u, a + 2 * u + 1)
        if hh == 0: cvt_pk(o + 4, a + 4, a + 5)
        else:
            cvt_pk(o + 5, a - 2, a + 4); cvt_pk(o + 6, a + 5, a + 6)
            e(f"ds_write_b128 v2, {vr(o,4)} offset:{rb*ORB}"); e(f"ds_write_b64 v3, {vr(o+4,2)} offset:{rb*ORB}"); e(f"ds_write_b32 v4, v{o+6} offset:{rb*ORB}")
    for k in range(10):
        if k < 8:
            rb, hh = items[k]; a = S1 + 8 * (k & 3)
            for eb in range(2):
                e(f"v_mfma_f32_16x16x32_bf16 {vr(a+4*eb,4)}, {vr(KV+8*hh+4*eb,4)}, {vr(PQ+8*rb+4*hh,4)}, {vr(ONES,4) if eb else 0}")
        else: e("s_nop 7")
        if k >= 2: s1valu(k - 2)
        if k == 2:
            e("s_barrier")
            ts(8)
            e("s_cmp_eq_u32 s46, 0"); e("s_cbranch_scc0 PA_NW")
            for x in wfrd(): e(x)
            lab("PA_NW")
    lab("PA_ST")
    ts(9)
    e("v_mov_b32 v29, s89"); e("ds_write_b32 v30, v29")
    e("s_waitcnt lgkmcnt(0)"); e("s_barrier")
    e("s_cmp_eq_u32 s27, 7"); e("s_cbranch_scc1 PA_W7")
    gemm("a", False)
    lab("PA_W7")
    w7tail(False)
    lab("FALLBACK")
    if "nofb" in VS:
        ts_end(15); e("s_branch K_END")
    for i in range(4): e(f"v_mov_b32 v{32+i}, 0")
    e("s_lshr_b32 s35, s95, 1"); e("s_lshl_b32 s35, s35, 17"); e(f"s_add_u32 s35, s35, {WS_PRIV}"); e("s_lshl_b32 s29, s27, 14"); e("s_add_u32 s35, s35, s29")
    e("s_cmp_eq_u32 s24, 0"); e("s_cbranch_scc0 FB_NZ")
    for k in range(16):
        e(f"buffer_store_dwordx4 v[32:35], v13, s[20:23], s35 offen offset:{1024*(k&3)}" + SC)
        if k & 3 == 3: e("s_add_u32 s35, s35, 4096")
    lab("FB_NZ")
    e("s_waitcnt vmcnt(0) lgkmcnt(0)"); e("s_barrier")
    e("s_mov_b32 s96, 1"); e("s_mov_b32 s97, 0"); e("s_add_u32 s2, s95, 2"); e("s_and_b32 s2, s2, 255")
    e("s_branch RESTART")
    lab("K_END")
    e("s_endpgm")

def main():
    hdr = open(f"cdna_kernels/{NAME}.s.ref").read().split("\n")
    top = [l for l in hdr if l.startswith(";") and "@launch" not in l]
    top.append(f"; @launch kernel={KN} grid=(256,1,1) block=(512,1,1) lds={LDS}")
    L.extend(top)
    L.append('.amdgcn_target "amdgcn-amd-amdhsa--gfx950"'); L.append(".text")
    gen()
    L.append('.section .rodata,"a"')
    L.append(kd(KN, 256, 256))
    open(OUT, "w").write("\n".join(L) + "\n")
main()
```
